```python
import torch

def _softmax(x, axis=-1):
    return torch.softmax(x, dim=axis)
def _gelu(x):
    return torch.nn.functional.gelu(x, approximate="tanh")
def _silu(x):
    return torch.nn.functional.silu(x)
def _sigmoid(x):
    return torch.sigmoid(x)
def _layernorm(x, axis=-1, eps=1e-5):
    m = x.mean(dim=axis, keepdim=True)
    v = x.var(dim=axis, keepdim=True, unbiased=False)
    return (x - m) / torch.sqrt(v + eps)
def _scatter_add(tgt, idx, src, axis=0):
    return tgt.clone().index_add_(axis, idx, src)
def _segment_sum(src, seg, n):
    out = torch.zeros((n,) + src.shape[1:], dtype=src.dtype)
    return out.index_add_(0, seg, src)
def _pad(x, pw):
    flat = tuple(v for pair in reversed(pw) for v in pair)
    return torch.nn.functional.pad(x, flat)

kernel_name = 'recurrent_scan__ssm_conv_h3__glu_gated_reglu__prompt'

def setup_inputs():

    _w = (lambda a: (lambda t: t.to(torch.bfloat16) if t.is_floating_point() else t)(torch.as_tensor(a)))
    def _A_setup():
        B, S, D = 1, 2048, 448
        ks = 4
        return {
            "q": _w((lambda *s: torch.randn(*s, dtype=torch.bfloat16) * 0.05)(B, S, D)),
            "k": _w((lambda *s: torch.randn(*s, dtype=torch.bfloat16) * 0.8)(B, S, D)),
            "v": _w((lambda *s: torch.randn(*s, dtype=torch.bfloat16) * 0.8)(B, S, D)),
            "shift_k": _w((lambda *s: torch.randn(*s, dtype=torch.bfloat16) * 0.8)(D, ks) * 0.5),
            "ssm_k": _w((lambda *s: torch.randn(*s, dtype=torch.bfloat16) * 0.8)(D, S) * (1.0 / S ** 0.5)),
            "ssm_D": _w((lambda *s: torch.randn(*s, dtype=torch.bfloat16) * 0.8)(D)),
        }
    _A_in = _A_setup()

    def _B_setup():
        B, S, D, F = 1, 2048, 448, 1792
        return {
            "x": _w((lambda *s: torch.randn(*s, dtype=torch.bfloat16) * 0.05)(B, S, D)),
            "W_gate": _w((lambda *s: torch.randn(*s, dtype=torch.bfloat16) * 0.2)(D, F) * (2.0 / D) ** 0.5),
            "W_up": _w((lambda *s: torch.randn(*s, dtype=torch.bfloat16) * 0.2)(D, F) * (2.0 / D) ** 0.5),
            "W_down": _w((lambda *s: torch.randn(*s, dtype=torch.bfloat16) * 0.2)(F, D) * (1.0 / F) ** 0.5),
        }
    _B_in = _B_setup()

    return {
        "A_q": _A_in["q"],
        "A_k": _A_in["k"],
        "A_v": _A_in["v"],
        "A_shift_k": _A_in["shift_k"],
        "A_ssm_k": _A_in["ssm_k"],
        "A_ssm_D": _A_in["ssm_D"],
        "B_x": _B_in["x"],
        "B_W_gate": _B_in["W_gate"],
        "B_W_up": _B_in["W_up"],
        "B_W_down": _B_in["W_down"],
    }

def reference(A_q, A_k, A_v, A_shift_k, A_ssm_k, A_ssm_D, B_x, B_W_gate, B_W_up, B_W_down):
    def _A_ref(q, k, v, shift_k, ssm_k, ssm_D):
        B, S, D = q.shape
        ks = shift_k.shape[-1]
        k_pad = _pad(k, ((0, 0), (ks - 1, 0), (0, 0)))
        k_shift = torch.zeros_like(k)
        for t in range(ks):
            k_shift = k_shift + k_pad[:, t:t + S, :] * shift_k[:, ks - 1 - t][None, None, :]
        kv = k_shift * v
        L = 2 * S
        kv_pad = _pad(kv, ((0, 0), (0, S), (0, 0)))
        kf_pad = _pad(ssm_k, ((0, 0), (0, S)))
        kv_f = (lambda x, axes=(-2,-1): torch.fft.rfft2(x.float(), dim=axes))(kv_pad[:, None, :, :], axes=(1, 2))
        kf_f = (lambda x, axes=(-2,-1): torch.fft.rfft2(x.float(), dim=axes))(kf_pad[:, None, :], axes=(1, 2))
        kf_f = (lambda x, *d: x.permute(*d))(kf_f, 1, 2, 0)
        y_f = kv_f * kf_f[None, :, :, :]
        y = (lambda x, s, axes=(-2,-1): torch.fft.irfft2(x, s=s, dim=axes).to(torch.bfloat16))(y_f, (1, L), axes=(1, 2))[:, 0, :S, :]
        y = y + kv * ssm_D[None, None, :]
        return q * y

    def _B_ref(x, W_gate, W_up, W_down):
        gate = torch.einsum("bsd,df->bsf", x, W_gate)
        up = torch.einsum("bsd,df->bsf", x, W_up)
        gate = gate * (lambda x, dt: x.to(dt))(gate > 0, gate.dtype)
        h = gate * up
        return torch.einsum("bsf,fd->bsd", h, W_down)

    x = A_q
    xn = _layernorm(x, axis=-1)
    s = _A_ref(xn, A_k, A_v, A_shift_k, A_ssm_k, A_ssm_D)
    g = _silu(_B_ref(xn, B_W_gate, B_W_up, B_W_down))
    return x + s * g
```

```python
from gen import *

B_GRID = 224
RING_D = 12
RING = RING_D * 2048
CONV0 = 4 * RING
CPITCH = 4160
CONV_CH = 4 * CPITCH + 5120
Y2S = CONV0 + 2 * CONV_CH
CNT = Y2S + 8192
B_LDS = CNT + 64

def kernel_b(a):
    a.lab("kb_kernel")
    a("s_cmp_ge_u32 s2, 224")
    a("s_cbranch_scc1 kb_end")
    a("s_load_dwordx2 s[4:5], s[0:1], 0")
    a("s_load_dwordx4 s[8:11], s[0:1], 32")
    a("s_load_dwordx8 s[12:19], s[0:1], 72")
    a("v_and_b32 v1, 63, v0")
    a("v_lshrrev_b32 v2, 6, v0")
    a("s_nop 0")
    a("v_readfirstlane_b32 s32, v2")
    a("s_and_b32 s40, s2, 7")
    a("s_lshr_b32 s41, s2, 3")
    a("s_mul_i32 s42, s41, 37")
    a("s_lshr_b32 s42, s42, 8")
    a("s_mul_i32 s43, s42, 7")
    a("s_sub_u32 s34, s41, s43")
    a("s_lshl_b32 s44, s40, 2")
    a("s_add_u32 s33, s44, s42")
    a("s_lshl_b32 s44, s33, 6")
    a("v_lshrrev_b32 v2, 3, v0")
    a("v_add_u32 v3, s44, v2")
    a("s_movk_i32 s45, 896")
    a("v_mul_lo_u32 v4, v3, s45")
    a("v_and_b32 v5, 7, v0")
    a("v_lshl_add_u32 v4, v5, 4, v4")
    a("s_lshl_b32 s44, s34, 7")
    a("v_add_u32 v20, s44, v4")
    a("v_lshlrev_b32 v3, 3, v3")
    a("s_waitcnt lgkmcnt(0)")
    srd(a, 20, 4, 2048 * 896)
    srd(a, 28, 18, WS_REC)
    a("buffer_load_dwordx4 v[14:17], v20, s[20:23], 0 offen")
    a(f"s_mov_b32 s44, {STATS_OFF}")
    a("buffer_load_dwordx2 v[18:19], v3, s[28:31], s44 offen")
    a("s_cmp_ge_u32 s32, 4")
    a("s_cbranch_scc1 kb_conv")

    srd(a, 24, 12, 1792 * 896)
    a("v_lshlrev_b32 v10, 4, v1")
    a("v_lshrrev_b32 v2, 3, v1")
    a("v_mul_u32_u24 v2, 896, v2")
    a("v_bfe_u32 v3, v1, 4, 1")
    a("v_lshlrev_b32 v3, 2, v3")
    a("v_and_b32 v4, 7, v1")
    a("v_xor_b32 v3, v3, v4")
    a("v_lshl_add_u32 v2, v3, 4, v2")
    a("s_lshl_b32 s44, s34, 7")
    a("v_add_u32 v11, s44, v2")
    a(f"s_mul_i32 s36, s32, {RING}")
    a(f"s_mul_i32 s37, s32, {28 * 16 * 896}")
    a("s_mul_i32 s38, s33, 448")
    a("s_mul_i32 s44, s32, 56")
    a("s_add_u32 s38, s38, s44")
    a("s_lshl_b32 s38, s38, 9")
    a(f"s_add_u32 s39, s38, {224 * 512}")
    def issue(i):
        sl = i % RING_D
        for hh in range(2):
            a(f"s_add_u32 m0, s36, {sl * 2048 + hh * 1024}")
            a(f"s_add_u32 s46, s37, {(16 * i + 8 * hh) * 896}")
            a("buffer_load_dwordx4 v11, s[24:27], s46 offen lds")
        for tt in range(2):
            a(f"s_add_u32 s46, s{38 + tt}, {i * 1024}")
            a(f"buffer_load_dwordx4 {v(128 + 8*sl + 4*tt, 4)}, v10, s[28:31], s46 offen")
    for i in range(RING_D):
        issue(i)
    a("v_bfe_u32 v2, v1, 5, 1")
    a("v_bfe_u32 v3, v1, 2, 2")
    a("v_lshl_add_u32 v2, v2, 2, v3")
    a("v_lshlrev_b32 v2, 7, v2")
    a("v_bfe_u32 v3, v1, 4, 1")
    a("v_and_b32 v4, 3, v1")
    a("v_lshlrev_b32 v4, 3, v4")
    a("v_lshl_or_b32 v4, v3, 5, v4")
    a("v_bfe_u32 v3, v1, 3, 1")
    a("v_lshl_or_b32 v4, v3, 6, v4")
    a("v_add3_u32 v12, v2, v4, s36")
    a("v_xor_b32 v13, 64, v12")
    a("s_barrier")
    def treads(i):
        sl = i % RING_D
        base = 24 + 8 * (i & 1)
        for dt in range(2):
            for half in range(2):
                a(f"ds_read_b64_tr_b16 {v(base + 4*dt + 2*half, 2)}, v{12 + dt} offset:{sl*2048 + half*1024}")
    a(f"s_waitcnt vmcnt({2 + 4 * (RING_D - 1)})")
    treads(0)
    for i in range(28):
        if i < 27:
            n = 2 + 4 * (min(27, i + RING_D - 1) - (i + 1))
            a(f"s_waitcnt vmcnt({n})")
            treads(i + 1)
            a("s_waitcnt lgkmcnt(4)")
        else:
            a("s_waitcnt vmcnt(0) lgkmcnt(0)")
        sl = i % RING_D
        base = 24 + 8 * (i & 1)
        for tt in range(2):
            for dt in range(2):
                acc = 64 + 16 * (2 * dt + tt)
                cc = "0" if i == 0 else v(acc, 16)
                a(f"v_mfma_f32_32x32x16_bf16 {v(acc,16)}, {v(base + 4*dt, 4)}, {v(128 + 8*sl + 4*tt, 4)}, {cc}")
        if i + RING_D < 28:
            issue(i + RING_D)
    a("v_and_b32 v2, 31, v1")
    a("v_mul_u32_u24 v2, 272, v2")
    a("v_lshrrev_b32 v3, 5, v1")
    a("v_lshl_add_u32 v2, v3, 4, v2")
    a("v_add_u32 v2, s36, v2")
    a("s_nop 7")
    a("s_nop 3")
    for tt in range(2):
        for dt in range(2):
            acc = 64 + 16 * (2 * dt + tt)
            for q in range(4):
                a(f"ds_write_b128 v2, {v(acc + 4*q, 4)} offset:{tt*32*272 + dt*128 + q*32}")
    a("s_branch kb_final")

    a.lab("kb_conv")
    a("s_sub_u32 s35, s32, 4")
    a("s_lshr_b32 s36, s35, 1")
    a("s_and_b32 s35, s35, 1")
    a("s_lshl_b32 s37, s2, 1")
    a("s_add_u32 s37, s37, s36")
    a("s_lshl_b32 s44, s2, 2")
    a("s_load_dword s47, s[10:11], s44")
    a("s_lshl_b32 s44, s37, 12")
    a("s_add_u32 s24, s8, s44")
    a("s_addc_u32 s25, s9, 0")
    a("s_and_b32 s25, s25, 0xffff")
    a("s_movk_i32 s26, 4096")
    a("s_mov_b32 s27, 0x00020000")
    a(f"s_add_u32 s45, s44, {UREV_OFF}")
    a("s_add_u32 s48, s18, s45")
    a("s_addc_u32 s49, s19, 0")
    a("s_and_b32 s49, s49, 0xffff")
    a("s_movk_i32 s50, 4096")
    a("s_mov_b32 s51, 0x00020000")
    a(f"s_add_u32 s52, s44, {Y2_OFF}")
    a(f"s_mul_i32 s38, s36, {CONV_CH}")
    a(f"s_add_u32 s38, s38, {CONV0}")
    a(f"s_add_u32 s39, s38, {4 * CPITCH}")
    a("v_lshlrev_b32 v10, 4, v1")
    a("v_subrev_u32 v11, 32, v10")
    a("v_subrev_u32 v12, 16, v10")
    a("v_add_u32 v13, 992, v10")
    BD = 192
    roff = [None, 0, 1024, 2048, 2080]
    a(f"buffer_load_dwordx4 {v(BD,4)}, v11, s[24:27], 0 offen")
    a(f"buffer_load_dwordx2 {v(BD+4,2)}, v12, s[24:27], 0 offen")
    for r in range(1, 5):
        a(f"buffer_load_dwordx4 {v(BD+8*r,4)}, v13, s[24:27], 0 offen offset:{roff[r]}")
        a(f"buffer_load_dwordx2 {v(BD+8*r+4,2)}, v13, s[24:27], 0 offen offset:{roff[r]+16}")
    for r in range(5):
        a(f"s_add_u32 m0, s39, {r * 1024}")
        a(f"s_movk_i32 s46, {r * 1024}")
        a("buffer_load_dwordx4 v10, s[48:51], s46 offen lds")
    lb = a.new("kb_nz")
    a("s_cmp_lg_u32 s32, 4")
    a(f"s_cbranch_scc1 {lb}")
    a("v_mov_b32 v2, 0")
    a(f"v_mov_b32 v3, {CNT}")
    a("ds_write_b32 v3, v2")
    a.lab(lb)
    a("s_waitcnt lgkmcnt(0)")
    a("s_barrier")
    a("v_add_u32 v21, s38, v10")
    a("v_and_b32 v2, 15, v1")
    a("v_lshrrev_b32 v3, 4, v1")
    a("v_lshl_add_u32 v4, v3, 3, v2")
    a("v_add_u32 v4, 1, v4")
    a("v_and_b32 v5, 3, v4")
    a(f"v_mul_u32_u24 v5, {CPITCH}, v5")
    a("v_lshrrev_b32 v4, 2, v4")
    a("v_lshl_add_u32 v5, v4, 3, v5")
    a("v_add_u32 v22, s38, v5")
    a("v_lshlrev_b32 v4, 5, v2")
    a("v_sub_u32 v4, 480, v4")
    a("v_lshl_add_u32 v4, v3, 4, v4")
    a("v_add_u32 v23, s39, v4")
    a("v_lshlrev_b32 v4, 5, v2")
    a("v_lshl_add_u32 v4, v3, 3, v4")
    a("v_sub_u32 v5, 504, v4")
    a("v_add_u32 v9, s39, v5")
    a("v_mov_b32 v8, v4")
    woff = [0, 1024, 2048, 3072, 3104]
    E = 232
    for r in range(5):
        D = BD + 8 * r
        a(f"s_waitcnt vmcnt({5 + 2 * (4 - r)})")
        a(f"ds_write_b128 v21, {v(D,4)} offset:{woff[r]}")
        for p in range(4):
            a(f"v_alignbit_b32 v{E+p}, v{D+p+1}, v{D+p}, 16")
        for p in range(4):
            a(f"v_mov_b32 v{E+4+p}, v{D+p+1}")
        for p in range(4):
            a(f"v_alignbit_b32 v{E+8+p}, v{D+p+2}, v{D+p+1}, 16")
        for sidx in range(3):
            a(f"ds_write_b128 v21, {v(E+4*sidx,4)} offset:{woff[r] + (sidx+1)*CPITCH}")
        a("s_waitcnt lgkmcnt(0)")
    a("s_waitcnt vmcnt(0) lgkmcnt(0)")
    a("s_cmp_eq_u32 s35, 1")
    a("s_cbranch_scc1 kb_conv1")

    def conv_body(tiles):
        amax = max(tiles)
        SET = [(64, 96), (128, 160)]
        def rd(c0i):
            Tb, Hb = SET[c0i & 1]
            L = []
            for k in range(amax + 1):
                L.append(f"ds_read_b64 {v(Tb+4*k,2)}, v22 offset:{64*c0i + 512*k}")
                L.append(f"ds_read_b64 {v(Tb+4*k+2,2)}, v22 offset:{64*c0i + 512*k + 8}")
                L.append(f"ds_read_b128 {v(Hb+4*k,4)}, v23 offset:{64*c0i + 512*(7-k)}")
            return L
        for x in rd(0): a(x)
        for c0i in range(8):
            Tb, Hb = SET[c0i & 1]
            a("s_waitcnt lgkmcnt(0)")
            nxt = rd(c0i + 1) if c0i < 7 else []
            mf = []
            lists = [[(bi, aa, b - aa) for aa in range(b + 1)] for bi, b in enumerate(tiles)]
            while any(lists):
                for l_ in lists:
                    if l_: mf.append(l_.pop(0))
            seen = set()
            for n, (bi, aa, m) in enumerate(mf):
                acc = 24 + 4 * bi
                cc = "0" if (c0i == 0 and bi not in seen) else v(acc, 4)
                seen.add(bi)
                a(f"v_mfma_f32_16x16x32_bf16 {v(acc,4)}, {v(Tb+4*aa,4)}, {v(Hb+4*m,4)}, {cc}")
                for _ in range(2):
                    if nxt: a(nxt.pop(0))
            assert not nxt
        for bi, b in enumerate(tiles):
            a(f"ds_read_b64 {v(64+2*bi,2)}, v9 offset:{512*(7-b)}")
        a("s_cmp_eq_u32 s36, 0")
        a("s_cbranch_scc1 " + (lbl := a.new("kb_dlo")))
        a("s_and_b32 s47, s47, 0xffff0000")
        a("s_branch " + (lbl2 := a.new("kb_dj")))
        a.lab(lbl)
        a("s_lshl_b32 s47, s47, 16")
        a.lab(lbl2)
        a("s_waitcnt lgkmcnt(0)")
        for bi, b in enumerate(tiles):
            acc = 24 + 4 * bi
            K0, K1 = 64 + 2 * bi, 65 + 2 * bi
            T = 80 + 8 * bi
            a(f"v_and_b32 v{T+0}, 0xffff0000, v{K1}")
            a(f"v_lshlrev_b32 v{T+1}, 16, v{K1}")
            a(f"v_and_b32 v{T+2}, 0xffff0000, v{K0}")
            a(f"v_lshlrev_b32 v{T+3}, 16, v{K0}")
            for e in range(4):
                a(f"v_mul_f32 v{T+e}, s47, v{T+e}")
            a(f"v_cvt_pk_bf16_f32 v{T+4}, v{T+0}, v{T+1}")
            a(f"v_cvt_pk_bf16_f32 v{T+5}, v{T+2}, v{T+3}")
            a(f"v_cvt_pk_bf16_f32 v{T+6}, v{acc+0}, v{acc+1}")
            a(f"v_cvt_pk_bf16_f32 v{T+7}, v{acc+2}, v{acc+3}")
            for hh in range(2):
                a(f"v_lshlrev_b32 v{T+2*hh}, 16, v{T+4+hh}")
                a(f"v_and_b32 v{T+2*hh+1}, 0xffff0000, v{T+4+hh}")
                a(f"v_lshlrev_b32 v{acc+2*hh}, 16, v{T+6+hh}")
                a(f"v_and_b32 v{acc+2*hh+1}, 0xffff0000, v{T+6+hh}")
            for e in range(4):
                a(f"v_add_f32 v{T+e}, v{T+e}, v{acc+e}")
            a(f"v_cvt_pk_bf16_f32 v{T+4}, v{T+0}, v{T+1}")
            a(f"v_cvt_pk_bf16_f32 v{T+5}, v{T+2}, v{T+3}")
            a(f"buffer_store_dwordx2 {v(T+4,2)}, v8, s[28:31], s52 offen offset:{512*b} sc1")
    conv_body([0, 3, 4, 7])
    a("s_branch kb_conv_done")
    a.lab("kb_conv1")
    conv_body([1, 2, 5, 6])
    a.lab("kb_conv_done")
    a("s_waitcnt vmcnt(0)")
    a("v_mov_b32 v2, 1")
    a(f"v_mov_b32 v3, {CNT}")
    a("s_mov_b64 exec, 1")
    a("ds_add_rtn_u32 v4, v3, v2")
    a("s_waitcnt lgkmcnt(0)")
    a("v_readfirstlane_b32 s44, v4")
    a("s_nop 3")
    a("s_cmp_lg_u32 s44, 3")
    a("s_cbranch_scc1 kb_nosig")
    a("s_lshr_b32 s44, s2, 5")
    a("s_lshl_b32 s44, s44, 5")
    a("v_mov_b32 v3, s44")
    a("global_atomic_add v3, v2, s[16:17] sc1")
    a.lab("kb_nosig")
    a("s_mov_b64 exec, -1")
    a("v_subrev_u32 v2, 256, v0")
    a("v_lshrrev_b32 v3, 3, v2")
    a("v_and_b32 v4, 7, v2")
    a("v_lshlrev_b32 v5, 4, v4")
    a("v_lshl_add_u32 v5, v3, 12, v5")
    a("s_lshl_b32 s44, s34, 18")
    a("s_lshl_b32 s45, s33, 7")
    a("s_add_u32 s44, s44, s45")
    a(f"s_add_u32 s44, s44, {Y2_OFF}")
    a(f"s_add_u32 s45, s44, {32*4096}")
    a("v_lshrrev_b32 v6, 3, v3")
    a("v_xor_b32 v6, v6, v4")
    a("v_lshlrev_b32 v6, 4, v6")
    a("v_lshl_add_u32 v6, v4, 10, v6")
    a("v_and_b32 v7, 7, v3")
    a("v_lshl_add_u32 v6, v7, 1, v6")
    a(f"v_add_u32 v6, {Y2S}, v6")
    a("v_xor_b32 v7, 64, v6")
    a("s_lshl_b32 s46, s34, 5")
    a("v_mov_b32 v3, s46")
    a.lab("kb_poll")
    a("global_load_dword v2, v3, s[16:17] sc1")
    a("s_waitcnt vmcnt(0)")
    a("v_readfirstlane_b32 s46, v2")
    a("s_nop 3")
    a("s_cmp_ge_u32 s46, 32")
    a("s_cbranch_scc1 kb_polled")
    a("s_sleep 4")
    a("s_branch kb_poll")
    a.lab("kb_polled")
    a("buffer_load_dwordx4 v[24:27], v5, s[28:31], s44 offen sc1")
    a("buffer_load_dwordx4 v[28:31], v5, s[28:31], s45 offen sc1")
    for it in range(2):
        a(f"s_waitcnt vmcnt({1-it})")
        for e in range(8):
            op = "ds_write_b16_d16_hi" if e & 1 else "ds_write_b16"
            a(f"{op} v{6+it}, v{24 + 4*it + e//2} offset:{e*128}")

    a.lab("kb_final")
    a("s_waitcnt vmcnt(0) lgkmcnt(0)")
    a("s_barrier")
    a("v_lshrrev_b32 v2, 3, v0")
    a("v_and_b32 v3, 7, v0")
    a("v_mul_u32_u24 v4, 272, v2")
    a("v_lshl_add_u32 v4, v3, 5, v4")
    a(f"v_add_u32 v5, {2*RING}, v4")
    for w in range(4):
        ad = 4 if w < 2 else 5
        for hh in range(2):
            a(f"ds_read_b128 {v(24 + 8*w + 4*hh, 4)}, v{ad} offset:{(w % 2) * RING + 16*hh}")
    a("v_lshrrev_b32 v6, 3, v2")
    a("v_xor_b32 v6, v6, v3")
    a("v_lshlrev_b32 v6, 4, v6")
    a("v_lshl_add_u32 v6, v2, 7, v6")
    a(f"v_add_u32 v6, {Y2S}, v6")
    a("ds_read_b128 v[56:59], v6")
    srd(a, 24, 14, 2048 * 896)
    X, XN = 64, 72
    for i in range(4):
        a(f"v_lshlrev_b32 v{X+2*i}, 16, v{14+i}")
        a(f"v_and_b32 v{X+2*i+1}, 0xffff0000, v{14+i}")
    a("v_rcp_f32 v21, v19")
    for e in range(8):
        a(f"v_sub_f32 v{XN+e}, v{X+e}, v18")
    for i in range(4):
        a(f"v_cvt_pk_bf16_f32 v{80+i}, v{XN+2*i}, v{XN+2*i+1}")
    for i in range(4):
        a(f"v_lshlrev_b32 v{XN+2*i}, 16, v{80+i}")
        a(f"v_and_b32 v{XN+2*i+1}, 0xffff0000, v{80+i}")
    for e in range(8):
        a(f"v_mul_f32 v{84+e}, v{XN+e}, v21")
    for e in range(8):
        a(f"v_fma_f32 v{XN+e}, -v{84+e}, v19, v{XN+e}")
    for e in range(8):
        a(f"v_fma_f32 v{XN+e}, v{XN+e}, v21, v{84+e}")
    for i in range(4):
        a(f"v_cvt_pk_bf16_f32 v{80+i}, v{XN+2*i}, v{XN+2*i+1}")
    for i in range(4):
        a(f"v_lshlrev_b32 v{XN+2*i}, 16, v{80+i}")
        a(f"v_and_b32 v{XN+2*i+1}, 0xffff0000, v{80+i}")
    a("s_waitcnt lgkmcnt(0)")
    for i in range(0, 8, 2):
        a(f"v_pk_add_f32 {v(24+i,2)}, {v(24+i,2)}, {v(32+i,2)}")
        a(f"v_pk_add_f32 {v(40+i,2)}, {v(40+i,2)}, {v(48+i,2)}")
    for i in range(0, 8, 2):
        a(f"v_pk_add_f32 {v(24+i,2)}, {v(24+i,2)}, {v(40+i,2)}")
    for i in range(4):
        a(f"v_cvt_pk_bf16_f32 v{80+i}, v{24+2*i}, v{24+2*i+1}")
    for i in range(4):
        a(f"v_lshlrev_b32 v{24+2*i}, 16, v{80+i}")
        a(f"v_and_b32 v{24+2*i+1}, 0xffff0000, v{80+i}")
    for e in range(8):
        a(f"v_mul_f32 v{32+e}, 0xbfb8aa3b, v{24+e}")
    for e in range(8):
        a(f"v_exp_f32 v{32+e}, v{32+e}")
    for e in range(8):
        a(f"v_add_f32 v{32+e}, 1.0, v{32+e}")
    for e in range(8):
        a(f"v_rcp_f32 v{32+e}, v{32+e}")
    for e in range(8):
        a(f"v_mul_f32 v{24+e}, v{24+e}, v{32+e}")
    for i in range(4):
        a(f"v_cvt_pk_bf16_f32 v{80+i}, v{24+2*i}, v{24+2*i+1}")
    for i in range(4):
        a(f"v_lshlrev_b32 v{24+2*i}, 16, v{80+i}")
        a(f"v_and_b32 v{24+2*i+1}, 0xffff0000, v{80+i}")
    for i in range(4):
        a(f"v_lshlrev_b32 v{32+2*i}, 16, v{56+i}")
        a(f"v_and_b32 v{32+2*i+1}, 0xffff0000, v{56+i}")
    for i in range(0, 8, 2):
        a(f"v_pk_mul_f32 {v(32+i,2)}, {v(32+i,2)}, {v(XN+i,2)}")
    for i in range(4):
        a(f"v_cvt_pk_bf16_f32 v{80+i}, v{32+2*i}, v{32+2*i+1}")
    for i in range(4):
        a(f"v_lshlrev_b32 v{32+2*i}, 16, v{80+i}")
        a(f"v_and_b32 v{32+2*i+1}, 0xffff0000, v{80+i}")
    for i in range(0, 8, 2):
        a(f"v_pk_mul_f32 {v(32+i,2)}, {v(32+i,2)}, {v(24+i,2)}")
    for i in range(4):
        a(f"v_cvt_pk_bf16_f32 v{80+i}, v{32+2*i}, v{32+2*i+1}")
    for i in range(4):
        a(f"v_lshlrev_b32 v{32+2*i}, 16, v{80+i}")
        a(f"v_and_b32 v{32+2*i+1}, 0xffff0000, v{80+i}")
    for i in range(0, 8, 2):
        a(f"v_pk_add_f32 {v(32+i,2)}, {v(32+i,2)}, {v(X+i,2)}")
    for i in range(4):
        a(f"v_cvt_pk_bf16_f32 v{80+i}, v{32+2*i}, v{32+2*i+1}")
    a("buffer_store_dwordx4 v[80:83], v20, s[24:27], 0 offen")
    a.lab("kb_end")
    a("s_endpgm")
```

```python
import sys

NAME = "recurrent_scan__ssm_conv_h3__glu_gated_reglu__prompt"
H_OFF = 0
UREV_OFF = 0x700000
STATS_OFF = 0x8C0000
Y2_OFF = 0x900000
WS_REC = 0x1000000

class A:
    def __init__(self):
        self.L = []
        self.n = 0
    def __call__(self, s):
        self.L.append("    " + s)
    def lab(self, s):
        self.L.append(s + ":")
    def new(self, p="L"):
        self.n += 1
        return f"{p}_{self.n}"
    def c(self, s):
        self.L.append("    ; " + s)

def v(a, n=1):
    return f"v{a}" if n == 1 else f"v[{a}:{a+n-1}]"
def s(a, n=1):
    return f"s{a}" if n == 1 else f"s[{a}:{a+n-1}]"

def srd(a, dst, lo, nrec):
    a(f"s_mov_b32 s{dst}, s{lo}")
    a(f"s_and_b32 s{dst+1}, s{lo+1}, 0xffff")
    a(f"s_mov_b32 s{dst+2}, {nrec}")
    a(f"s_mov_b32 s{dst+3}, 0x00020000")

def bf16r(a, dst, src):
    a(f"v_cvt_pk_bf16_f32 v{dst}, v{src}, v{src}")
    a(f"v_lshlrev_b32 v{dst}, 16, v{dst}")

STAGE = 24576
NST = 6
A_STATS = NST * STAGE
A_CS = A_STATS + 2048
A_LDS = A_CS + 1024

def kernel_a(a):
    a.lab("ka_kernel")
    a("s_cmp_ge_u32 s2, 256")
    a("s_cbranch_scc1 ka_end")
    a("s_load_dwordx8 s[4:11], s[0:1], 0")
    a("s_load_dwordx4 s[12:15], s[0:1], 56")
    a("s_load_dwordx2 s[16:17], s[0:1], 96")
    a("v_and_b32 v1, 63, v0")
    a("v_lshrrev_b32 v2, 6, v0")
    a("s_nop 0")
    a("v_readfirstlane_b32 s32, v2")
    a("s_cmp_ge_u32 s2, 224")
    a("s_cbranch_scc1 ka_prep")
    a("s_and_b32 s40, s2, 7")
    a("s_lshr_b32 s41, s2, 3")
    a("s_mul_i32 s42, s41, 37")
    a("s_lshr_b32 s42, s42, 8")
    a("s_mul_i32 s43, s42, 7")
    a("s_sub_u32 s43, s41, s43")
    a("s_lshr_b32 s44, s40, 2")
    a("s_lshl_b32 s44, s44, 2")
    a("s_add_u32 s33, s44, s42")
    a("s_and_b32 s44, s40, 3")
    a("s_mul_i32 s44, s44, 7")
    a("s_add_u32 s34, s44, s43")
    a("s_lshr_b32 s35, s32, 1")
    a("s_and_b32 s36, s32, 1")
    a("s_lshl_b32 s37, s32, 11")
    a("s_lshl_b32 s38, s32, 10")
    a("s_add_u32 s38, s38, 16384")
    a("s_lshl_b32 s44, s33, 8")
    a("s_lshl_b32 s45, s32, 5")
    a("s_add_u32 s44, s44, s45")
    a("v_lshrrev_b32 v2, 2, v1")
    a("v_add_u32 v2, s44, v2")
    a("s_movk_i32 s45, 896")
    a("v_mul_lo_u32 v2, v2, s45")
    a("v_and_b32 v3, 3, v1")
    a("v_bfe_u32 v4, v1, 4, 2")
    a("v_xor_b32 v3, v3, v4")
    a("v_lshl_add_u32 v10, v3, 4, v2")
    a("s_and_b32 s44, s32, 3")
    a("s_lshl_b32 s44, s44, 3")
    a("v_lshrrev_b32 v2, 3, v1")
    a("v_add_u32 v2, s44, v2")
    a("s_movk_i32 s45, 3584")
    a("v_mul_lo_u32 v2, v2, s45")
    a("s_lshl_b32 s44, s34, 7")
    a("v_add_u32 v2, s44, v2")
    a("v_bfe_u32 v4, v1, 4, 1")
    a("v_lshlrev_b32 v4, 1, v4")
    a("s_lshr_b32 s44, s32, 2")
    a("s_lshl_b32 s44, s44, 2")
    a("v_or_b32 v4, s44, v4")
    a("v_and_b32 v3, 7, v1")
    a("v_xor_b32 v3, v3, v4")
    a("v_lshl_add_u32 v11, v3, 4, v2")
    a("s_waitcnt lgkmcnt(0)")
    srd(a, 20, 4, 2048 * 896)
    a("s_cmp_ge_u32 s32, 4")
    a("s_cselect_b32 s24, s14, s12")
    a("s_cselect_b32 s25, s15, s13")
    a("s_and_b32 s25, s25, 0xffff")
    a(f"s_mov_b32 s26, {448 * 3584}")
    a("s_mov_b32 s27, 0x00020000")
    srd(a, 28, 16, WS_REC)

    def dma(c):
        st = c % NST
        a(f"s_add_u32 m0, s37, {st * STAGE}")
        a(f"s_movk_i32 s46, {64 * c}")
        a("buffer_load_dwordx4 v10, s[20:23], s46 offen lds")
        a(f"s_add_u32 m0, s37, {st * STAGE + 1024}")
        a(f"s_movk_i32 s46, {64 * c + 14336}")
        a("buffer_load_dwordx4 v10, s[20:23], s46 offen lds")
        a(f"s_add_u32 m0, s38, {st * STAGE}")
        a(f"s_mov_b32 s46, {c * 32 * 3584}")
        a("buffer_load_dwordx4 v11, s[24:27], s46 offen lds")
    for c in range(NST):
        dma(c)

    AR = 144
    a("v_and_b32 v2, 31, v1")
    a("v_lshrrev_b32 v3, 5, v1")
    a("v_bfe_u32 v4, v1, 2, 2")
    a("v_xor_b32 v4, v3, v4")
    a("s_lshl_b32 s44, s35, 6")
    a("s_lshl_b32 s45, s36, 5")
    a("s_add_u32 s44, s44, s45")
    a("v_add_u32 v5, s44, v2")
    a("v_lshlrev_b32 v5, 6, v5")
    a(f"v_lshl_add_u32 v{AR+0}, v4, 4, v5")
    a(f"v_xor_b32 v{AR+1}, 0x800, v{AR+0}")
    a(f"v_xor_b32 v{AR+2}, 32, v{AR+0}")
    a(f"v_xor_b32 v{AR+3}, 32, v{AR+1}")
    a("v_bfe_u32 v4, v1, 4, 1")
    a("v_bfe_u32 v5, v1, 2, 2")
    a("v_bfe_u32 v6, v1, 3, 1")
    a("v_lshl_or_b32 v6, v4, 1, v6")
    a("s_lshl_b32 s44, s36, 1")
    a("v_xor_b32 v6, s44, v6")
    a("v_lshl_add_u32 v7, v3, 3, v5")
    a("v_lshlrev_b32 v7, 7, v7")
    a("v_lshl_add_u32 v7, v4, 12, v7")
    a("v_lshl_add_u32 v7, v6, 5, v7")
    a("v_and_b32 v8, 3, v1")
    a("v_lshl_add_u32 v7, v8, 3, v7")
    a(f"v_add_u32 v{AR+4}, 0x4000, v7")
    a(f"v_xor_b32 v{AR+5}, 32, v{AR+4}")
    for p in (1, 2):
        for i in range(6):
            a(f"v_add_u32 v{AR+6*p+i}, {p * 2 * STAGE}, v{AR+i}")
    a("v_mov_b32 v24, 0x3f803f80")
    a("v_mov_b32 v25, 0x3f803f80")
    a("v_mov_b32 v26, 0x3f803f80")
    a("v_mov_b32 v27, 0x3f803f80")
    for r in range(28, 32):
        a(f"v_mov_b32 v{r}, 0")
    for r in range(128, 144):
        a(f"v_mov_b32 v{r}, 0")

    SETS = {0: 32, 1: 48}
    def reads(c, st_):
        base = SETS[st_]
        stg = c % NST
        p, o = stg // 2, (stg % 2) * STAGE
        R = AR + 6 * p
        a(f"ds_read_b128 {v(base,4)}, v{R + 2*st_ + 0} offset:{o}")
        for ct in range(2):
            for half in range(2):
                a(f"ds_read_b64_tr_b16 {v(base + 8 + 4*ct + 2*half, 2)}, v{R + 4 + ct} offset:{o + st_*2048 + half*512}")
        a(f"ds_read_b128 {v(base+4,4)}, v{R + 2*st_ + 1} offset:{o}")

    def mfmas(c, st_):
        base = SETS[st_]
        ks = 2 * c + st_
        first = (ks == 0)
        dots = []
        for i in range(4):
            dots.append(f"v_dot2_f32_bf16 v{28 + (i & 1)}, v{base + i}, v24, v{28 + (i & 1)}")
            dots.append(f"v_dot2_f32_bf16 v{30 + (i & 1)}, v{base + i}, v{base + i}, v{30 + (i & 1)}")
        k = 0
        for slot in range(2):
            for ct in range(2):
                acc = 64 + 16 * (2 * ct + slot)
                cc = "0" if first else v(acc, 16)
                a(f"v_mfma_f32_32x32x16_bf16 {v(acc,16)}, {v(base + 8 + 4*ct, 4)}, {v(base + 4*slot, 4)}, {cc}")
                a(dots[k]); a(dots[k + 1]); k += 2
        kh = ks // 14
        for ct in range(2):
            lb = a.new("ka_cs")
            a(f"s_cmp_lg_u32 s35, {2 * kh + ct}")
            a(f"s_cbranch_scc1 {lb}")
            a(f"v_mfma_f32_32x32x16_bf16 v[128:143], {v(base + 8 + 4*ct, 4)}, v[24:27], v[128:143]")
            a.lab(lb)

    a("s_waitcnt vmcnt(15)")
    a("s_barrier")
    reads(0, 0)
    for c in range(14):
        reads(c, 1)
        a("s_waitcnt lgkmcnt(6)")
        mfmas(c, 0)
        if c < 13:
            n = 3 * (min(13, c + 5) - (c + 1))
            a(f"s_waitcnt vmcnt({n}) lgkmcnt(0)")
            a("s_barrier")
            if c + 6 <= 13:
                dma(c + 6)
            reads(c + 1, 0)
        else:
            a("s_waitcnt lgkmcnt(0)")
        mfmas(c, 1)

    a.c("stats")
    a("v_add_f32 v28, v28, v29")
    a("v_add_f32 v30, v30, v31")
    a("v_mov_b32 v29, v28")
    a("v_mov_b32 v31, v30")
    a("s_nop 1")
    a("v_permlane32_swap_b32 v28, v29")
    a("v_permlane32_swap_b32 v30, v31")
    a("s_nop 1")
    a("v_add_f32 v28, v28, v29")
    a("v_add_f32 v30, v30, v31")
    a("v_mul_f32 v28, 0x3b124925, v28")
    a("v_mul_f32 v30, 0x3b124925, v30")
    a("v_fma_f32 v30, -v28, v28, v30")
    a("v_max_f32 v30, 0, v30")
    bf16r(a, 32, 28)
    bf16r(a, 30, 30)
    a("v_add_f32 v30, 0x3727c5ac, v30")
    bf16r(a, 30, 30)
    a("v_sqrt_f32 v30, v30")
    a("s_nop 0")
    bf16r(a, 35, 30)
    a("v_rcp_f32 v33, v35")
    a("v_mov_b32 v34, v32")
    a("v_and_b32 v2, 31, v1")
    a("s_lshl_b32 s44, s35, 6")
    a("s_lshl_b32 s45, s36, 5")
    a("s_add_u32 s44, s44, s45")
    a("v_add_u32 v2, s44, v2")
    a("v_lshlrev_b32 v3, 3, v2")
    a(f"v_add_u32 v3, {A_STATS}, v3")
    a("ds_write_b64 v3, v[32:33]")
    lb = a.new("ka_nost")
    a("s_cmp_lg_u32 s34, 0")
    a(f"s_cbranch_scc1 {lb}")
    a("s_lshl_b32 s44, s33, 11")
    a(f"s_add_u32 s44, s44, {STATS_OFF}")
    a("v_lshlrev_b32 v4, 3, v2")
    a("buffer_store_dwordx2 v[34:35], v4, s[28:31], s44 offen")
    a.lab(lb)
    a("s_lshr_b32 s44, s35, 1")
    a("s_lshl_b32 s44, s44, 1")
    a("s_add_u32 s44, s44, s36")
    a("s_lshl_b32 s44, s44, 1")
    a("s_and_b32 s45, s35, 1")
    a("s_add_u32 s44, s44, s45")
    a("s_lshl_b32 s44, s44, 7")
    a(f"s_add_u32 s44, s44, {A_CS}")
    a("v_lshrrev_b32 v5, 5, v1")
    a("v_lshlrev_b32 v5, 4, v5")
    a("v_add_u32 v6, s44, v5")
    a("s_mov_b32 s44, 1")
    a("s_mov_b32 s45, 1")
    a("s_nop 7")
    a("s_mov_b64 exec, s[44:45]")
    for q in range(4):
        a(f"ds_write_b128 v6, {v(128 + 4*q, 4)} offset:{32*q}")
    a("s_mov_b64 exec, -1")
    a("s_waitcnt lgkmcnt(0)")
    a("s_barrier")
    a("v_xor_b32 v3, 256, v3")
    a("ds_read_b64 v[36:37], v3")
    a("s_lshl_b32 s44, s36, 8")
    a(f"s_add_u32 s44, s44, {A_CS}")
    a("v_add_u32 v6, s44, v5")
    CSR = 160
    for ct in range(2):
        for kh in range(2):
            for q in range(4):
                a(f"ds_read_b128 {v(CSR + 32*ct + 16*kh + 4*q, 4)}, v6 offset:{kh*512 + ct*128 + 32*q}")
    a("s_waitcnt lgkmcnt(0)")
    for ct in range(2):
        for i in range(0, 16, 2):
            r = CSR + 32 * ct + i
            a(f"v_pk_add_f32 {v(r,2)}, {v(r,2)}, {v(r+16,2)}")
    a("v_xor_b32 v32, 0x80000000, v32")
    a("v_xor_b32 v36, 0x80000000, v36")
    a("v_lshlrev_b32 v2, 4, v1")
    for slot in range(2):
        mr = 32 if slot == 0 else 36
        a("s_lshl_b32 s44, s33, 3")
        a("s_lshl_b32 s45, s35, 1")
        a("s_add_u32 s44, s44, s45")
        a(f"s_xor_b32 s45, s36, {slot}")
        a("s_add_u32 s44, s44, s45")
        a("s_mul_i32 s44, s44, 224")
        a("s_lshl_b32 s45, s34, 3")
        a("s_add_u32 s44, s44, s45")
        a("s_lshl_b32 s45, s36, 2")
        a("s_add_u32 s44, s44, s45")
        a("s_lshl_b32 s44, s44, 9")
        for ct in range(2):
            acc = 64 + 16 * (2 * ct + slot)
            cs = CSR + 32 * ct
            for i in range(0, 16, 2):
                a(f"v_pk_fma_f32 {v(acc+i,2)}, {v(mr,2)}, {v(cs+i,2)}, {v(acc+i,2)} op_sel:[0,0,0] op_sel_hi:[0,1,1]")
            for i in range(0, 16, 2):
                a(f"v_pk_mul_f32 {v(acc+i,2)}, {v(mr,2)}, {v(acc+i,2)} op_sel:[1,0] op_sel_hi:[1,1]")
            T = 40
            for i in range(4):
                a(f"v_cvt_pk_bf16_f32 v{T+i}, v{acc+2*i}, v{acc+2*i+1}")
                a(f"v_cvt_pk_bf16_f32 v{T+4+i}, v{acc+8+2*i}, v{acc+8+2*i+1}")
            for i in range(4):
                a(f"v_pk_max_i16 v{T+i}, v{T+i}, 0")
            for i in range(4):
                a(f"v_lshlrev_b32 v{acc+2*i}, 16, v{T+i}")
                a(f"v_and_b32 v{acc+2*i+1}, 0xffff0000, v{T+i}")
                a(f"v_lshlrev_b32 v{acc+8+2*i}, 16, v{T+4+i}")
                a(f"v_and_b32 v{acc+8+2*i+1}, 0xffff0000, v{T+4+i}")
            for i in range(4):
                a(f"v_pk_mul_f32 {v(acc+2*i,2)}, {v(acc+2*i,2)}, {v(acc+8+2*i,2)}")
            O = 48 + 4 * (2 * slot + ct)
            for i in range(4):
                a(f"v_cvt_pk_bf16_f32 v{O+i}, v{acc+2*i}, v{acc+2*i+1}")
            a(f"buffer_store_dwordx4 {v(O,4)}, v2, s[28:31], s44 offen offset:{ct*1024}")
    a("s_endpgm")

    a.lab("ka_prep")
    a("s_sub_u32 s33, s2, 224")
    a("s_waitcnt lgkmcnt(0)")
    srd(a, 20, 6, 2048 * 896)
    srd(a, 24, 8, 2048 * 896)
    srd(a, 28, 16, WS_REC)
    srd(a, 40, 10, 448 * 8)
    a("s_cmp_eq_u32 s32, 7")
    a("s_cbranch_scc1 ka_prep_bar")
    a("s_movk_i32 s44, 1171")
    a("v_mul_lo_u32 v2, v0, s44")
    a("v_lshrrev_b32 v2, 16, v2")
    a("v_mul_u32_u24 v3, 56, v2")
    a("v_sub_u32 v3, v0, v3")
    a("s_lshl_b32 s44, s33, 6")
    a("v_lshl_add_u32 v4, v2, 3, s44")
    a("s_movk_i32 s45, 896")
    a("v_mul_lo_u32 v4, v4, s45")
    a("v_lshl_add_u32 v11, v3, 4, v4")
    a("v_subrev_u32 v10, 2688, v11")
    a("v_add_u32 v12, 3584, v11")
    a("v_lshlrev_b32 v13, 6, v3")
    KR, VR, SW, WF = 32, 76, 108, 124
    for i in range(4):
        a(f"buffer_load_dwordx4 {v(SW+4*i,4)}, v13, s[40:43], 0 offen offset:{16*i}")
    for r in range(11):
        if r < 3: ad, off = 10, r * 896
        elif r < 7: ad, off = 11, (r - 3) * 896
        else: ad, off = 12, (r - 7) * 896
        a(f"buffer_load_dwordx4 {v(KR+4*r,4)}, v{ad}, s[20:23], 0 offen offset:{off}")
    for r in range(8):
        ad, off = (11, r * 896) if r < 4 else (12, (r - 4) * 896)
        a(f"buffer_load_dwordx4 {v(VR+4*r,4)}, v{ad}, s[24:27], 0 offen offset:{off}")
    a("v_sub_u32 v5, 7, v2")
    a("v_and_b32 v6, 7, v3")
    a("v_xor_b32 v5, v5, v6")
    a("v_lshlrev_b32 v5, 4, v5")
    a("v_lshl_add_u32 v14, v3, 10, v5")
    a("s_waitcnt vmcnt(19)")
    for ch in range(8):
        for tap in range(4):
            src = SW + 2 * ch + (tap >> 1)
            if tap & 1: a(f"v_and_b32 v{WF + tap*8 + ch}, 0xffff0000, v{src}")
            else: a(f"v_lshlrev_b32 v{WF + tap*8 + ch}, 16, v{src}")
    a("s_waitcnt vmcnt(0)")
    KF, VF, T, RES, OUT = 156, 178, 194, 210, 226
    for p in range(4):
        for r in range(11):
            a(f"v_lshlrev_b32 v{KF+2*r}, 16, v{KR+4*r+p}")
            a(f"v_and_b32 v{KF+2*r+1}, 0xffff0000, v{KR+4*r+p}")
        for r in range(8):
            a(f"v_lshlrev_b32 v{VF+2*r}, 16, v{VR+4*r+p}")
            a(f"v_and_b32 v{VF+2*r+1}, 0xffff0000, v{VR+4*r+p}")
        for i0 in range(0, 8, 2):
            toks = (i0, i0 + 1)
            def TT(n, k): return T + 8 * n + k
            for n, i in enumerate(toks):
                a(f"v_pk_mul_f32 {v(TT(n,0),2)}, {v(KF+2*i,2)}, {v(WF+3*8+2*p,2)}")
            for n, i in enumerate(toks):
                a(f"v_cvt_pk_bf16_f32 v{TT(n,4)}, v{TT(n,0)}, v{TT(n,1)}")
            for n, i in enumerate(toks):
                a(f"v_lshlrev_b32 v{TT(n,0)}, 16, v{TT(n,4)}")
                a(f"v_and_b32 v{TT(n,1)}, 0xffff0000, v{TT(n,4)}")
            for tap in (2, 1, 0):
                for n, i in enumerate(toks):
                    a(f"v_pk_mul_f32 {v(TT(n,2),2)}, {v(KF+2*(i+3-tap),2)}, {v(WF+tap*8+2*p,2)}")
                for n, i in enumerate(toks):
                    a(f"v_cvt_pk_bf16_f32 v{TT(n,4)}, v{TT(n,2)}, v{TT(n,3)}")
                for n, i in enumerate(toks):
                    a(f"v_lshlrev_b32 v{TT(n,2)}, 16, v{TT(n,4)}")
                    a(f"v_and_b32 v{TT(n,3)}, 0xffff0000, v{TT(n,4)}")
                for n, i in enumerate(toks):
                    a(f"v_pk_add_f32 {v(TT(n,0),2)}, {v(TT(n,0),2)}, {v(TT(n,2),2)}")
                for n, i in enumerate(toks):
                    a(f"v_cvt_pk_bf16_f32 v{TT(n,4)}, v{TT(n,0)}, v{TT(n,1)}")
                for n, i in enumerate(toks):
                    a(f"v_lshlrev_b32 v{TT(n,0)}, 16, v{TT(n,4)}")
                    a(f"v_and_b32 v{TT(n,1)}, 0xffff0000, v{TT(n,4)}")
            for n, i in enumerate(toks):
                a(f"v_pk_mul_f32 {v(RES+2*i,2)}, {v(TT(n,0),2)}, {v(VF+2*i,2)}")
        for e in range(2):
            for d in range(4):
                a(f"v_cvt_pk_bf16_f32 v{OUT+4*e+d}, v{RES+2*(7-2*d)+e}, v{RES+2*(6-2*d)+e}")
        for e in range(2):
            a(f"ds_write_b128 v14, {v(OUT+4*e,4)} offset:{(2*p+e)*128}")
    a.lab("ka_prep_bar")
    a("s_waitcnt lgkmcnt(0)")
    a("s_barrier")
    a("v_lshrrev_b32 v2, 3, v0")
    a("v_and_b32 v3, 7, v0")
    a("v_xor_b32 v4, s32, v3")
    a("v_lshlrev_b32 v4, 4, v4")
    a("v_lshl_add_u32 v4, v2, 7, v4")
    a("v_lshlrev_b32 v5, 4, v3")
    a("v_lshl_add_u32 v5, v2, 12, v5")
    for it in range(7):
        a(f"ds_read_b128 {v(32+4*it,4)}, v4 offset:{it*8192}")
    a("s_lshl_b32 s44, s33, 7")
    a(f"s_sub_u32 s44, {UREV_OFF + 1984*2}, s44")
    for it in range(7):
        a(f"s_waitcnt lgkmcnt({6-it})")
        a(f"buffer_store_dwordx4 {v(32+4*it,4)}, v5, s[28:31], s44 offen")
        a(f"s_add_u32 s44, s44, {64*4096}")
    a.lab("ka_end")
    a("s_endpgm")

HDR = """; Kernarg layout for this problem (104 bytes, ptrs only, base s[0:1]):
"""

def desc(name, vg, sg=102):
    acc = (vg + 3) // 4 * 4
    return f""".amdhsa_kernel {name}
  .amdhsa_next_free_vgpr {vg}
  .amdhsa_next_free_sgpr {sg}
  .amdhsa_accum_offset {acc}
  .amdhsa_group_segment_fixed_size 0
  .amdhsa_kernarg_size 104
  .amdhsa_user_sgpr_count 2
  .amdhsa_user_sgpr_kernarg_segment_ptr 1
  .amdhsa_system_sgpr_workgroup_id_x 1
.end_amdhsa_kernel
"""

def main():
    out = sys.argv[1] if len(sys.argv) > 1 else f"cdna_kernels/{NAME}.s"
    kernels = [("ka_kernel", kernel_a, 256, 512, A_LDS, 256)]
    try:
        from gen_b import kernel_b, B_LDS, B_GRID
        kernels.append(("kb_kernel", kernel_b, B_GRID, 512, B_LDS, 256))
    except ImportError:
        pass
    txt = HDR
    for (n, f, g, b, lds, vg) in kernels:
        txt += f"; @launch kernel={n} grid=({g},1,1) block=({b},1,1) lds={lds}\n"
    txt += '.amdgcn_target "amdgcn-amd-amdhsa--gfx950"\n.text\n'
    for (n, f, g, b, lds, vg) in kernels:
        a = A()
        f(a)
        txt += f".globl {n}\n.p2align 8\n.type {n},@function\n" + "\n".join(a.L) + "\n"
    txt += '.section .rodata,"a"\n'
    for (n, f, g, b, lds, vg) in kernels:
        txt += ".p2align 6\n" + desc(n, vg)
    open(out, "w").write(txt)

if __name__ == "__main__":
    main()
```

```python
from gen import *

B_GRID = 224
RING_D = 12
RING = RING_D * 2048
CONV0 = 4 * RING
CPITCH = 4160
CONV_CH = 4 * CPITCH + 5120
Y2S = CONV0 + 2 * CONV_CH
CNT = Y2S + 8192
B_LDS = CNT + 64

B1 = int(os.environ.get("B1", "7"))
B2 = int(os.environ.get("B2", "13"))
FSTRIDE = 4352

def kernel_b(a):
    a.lab("kb_kernel")
    a("s_cmp_ge_u32 s2, 224")
    a("s_cbranch_scc1 kb_end")
    a.stamp(0, True)
    a.stamp(1)
    a("s_load_dwordx2 s[4:5], s[0:1], 0")
    a("s_load_dwordx4 s[8:11], s[0:1], 32")
    a("s_load_dwordx8 s[12:19], s[0:1], 72")
    a("v_and_b32 v1, 63, v0")
    a("v_lshrrev_b32 v2, 6, v0")
    a("s_nop 0")
    a("v_readfirstlane_b32 s32, v2")
    if os.environ.get("SWAP", "1") == "1":
        a("s_xor_b32 s32, s32, 4")
    a("s_and_b32 s40, s2, 7")
    a("s_lshr_b32 s41, s2, 3")
    a("s_mul_i32 s42, s41, 37")
    a("s_lshr_b32 s42, s42, 8")
    a("s_mul_i32 s43, s42, 7")
    a("s_sub_u32 s34, s41, s43")
    a("s_lshl_b32 s44, s40, 2")
    a("s_add_u32 s33, s44, s42")
    a("s_lshl_b32 s44, s33, 6")
    a("v_lshrrev_b32 v2, 3, v0")
    a("v_add_u32 v3, s44, v2")
    a("s_movk_i32 s45, 896")
    a("v_mul_lo_u32 v4, v3, s45")
    a("v_and_b32 v5, 7, v0")
    a("v_lshl_add_u32 v4, v5, 4, v4")
    a("s_lshl_b32 s44, s34, 7")
    a("v_add_u32 v20, s44, v4")
    a("v_lshlrev_b32 v3, 3, v3")
    a("s_waitcnt lgkmcnt(0)")
    srd(a, 20, 4, 2048 * 896)
    srd(a, 28, 18, WS_REC)
    a("buffer_load_dwordx4 v[14:17], v20, s[20:23], 0 offen")
    a(f"s_mov_b32 s44, {STATS_OFF}")
    a("buffer_load_dwordx2 v[18:19], v3, s[28:31], s44 offen")
    a("s_cmp_ge_u32 s32, 4")
    a("s_cbranch_scc1 kb_conv")

    srd(a, 24, 12, 1792 * 896)
    a("v_lshlrev_b32 v10, 4, v1")
    a("v_lshrrev_b32 v2, 3, v1")
    a("v_mul_u32_u24 v2, 896, v2")
    a("v_bfe_u32 v3, v1, 4, 1")
    a("v_lshlrev_b32 v3, 2, v3")
    a("v_and_b32 v4, 7, v1")
    a("v_xor_b32 v3, v3, v4")
    a("v_lshl_add_u32 v2, v3, 4, v2")
    a("s_lshl_b32 s44, s34, 7")
    a("v_add_u32 v11, s44, v2")
    a(f"s_mul_i32 s36, s32, {RING}")
    a(f"s_mul_i32 s37, s32, {28 * 16 * 896}")
    a("s_mul_i32 s38, s33, 448")
    a("s_mul_i32 s44, s32, 56")
    a("s_add_u32 s38, s38, s44")
    a("s_lshl_b32 s38, s38, 9")
    a(f"s_add_u32 s39, s38, {224 * 512}")
    def issue(i):
        sl = i % RING_D
        for hh in range(2):
            a(f"s_add_u32 m0, s36, {sl * 2048 + hh * 1024}")
            a(f"s_add_u32 s46, s37, {(16 * i + 8 * hh) * 896}")
            a("buffer_load_dwordx4 v11, s[24:27], s46 offen lds")
        for tt in range(2):
            a(f"s_add_u32 s46, s{38 + tt}, {i * 1024}")
            a(f"buffer_load_dwordx4 {v(128 + 8*sl + 4*tt, 4)}, v10, s[28:31], s46 offen")
    for i in range(RING_D):
        issue(i)
    a("v_bfe_u32 v2, v1, 5, 1")
    a("v_bfe_u32 v3, v1, 2, 2")
    a("v_lshl_add_u32 v2, v2, 2, v3")
    a("v_lshlrev_b32 v2, 7, v2")
    a("v_bfe_u32 v3, v1, 4, 1")
    a("v_and_b32 v4, 3, v1")
    a("v_lshlrev_b32 v4, 3, v4")
    a("v_lshl_or_b32 v4, v3, 5, v4")
    a("v_bfe_u32 v3, v1, 3, 1")
    a("v_lshl_or_b32 v4, v3, 6, v4")
    a("v_add3_u32 v12, v2, v4, s36")
    a("v_xor_b32 v13, 64, v12")
    def treads(i):
        sl = i % RING_D
        base = 24 + 8 * (i & 1)
        for dt in range(2):
            for half in range(2):
                a(f"ds_read_b64_tr_b16 {v(base + 4*dt + 2*half, 2)}, v{12 + dt} offset:{sl*2048 + half*1024}")
    a.stamp(2)
    a(f"s_waitcnt vmcnt({2 + 4 * (RING_D - 1)})")
    a.stamp(3)
    treads(0)
    for i in range(28):
        if i < 27:
            n = 2 + 4 * (min(27, i + RING_D - 1) - (i + 1))
            a(f"s_waitcnt vmcnt({n})")
            treads(i + 1)
            a("s_waitcnt lgkmcnt(4)")
        else:
            a("s_waitcnt vmcnt(0) lgkmcnt(0)")
        sl = i % RING_D
        base = 24 + 8 * (i & 1)
        for tt in range(2):
            for dt in range(2):
                acc = 64 + 16 * (2 * dt + tt)
                cc = "0" if i == 0 else v(acc, 16)
                a(f"v_mfma_f32_32x32x16_bf16 {v(acc,16)}, {v(base + 4*dt, 4)}, {v(128 + 8*sl + 4*tt, 4)}, {cc}")
        if i + RING_D < 28:
            issue(i + RING_D)
        if i in (B1, B2): a("s_barrier")
        if i % 4 == 3: a.stamp(4 + i // 4)
    a("v_and_b32 v2, 31, v1")
    a("v_mul_u32_u24 v2, 272, v2")
    a("v_lshrrev_b32 v3, 5, v1")
    a("v_lshl_add_u32 v2, v3, 4, v2")
    a("v_add_u32 v2, s36, v2")
    a("s_nop 7")
    a("s_nop 3")
    for tt in range(2):
        for dt in range(2):
            acc = 64 + 16 * (2 * dt + tt)
            for q in range(4):
                a(f"ds_write_b128 v2, {v(acc + 4*q, 4)} offset:{tt*32*272 + dt*128 + q*32}")
    a("s_branch kb_final")

    a.lab("kb_conv")
    if os.environ.get("CPRIO", "1") == "1":
        a("s_setprio 3")
    a("s_sub_u32 s35, s32, 4")
    a("s_lshr_b32 s36, s35, 1")
    a("s_and_b32 s35, s35, 1")
    a("s_lshl_b32 s37, s2, 1")
    a("s_add_u32 s37, s37, s36")
    a("s_lshl_b32 s44, s2, 2")
    a("s_load_dword s47, s[10:11], s44")
    a("s_lshl_b32 s44, s37, 12")
    a("s_add_u32 s24, s8, s44")
    a("s_addc_u32 s25, s9, 0")
    a("s_and_b32 s25, s25, 0xffff")
    a("s_movk_i32 s26, 4096")
    a("s_mov_b32 s27, 0x00020000")
    a(f"s_add_u32 s45, s44, {UREV_OFF}")
    a("s_add_u32 s48, s18, s45")
    a("s_addc_u32 s49, s19, 0")
    a("s_and_b32 s49, s49, 0xffff")
    a("s_movk_i32 s50, 4096")
    a("s_mov_b32 s51, 0x00020000")
    a(f"s_add_u32 s52, s44, {Y2_OFF}")
    a(f"s_mul_i32 s38, s36, {CONV_CH}")
    a(f"s_add_u32 s38, s38, {CONV0}")
    a(f"s_add_u32 s39, s38, {4 * CPITCH}")
    a("v_lshlrev_b32 v10, 4, v1")
    a("v_subrev_u32 v11, 32, v10")
    a("v_subrev_u32 v12, 16, v10")
    a("v_add_u32 v13, 992, v10")
    BD = 192
    roff = [None, 0, 1024, 2048, 2080]
    a(f"buffer_load_dwordx4 {v(BD,4)}, v11, s[24:27], 0 offen")
    a(f"buffer_load_dwordx2 {v(BD+4,2)}, v12, s[24:27], 0 offen")
    for r in range(1, 5):
        a(f"buffer_load_dwordx4 {v(BD+8*r,4)}, v13, s[24:27], 0 offen offset:{roff[r]}")
        a(f"buffer_load_dwordx2 {v(BD+8*r+4,2)}, v13, s[24:27], 0 offen offset:{roff[r]+16}")
    for r in range(5):
        a(f"s_add_u32 m0, s39, {r * 1024}")
        a(f"s_movk_i32 s46, {r * 1024}")
        a("buffer_load_dwordx4 v10, s[48:51], s46 offen lds")
    a("s_waitcnt lgkmcnt(0)")
    a.stamp(2)
    a("v_add_u32 v21, s38, v10")
    a("v_and_b32 v2, 15, v1")
    a("v_lshrrev_b32 v3, 4, v1")
    a("v_lshl_add_u32 v4, v3, 3, v2")
    a("v_add_u32 v4, 1, v4")
    a("v_and_b32 v5, 3, v4")
    a(f"v_mul_u32_u24 v5, {CPITCH}, v5")
    a("v_lshrrev_b32 v4, 2, v4")
    a("v_lshl_add_u32 v5, v4, 3, v5")
    a("v_add_u32 v22, s38, v5")
    a("v_lshlrev_b32 v4, 5, v2")
    a("v_sub_u32 v4, 480, v4")
    a("v_lshl_add_u32 v4, v3, 4, v4")
    a("v_add_u32 v23, s39, v4")
    a("v_lshlrev_b32 v4, 5, v2")
    a("v_lshl_add_u32 v4, v3, 3, v4")
    a("v_sub_u32 v5, 504, v4")
    a("v_add_u32 v9, s39, v5")
    a("v_mov_b32 v8, v4")
    woff = [0, 1024, 2048, 3072, 3104]
    E = 232
    for r in range(5):
        D = BD + 8 * r
        a(f"s_waitcnt vmcnt({5 + 2 * (4 - r)})")
        a(f"ds_write_b128 v21, {v(D,4)} offset:{woff[r]}")
        for p in range(4):
            a(f"v_alignbit_b32 v{E+p}, v{D+p+1}, v{D+p}, 16")
        for p in range(4):
            a(f"v_mov_b32 v{E+4+p}, v{D+p+1}")
        for p in range(4):
            a(f"v_alignbit_b32 v{E+8+p}, v{D+p+2}, v{D+p+1}, 16")
        for sidx in range(3):
            a(f"ds_write_b128 v21, {v(E+4*sidx,4)} offset:{woff[r] + (sidx+1)*CPITCH}")
        a("s_waitcnt lgkmcnt(0)")
    a("s_waitcnt vmcnt(0) lgkmcnt(0)")
    a.stamp(3)
    a("s_cmp_eq_u32 s35, 1")
    a("s_cbranch_scc1 kb_conv1")

    def conv_body(tiles):
        amax = max(tiles)
        SET = [(64, 96), (128, 160)]
        def rd(c0i):
            Tb, Hb = SET[c0i & 1]
            L = []
            for k in range(amax + 1):
                L.append(f"ds_read_b64 {v(Tb+4*k,2)}, v22 offset:{64*c0i + 512*k}")
                L.append(f"ds_read_b64 {v(Tb+4*k+2,2)}, v22 offset:{64*c0i + 512*k + 8}")
                L.append(f"ds_read_b128 {v(Hb+4*k,4)}, v23 offset:{64*c0i + 512*(7-k)}")
            return L
        for x in rd(0): a(x)
        for c0i in range(8):
            Tb, Hb = SET[c0i & 1]
            a("s_waitcnt lgkmcnt(0)")
            nxt = rd(c0i + 1) if c0i < 7 else []
            mf = []
            lists = [[(bi, aa, b - aa) for aa in range(b + 1)] for bi, b in enumerate(tiles)]
            while any(lists):
                for l_ in lists:
                    if l_: mf.append(l_.pop(0))
            seen = set()
            for n, (bi, aa, m) in enumerate(mf):
                acc = 24 + 4 * bi
                cc = "0" if (c0i == 0 and bi not in seen) else v(acc, 4)
                seen.add(bi)
                a(f"v_mfma_f32_16x16x32_bf16 {v(acc,4)}, {v(Tb+4*aa,4)}, {v(Hb+4*m,4)}, {cc}")
                for _ in range(2):
                    if nxt: a(nxt.pop(0))
            assert not nxt
        for bi, b in enumerate(tiles):
            a(f"ds_read_b64 {v(64+2*bi,2)}, v9 offset:{512*(7-b)}")
        a("s_cmp_eq_u32 s36, 0")
        a("s_cbranch_scc1 " + (lbl := a.new("kb_dlo")))
        a("s_and_b32 s47, s47, 0xffff0000")
        a("s_branch " + (lbl2 := a.new("kb_dj")))
        a.lab(lbl)
        a("s_lshl_b32 s47, s47, 16")
        a.lab(lbl2)
        a("s_waitcnt lgkmcnt(0)")
        for bi, b in enumerate(tiles):
            acc = 24 + 4 * bi
            K0, K1 = 64 + 2 * bi, 65 + 2 * bi
            T = 80 + 8 * bi
            a(f"v_and_b32 v{T+0}, 0xffff0000, v{K1}")
            a(f"v_lshlrev_b32 v{T+1}, 16, v{K1}")
            a(f"v_and_b32 v{T+2}, 0xffff0000, v{K0}")
            a(f"v_lshlrev_b32 v{T+3}, 16, v{K0}")
            for e in range(4):
                a(f"v_mul_f32 v{T+e}, s47, v{T+e}")
            a(f"v_cvt_pk_bf16_f32 v{T+4}, v{T+0}, v{T+1}")
            a(f"v_cvt_pk_bf16_f32 v{T+5}, v{T+2}, v{T+3}")
            a(f"v_cvt_pk_bf16_f32 v{T+6}, v{acc+0}, v{acc+1}")
            a(f"v_cvt_pk_bf16_f32 v{T+7}, v{acc+2}, v{acc+3}")
            for hh in range(2):
                a(f"v_lshlrev_b32 v{T+2*hh}, 16, v{T+4+hh}")
                a(f"v_and_b32 v{T+2*hh+1}, 0xffff0000, v{T+4+hh}")
                a(f"v_lshlrev_b32 v{acc+2*hh}, 16, v{T+6+hh}")
                a(f"v_and_b32 v{acc+2*hh+1}, 0xffff0000, v{T+6+hh}")
            for e in range(4):
                a(f"v_add_f32 v{T+e}, v{T+e}, v{acc+e}")
            a(f"v_cvt_pk_bf16_f32 v{T+4}, v{T+0}, v{T+1}")
            a(f"v_cvt_pk_bf16_f32 v{T+5}, v{T+2}, v{T+3}")
            a(f"buffer_store_dwordx2 {v(T+4,2)}, v8, s[28:31], s52 offen offset:{512*b} sc1")
    conv_body([0, 3, 4, 7])
    a("s_branch kb_conv_done")
    a.lab("kb_conv1")
    conv_body([1, 2, 5, 6])
    a.lab("kb_conv_done")
    a.stamp(4)
    a("s_waitcnt vmcnt(0)")
    a.stamp(5)
    a("s_barrier")
    a("s_cmp_lg_u32 s32, 4")
    a("s_cbranch_scc1 kb_idle")
    a("s_lshr_b32 s44, s2, 5")
    a(f"s_mul_i32 s44, s44, {FSTRIDE}")
    a("s_and_b32 s45, s2, 31")
    a("s_lshl_b32 s45, s45, 2")
    a("s_add_u32 s44, s44, s45")
    a(f"s_add_u32 s44, s44, {FLAG_OFF}")
    a("v_mov_b32 v2, 1")
    a("v_mov_b32 v3, 0")
    a("s_mov_b64 exec, 1")
    a("buffer_store_dword v2, v3, s[28:31], s44 offen sc1")
    a("s_mov_b64 exec, -1")
    a("v_lshrrev_b32 v3, 3, v1")
    a("v_and_b32 v4, 7, v1")
    a("v_lshlrev_b32 v5, 4, v4")
    a("v_lshl_add_u32 v5, v3, 12, v5")
    a("s_lshl_b32 s44, s34, 18")
    a("s_lshl_b32 s46, s33, 7")
    a("s_add_u32 s44, s44, s46")
    a(f"s_add_u32 s44, s44, {Y2_OFF}")
    a("v_lshlrev_b32 v6, 4, v4")
    a("v_lshl_add_u32 v6, v4, 10, v6")
    a("v_lshl_add_u32 v6, v3, 1, v6")
    a(f"v_add_u32 v6, {Y2S}, v6")
    for it in range(1, 8):
        a(f"v_xor_b32 v{64+it}, {16*it}, v6")
    a("v_mov_b32 v64, v6")
    a(f"s_mul_i32 s46, s34, {FSTRIDE}")
    a(f"s_add_u32 s46, s46, {FLAG_OFF}")
    a("v_and_b32 v3, 31, v1")
    a("v_lshlrev_b32 v3, 2, v3")
    a("s_barrier")
    a.lab("kb_poll")
    a("buffer_load_dword v2, v3, s[28:31], s46 offen sc1")
    a("s_waitcnt vmcnt(0)")
    a("v_cmp_ne_u32 vcc, 1, v2")
    a("s_nop 3")
    a("s_cmp_eq_u64 vcc, 0")
    a("s_cbranch_scc1 kb_polled")
    a("s_sleep 16")
    a("s_branch kb_poll")
    a.lab("kb_polled")
    a.stamp(6)
    for it in range(8):
        a(f"buffer_load_dwordx4 {v(24+4*it,4)}, v5, s[28:31], s44 offen sc1")
        a(f"s_add_u32 s44, s44, {8*4096}")
    for it in range(8):
        a(f"s_waitcnt vmcnt({7-it})")
        for e in range(8):
            op = "ds_write_b16_d16_hi" if e & 1 else "ds_write_b16"
            a(f"{op} v{64+it}, v{24 + 4*it + e//2} offset:{e*128}")
    a("s_branch kb_final")
    a.lab("kb_idle")
    a("s_barrier")

    a.lab("kb_final")
    a.stamp(11)
    a("s_waitcnt vmcnt(0) lgkmcnt(0)")
    a("s_barrier")
    a.stamp(12)
    a("v_lshrrev_b32 v2, 3, v0")
    a("v_and_b32 v3, 7, v0")
    a("v_mul_u32_u24 v4, 272, v2")
    a("v_lshl_add_u32 v4, v3, 5, v4")
    a(f"v_add_u32 v5, {2*RING}, v4")
    for w in range(4):
        ad = 4 if w < 2 else 5
        for hh in range(2):
            a(f"ds_read_b128 {v(24 + 8*w + 4*hh, 4)}, v{ad} offset:{(w % 2) * RING + 16*hh}")
    a("v_lshrrev_b32 v6, 3, v2")
    a("v_xor_b32 v6, v6, v3")
    a("v_lshlrev_b32 v6, 4, v6")
    a("v_lshl_add_u32 v6, v2, 7, v6")
    a(f"v_add_u32 v6, {Y2S}, v6")
    a("ds_read_b128 v[56:59], v6")
    srd(a, 24, 14, 2048 * 896)
    X, XN = 64, 72
    for i in range(4):
        a(f"v_lshlrev_b32 v{X+2*i}, 16, v{14+i}")
        a(f"v_and_b32 v{X+2*i+1}, 0xffff0000, v{14+i}")
    a("v_rcp_f32 v21, v19")
    for e in range(8):
        a(f"v_sub_f32 v{XN+e}, v{X+e}, v18")
    for i in range(4):
        a(f"v_cvt_pk_bf16_f32 v{80+i}, v{XN+2*i}, v{XN+2*i+1}")
    for i in range(4):
        a(f"v_lshlrev_b32 v{XN+2*i}, 16, v{80+i}")
        a(f"v_and_b32 v{XN+2*i+1}, 0xffff0000, v{80+i}")
    for e in range(8):
        a(f"v_mul_f32 v{84+e}, v{XN+e}, v21")
    for e in range(8):
        a(f"v_fma_f32 v{XN+e}, -v{84+e}, v19, v{XN+e}")
    for e in range(8):
        a(f"v_fma_f32 v{XN+e}, v{XN+e}, v21, v{84+e}")
    for i in range(4):
        a(f"v_cvt_pk_bf16_f32 v{80+i}, v{XN+2*i}, v{XN+2*i+1}")
    for i in range(4):
        a(f"v_lshlrev_b32 v{XN+2*i}, 16, v{80+i}")
        a(f"v_and_b32 v{XN+2*i+1}, 0xffff0000, v{80+i}")
    a("s_waitcnt lgkmcnt(0)")
    for i in range(0, 8, 2):
        a(f"v_pk_add_f32 {v(24+i,2)}, {v(24+i,2)}, {v(32+i,2)}")
        a(f"v_pk_add_f32 {v(40+i,2)}, {v(40+i,2)}, {v(48+i,2)}")
    for i in range(0, 8, 2):
        a(f"v_pk_add_f32 {v(24+i,2)}, {v(24+i,2)}, {v(40+i,2)}")
    a("v_mul_f32 v22, v21, v21")
    for e in range(8):
        a(f"v_mul_f32 v{24+e}, v{24+e}, v22")
    for i in range(4):
        a(f"v_cvt_pk_bf16_f32 v{80+i}, v{24+2*i}, v{24+2*i+1}")
    for i in range(4):
        a(f"v_lshlrev_b32 v{24+2*i}, 16, v{80+i}")
        a(f"v_and_b32 v{24+2*i+1}, 0xffff0000, v{80+i}")
    for e in range(8):
        a(f"v_mul_f32 v{32+e}, 0xbfb8aa3b, v{24+e}")
    for e in range(8):
        a(f"v_exp_f32 v{32+e}, v{32+e}")
    for e in range(8):
        a(f"v_add_f32 v{32+e}, 1.0, v{32+e}")
    for e in range(8):
        a(f"v_rcp_f32 v{32+e}, v{32+e}")
    for e in range(8):
        a(f"v_mul_f32 v{24+e}, v{24+e}, v{32+e}")
    for i in range(4):
        a(f"v_cvt_pk_bf16_f32 v{80+i}, v{24+2*i}, v{24+2*i+1}")
    for i in range(4):
        a(f"v_lshlrev_b32 v{24+2*i}, 16, v{80+i}")
        a(f"v_and_b32 v{24+2*i+1}, 0xffff0000, v{80+i}")
    for i in range(4):
        a(f"v_lshlrev_b32 v{32+2*i}, 16, v{56+i}")
        a(f"v_and_b32 v{32+2*i+1}, 0xffff0000, v{56+i}")
    for i in range(0, 8, 2):
        a(f"v_pk_mul_f32 {v(32+i,2)}, {v(32+i,2)}, {v(XN+i,2)}")
    for i in range(4):
        a(f"v_cvt_pk_bf16_f32 v{80+i}, v{32+2*i}, v{32+2*i+1}")
    for i in range(4):
        a(f"v_lshlrev_b32 v{32+2*i}, 16, v{80+i}")
        a(f"v_and_b32 v{32+2*i+1}, 0xffff0000, v{80+i}")
    for i in range(0, 8, 2):
        a(f"v_pk_mul_f32 {v(32+i,2)}, {v(32+i,2)}, {v(24+i,2)}")
    for i in range(4):
        a(f"v_cvt_pk_bf16_f32 v{80+i}, v{32+2*i}, v{32+2*i+1}")
    for i in range(4):
        a(f"v_lshlrev_b32 v{32+2*i}, 16, v{80+i}")
        a(f"v_and_b32 v{32+2*i+1}, 0xffff0000, v{80+i}")
    for i in range(0, 8, 2):
        a(f"v_pk_add_f32 {v(32+i,2)}, {v(32+i,2)}, {v(X+i,2)}")
    for i in range(4):
        a(f"v_cvt_pk_bf16_f32 v{80+i}, v{32+2*i}, v{32+2*i+1}")
    a("buffer_store_dwordx4 v[80:83], v20, s[24:27], 0 offen")
    a.fin(28, 0x80000)
    a.lab("kb_end")
    a("s_endpgm")
```

```python
import sys, os

NAME = "recurrent_scan__ssm_conv_h3__glu_gated_reglu__prompt"
H_OFF = 0
UREV_OFF = 0x700000
STATS_OFF = 0x8C0000
FLAG_OFF = 0x8D0000
Y2_OFF = 0x900000
WS_REC = 0x1000000
DIAG = int(os.environ.get("DIAG", "0"))
DIAG_OFF = 0xC00000

class A:
    def __init__(self):
        self.L = []
        self.n = 0
    def __call__(self, s):
        self.L.append("    " + s)
    def lab(self, s):
        self.L.append(s + ":")
    def new(self, p="L"):
        self.n += 1
        return f"{p}_{self.n}"
    def c(self, s):
        self.L.append("    ; " + s)
    def stamp(self, i, real=False):
        if DIAG:
            self(f"s_memrealtime s[{60+2*i}:{61+2*i}]" if real else f"s_memtime s[{60+2*i}:{61+2*i}]")
    def fin(self, srdws, koff, vt=160):
        if DIAG:
            self.stamp(13)
            self("s_waitcnt vmcnt(0)")
            self.stamp(14)
            self.stamp(15, True)
            self("s_waitcnt lgkmcnt(0)")
            self("s_lshl_b32 s58, s2, 4")
            self("s_add_u32 s58, s58, s32")
            self("s_lshl_b32 s58, s58, 7")
            self(f"s_add_u32 s58, s58, {DIAG_OFF + koff}")
            self(f"v_mov_b32 v{vt}, 0")
            for i in range(16):
                self(f"v_mov_b32 v{vt+1}, s{60+2*i}")
                self(f"buffer_store_dword v{vt+1}, v{vt}, s[{srdws}:{srdws+3}], s58 offen offset:{4*i}")

def v(a, n=1):
    return f"v{a}" if n == 1 else f"v[{a}:{a+n-1}]"
def s(a, n=1):
    return f"s{a}" if n == 1 else f"s[{a}:{a+n-1}]"

def srd(a, dst, lo, nrec):
    a(f"s_mov_b32 s{dst}, s{lo}")
    a(f"s_and_b32 s{dst+1}, s{lo+1}, 0xffff")
    a(f"s_mov_b32 s{dst+2}, {nrec}")
    a(f"s_mov_b32 s{dst+3}, 0x00020000")

def bf16r(a, dst, src):
    a(f"v_cvt_pk_bf16_f32 v{dst}, v{src}, v{src}")
    a(f"v_lshlrev_b32 v{dst}, 16, v{dst}")

def unpack(a, dst, src):
    a(f"v_lshlrev_b32 v{dst}, 16, v{src}")
    a(f"v_and_b32 v{dst+1}, 0xffff0000, v{src}")

STAGE = 24576
NST = 6
A_STATS = NST * STAGE
A_CS = A_STATS + 1024
A_LDS = A_CS + 1024

def kernel_a(a):
    a.lab("ka_kernel")
    a("s_cmp_ge_u32 s2, 256")
    a("s_cbranch_scc1 ka_end")
    a.stamp(0, True)
    a.stamp(1)
    a("s_load_dwordx8 s[4:11], s[0:1], 0")
    a("s_load_dwordx4 s[12:15], s[0:1], 56")
    a("s_load_dwordx2 s[16:17], s[0:1], 96")
    a("s_load_dwordx2 s[48:49], s[0:1], 32")
    a("s_load_dwordx2 s[50:51], s[0:1], 72")
    a("v_and_b32 v1, 63, v0")
    a("v_lshrrev_b32 v2, 6, v0")
    a("s_nop 0")
    a("v_readfirstlane_b32 s32, v2")
    a("s_cmp_ge_u32 s2, 224")
    a("s_cbranch_scc1 ka_prep")
    a("s_and_b32 s40, s2, 7")
    a("s_lshr_b32 s41, s2, 3")
    a("s_mul_i32 s42, s41, 37")
    a("s_lshr_b32 s42, s42, 8")
    a("s_mul_i32 s43, s42, 7")
    a("s_sub_u32 s43, s41, s43")
    a("s_lshr_b32 s44, s40, 2")
    a("s_lshl_b32 s44, s44, 2")
    a("s_add_u32 s33, s44, s42")
    a("s_and_b32 s44, s40, 3")
    a("s_mul_i32 s44, s44, 7")
    a("s_add_u32 s34, s44, s43")
    a("s_cmp_ge_u32 s32, 8")
    a("s_cbranch_scc1 ka_helper")

    a("s_lshr_b32 s35, s32, 1")
    a("s_and_b32 s36, s32, 1")
    AR = 10
    a("v_and_b32 v2, 31, v1")
    a("v_lshrrev_b32 v3, 5, v1")
    a("v_bfe_u32 v4, v1, 2, 2")
    a("v_xor_b32 v4, v3, v4")
    a("s_lshl_b32 s44, s32, 5")
    a("v_add_u32 v5, s44, v2")
    a("v_lshlrev_b32 v5, 6, v5")
    a(f"v_lshl_add_u32 v{AR+0}, v4, 4, v5")
    a(f"v_xor_b32 v{AR+1}, 0x800, v{AR+0}")
    a(f"v_xor_b32 v{AR+2}, 32, v{AR+0}")
    a(f"v_xor_b32 v{AR+3}, 32, v{AR+1}")
    a("v_bfe_u32 v4, v1, 4, 1")
    a("v_bfe_u32 v5, v1, 2, 2")
    a("v_bfe_u32 v6, v1, 3, 1")
    a("v_lshl_or_b32 v6, v4, 1, v6")
    a("s_lshl_b32 s44, s36, 1")
    a("v_xor_b32 v6, s44, v6")
    a("v_lshl_add_u32 v7, v3, 3, v5")
    a("v_lshlrev_b32 v7, 7, v7")
    a("v_lshl_add_u32 v7, v4, 12, v7")
    a("v_lshl_add_u32 v7, v6, 5, v7")
    a("v_and_b32 v8, 3, v1")
    a("v_lshl_add_u32 v7, v8, 3, v7")
    a(f"v_add_u32 v{AR+4}, 0x4000, v7")
    a(f"v_xor_b32 v{AR+5}, 32, v{AR+4}")
    for i in range(6):
        a(f"v_add_u32 v{AR+6+i}, {3 * STAGE}, v{AR+i}")
    a("v_mov_b32 v28, 0")
    a("v_mov_b32 v29, 0")
    a("s_waitcnt lgkmcnt(0)")
    srd(a, 28, 16, WS_REC)
    if not os.environ.get("NOTOUCH"):
        lb = a.new("ka_notouch")
        a("s_cmp_eq_u32 s32, 7")
        a(f"s_cbranch_scc1 {lb}")
        srd(a, 20, 4, 2048 * 896)
        srd(a, 24, 12, 448 * 3584)
        srd(a, 52, 14, 448 * 3584)
        a("s_lshr_b32 s45, s40, 2")
        a("s_lshl_b32 s45, s45, 10")
        a("s_mul_i32 s46, s41, 37")
        a("s_add_u32 s45, s45, s46")
        a("s_mul_i32 s45, s45, 896")
        a("s_lshl_b32 s46, s32, 7")
        a("s_add_u32 s45, s45, s46")
        a("v_mul_u32_u24 v2, 896, v1")
        a("s_lshl_b32 s46, s41, 4")
        a("v_add_u32 v3, s46, v1")
        a("v_mul_u32_u24 v4, 0x2493, v3")
        a("v_lshrrev_b32 v4, 16, v4")
        a("v_mul_u32_u24 v5, 7, v4")
        a("v_sub_u32 v5, v3, v5")
        a("v_mul_u32_u24 v4, 3584, v4")
        a("v_lshl_add_u32 v4, v5, 7, v4")
        a("s_and_b32 s46, s40, 3")
        a("s_mul_i32 s46, s46, 896")
        a(f"s_mul_i32 s47, s32, {64 * 3584}")
        a("s_add_u32 s46, s46, s47")
        TS = int(os.environ.get("TSLEEP", "0"))
        if TS:
            lp = a.new("ka_tl")
            le = a.new("ka_te")
            a("s_mov_b32 s47, s32")
            a.lab(lp)
            a("s_cmp_eq_u32 s47, 0")
            a(f"s_cbranch_scc1 {le}")
            a(f"s_sleep {TS}")
            a("s_sub_u32 s47, s47, 1")
            a(f"s_branch {lp}")
            a.lab(le)
        a("s_mov_b32 exec_hi, 31")
        a("buffer_load_dword v6, v2, s[20:23], s45 offen")
        a("s_mov_b64 exec, 0xffff")
        a("buffer_load_dword v7, v4, s[24:27], s46 offen")
        a("buffer_load_dword v8, v4, s[52:55], s46 offen")
        a("s_mov_b64 exec, -1")
        a.lab(lb)

    SETS = {0: 32, 1: 48}
    def reads(c, st_):
        base = SETS[st_]
        stg = c % NST
        R, o = AR + 6 * (stg // 3), (stg % 3) * STAGE
        a(f"ds_read_b128 {v(base,4)}, v{R + 2*st_} offset:{o}")
        for ct in range(2):
            for half in range(2):
                a(f"ds_read_b64_tr_b16 {v(base + 8 + 4*ct + 2*half, 2)}, v{R + 4 + ct} offset:{o + st_*2048 + half*512}")
        a(f"ds_read_b128 {v(base+4,4)}, v{R + 2*st_ + 1} offset:{o}")

    def mfmas(c, st_):
        base = SETS[st_]
        first = (2 * c + st_ == 0)
        k = 0
        for tt in range(2):
            for ct in range(2):
                acc = 64 + 16 * (2 * ct + tt)
                cc = "0" if first else v(acc, 16)
                a(f"v_mfma_f32_32x32x16_bf16 {v(acc,16)}, {v(base + 8 + 4*ct, 4)}, {v(base + 4*tt, 4)}, {cc}")
                t = 24 + 2 * (k & 1)
                unpack(a, t, base + k)
                a(f"v_add_f32 v28, v28, v{t}")
                a(f"v_add_f32 v29, v29, v{t+1}")
                k += 1

    a.stamp(2)
    a("s_barrier")
    a.stamp(3)
    reads(0, 0)
    for c in range(14):
        reads(c, 1)
        a("s_waitcnt lgkmcnt(6)")
        mfmas(c, 0)
        a("s_waitcnt lgkmcnt(0)")
        if c < 13:
            a("s_barrier")
            if c in (0, 2, 4, 6, 8, 10, 12): a.stamp(4 + c // 2)
            reads(c + 1, 0)
        mfmas(c, 1)
    a.stamp(11)
    a("v_add_f32 v28, v28, v29")
    a("v_mov_b32 v29, v28")
    a("v_and_b32 v2, 31, v1")
    a("s_lshl_b32 s44, s32, 5")
    a("v_permlane32_swap_b32 v28, v29")
    a("v_add_u32 v2, s44, v2")
    a("v_lshlrev_b32 v3, 2, v2")
    a("v_add_f32 v28, v28, v29")
    a("v_mul_f32 v28, 0x3b124925, v28")
    bf16r(a, 28, 28)
    a("v_xor_b32 v28, 0x80000000, v28")
    a(f"v_add_u32 v3, {A_STATS}, v3")
    a("ds_write_b32 v3, v28")
    a("v_lshrrev_b32 v5, 5, v1")
    a("v_lshlrev_b32 v5, 4, v5")
    a("s_lshl_b32 s44, s36, 7")
    a(f"s_add_u32 s44, s44, {A_CS}")
    a("v_add_u32 v6, s44, v5")
    a("v_lshlrev_b32 v2, 4, v1")
    a("v_xor_b32 v3, 128, v3")
    a("s_waitcnt lgkmcnt(0)")
    a("s_barrier")
    a.stamp(12)
    a("ds_read_b32 v30, v3")
    CSR, CS2 = 128, 32
    for half, base in ((0, CSR), (1, CS2)):
        for ct in range(2):
            for mat in range(2):
                for q in range(2):
                    a(f"ds_read_b128 {v(base + 16*ct + 8*mat + 4*q, 4)}, v6 offset:{mat*512 + half*256 + ct*64 + q*32}")
    a("s_waitcnt lgkmcnt(0)")
    for i in range(0, 32, 2):
        a(f"v_pk_add_f32 {v(CSR+i,2)}, {v(CSR+i,2)}, {v(CS2+i,2)}")
    for tt in range(2):
        mr = 28 + 2 * tt
        a("s_lshl_b32 s44, s33, 3")
        a("s_lshl_b32 s45, s35, 1")
        a("s_add_u32 s44, s44, s45")
        a(f"s_xor_b32 s45, s36, {tt}")
        a("s_add_u32 s44, s44, s45")
        a("s_mul_i32 s44, s44, 224")
        a("s_lshl_b32 s45, s34, 3")
        a("s_add_u32 s44, s44, s45")
        a("s_lshl_b32 s45, s36, 2")
        a("s_add_u32 s44, s44, s45")
        a("s_lshl_b32 s44, s44, 9")
        for ct in range(2):
            acc = 64 + 16 * (2 * ct + tt)
            cs = CSR + 16 * ct
            for i in range(0, 16, 2):
                a(f"v_pk_fma_f32 {v(acc+i,2)}, {v(mr,2)}, {v(cs+i,2)}, {v(acc+i,2)} op_sel:[0,0,0] op_sel_hi:[0,1,1]")
            for i in range(8):
                a(f"v_max_f32 v{acc+i}, 0, v{acc+i}")
            for i in range(4):
                a(f"v_pk_mul_f32 {v(acc+2*i,2)}, {v(acc+2*i,2)}, {v(acc+8+2*i,2)}")
            O = 32 + 4 * (2 * tt + ct)
            for i in range(4):
                a(f"v_cvt_pk_bf16_f32 v{O+i}, v{acc+2*i}, v{acc+2*i+1}")
            a(f"buffer_store_dwordx4 {v(O,4)}, v2, s[28:31], s44 offen offset:{ct*1024}")
    a.fin(28, 0)
    a("s_endpgm")

    a.lab("ka_helper")
    a("s_sub_u32 s35, s32, 8")
    a("s_lshr_b32 s36, s35, 1")
    a("s_and_b32 s39, s35, 1")
    a("s_lshl_b32 s37, s35, 12")
    a("s_lshl_b32 s38, s35, 11")
    a("s_add_u32 s38, s38, 16384")
    a("s_lshl_b32 s44, s33, 8")
    a("s_lshl_b32 s45, s35, 6")
    a("s_add_u32 s44, s44, s45")
    a("v_lshrrev_b32 v2, 2, v1")
    a("v_add_u32 v2, s44, v2")
    a("s_movk_i32 s45, 896")
    a("v_mul_lo_u32 v2, v2, s45")
    a("v_and_b32 v3, 3, v1")
    a("v_bfe_u32 v4, v1, 4, 2")
    a("v_xor_b32 v3, v3, v4")
    a("v_lshl_add_u32 v10, v3, 4, v2")
    a("s_lshl_b32 s44, s39, 4")
    a("v_lshrrev_b32 v2, 3, v1")
    a("v_add_u32 v2, s44, v2")
    a("s_movk_i32 s45, 3584")
    a("v_mul_lo_u32 v2, v2, s45")
    a("s_lshl_b32 s44, s34, 7")
    a("v_add_u32 v2, s44, v2")
    a("v_bfe_u32 v4, v1, 4, 1")
    a("v_lshlrev_b32 v4, 1, v4")
    a("s_lshl_b32 s44, s36, 2")
    a("v_or_b32 v4, s44, v4")
    a("v_and_b32 v3, 7, v1")
    a("v_xor_b32 v5, v3, v4")
    a("v_lshl_add_u32 v11, v5, 4, v2")
    a("s_waitcnt lgkmcnt(0)")
    srd(a, 20, 4, 2048 * 896)
    a("s_cmp_eq_u32 s36, 1")
    a("s_cselect_b32 s24, s14, s12")
    a("s_cselect_b32 s25, s15, s13")
    a("s_and_b32 s25, s25, 0xffff")
    a(f"s_mov_b32 s26, {448 * 3584}")
    a("s_mov_b32 s27, 0x00020000")
    def dma(c):
        st = c % NST
        for i in range(2):
            a(f"s_add_u32 m0, s38, {st * STAGE + 1024 * i}")
            a(f"s_mov_b32 s46, {(c * 32 + 8 * i) * 3584}")
            a("buffer_load_dwordx4 v11, s[24:27], s46 offen lds")
        for i in range(4):
            a(f"s_add_u32 m0, s37, {st * STAGE + 1024 * i}")
            a(f"s_mov_b32 s46, {64 * c + 14336 * i}")
            a("buffer_load_dwordx4 v10, s[20:23], s46 offen lds")
    PRO = int(os.environ.get("PRO", "3"))
    for c in range(PRO):
        dma(c)
    srd(a, 28, 16, WS_REC)
    srd(a, 40, 48, 448 * 4096)
    srd(a, 52, 50, 1792 * 896)
    a("v_lshrrev_b32 v2, 3, v1")
    a("v_lshlrev_b32 v2, 7, v2")
    a("v_lshl_add_u32 v2, v5, 4, v2")
    a("v_add_u32 v20, s38, v2")
    a(f"v_add_u32 v21, {3 * STAGE}, v20")
    for r in range(22, 32):
        a(f"v_mov_b32 v{r}, 0")
    a("v_lshlrev_b32 v9, 4, v1")
    BUF = [32, 56]
    def hreads(c):
        b = BUF[c & 1]
        stg = c % NST
        o = (stg % 3) * STAGE
        for i in range(2):
            a(f"ds_read_b128 {v(b + 16 + 4*i, 4)}, v{20 + stg//3} offset:{o + 1024*i}")
    def hsum(c):
        b = BUF[c & 1]
        for i in range(8):
            t = 80 + 2 * (i & 1)
            unpack(a, t, b + 16 + i)
            a(f"v_add_f32 v{24 + 2*(i & 3)}, v{24 + 2*(i & 3)}, v{t}")
            a(f"v_add_f32 v{25 + 2*(i & 3)}, v{25 + 2*(i & 3)}, v{t+1}")
    NPF = 4
    sched = {}
    for c in range(0, 14 - PRO): sched[c] = [c + PRO]
    a.stamp(2)
    a(f"s_waitcnt vmcnt({6 * (PRO - 1)})")
    a("s_barrier")
    a.stamp(3)
    last = PRO - 1
    for c in range(14):
        hreads(c)
        for x in sched.get(c, []):
            assert x - NST < c
            dma(x); last = x
        if c == 14 - PRO:
            a("s_lshl_b32 s44, s2, 13")
            a("s_lshl_b32 s45, s35, 11")
            a("s_add_u32 s44, s44, s45")
            a("buffer_load_dwordx4 v[88:91], v9, s[40:43], s44 offen")
            a("buffer_load_dwordx4 v[88:91], v9, s[40:43], s44 offen offset:1024")
            a("s_mul_i32 s44, s2, 7168")
            a("s_add_u32 s44, s44, s45")
            a("buffer_load_dwordx4 v[88:91], v9, s[52:55], s44 offen")
            a("buffer_load_dwordx4 v[88:91], v9, s[52:55], s44 offen offset:1024")
        if c > 0:
            hsum(c - 1)
        if c < 13:
            n = 6 * (last - (c + 1)) + (NPF if c >= 14 - PRO else 0)
            a(f"s_waitcnt vmcnt({n}) lgkmcnt(0)")
            a("s_barrier")
            if c in (0, 2, 4, 6, 8, 10, 12): a.stamp(4 + c // 2)
        else:
            a("s_waitcnt lgkmcnt(0)")
    hsum(13)
    a.stamp(11)
    a("s_nop 1")
    for i in range(8):
        a(f"v_add_f32_dpp v{24+i}, v{24+i}, v{24+i} row_ror:8 row_mask:0xf bank_mask:0xf")
    for i in range(8):
        a(f"v_mov_b32 v{32+i}, v{24+i}")
    a("s_nop 1")
    for i in range(8):
        a(f"v_permlane16_swap_b32 v{24+i}, v{32+i}")
    a("s_nop 1")
    for i in range(8):
        a(f"v_add_f32 v{24+i}, v{24+i}, v{32+i}")
    for i in range(8):
        a(f"v_mov_b32 v{32+i}, v{24+i}")
    a("s_nop 1")
    for i in range(8):
        a(f"v_permlane32_swap_b32 v{24+i}, v{32+i}")
    a("s_nop 1")
    for i in range(8):
        a(f"v_add_f32 v{24+i}, v{24+i}, v{32+i}")
    a("s_lshl_b32 s44, s35, 8")
    a(f"s_add_u32 s44, s44, {A_CS}")
    a("v_lshl_add_u32 v2, v1, 5, s44")
    a("s_mov_b64 exec, 0xff")
    a("ds_write_b128 v2, v[24:27]")
    a("ds_write_b128 v2, v[28:31] offset:16")
    a("s_mov_b64 exec, -1")
    a("s_waitcnt lgkmcnt(0)")
    a("s_barrier")
    a.stamp(12)
    a.fin(28, 0)
    a("s_endpgm")

    a.lab("ka_prep")
    a("s_sub_u32 s33, s2, 224")
    a("s_waitcnt lgkmcnt(0)")
    srd(a, 28, 16, WS_REC)
    a("s_cmp_ge_u32 s32, 8")
    a("s_cbranch_scc1 ka_prep_stats")
    a("s_cmp_eq_u32 s32, 7")
    a("s_cbranch_scc1 ka_prep_flags")
    srd(a, 20, 6, 2048 * 896)
    srd(a, 24, 8, 2048 * 896)
    srd(a, 40, 10, 448 * 8)
    a("s_movk_i32 s44, 1171")
    a("v_mul_lo_u32 v2, v0, s44")
    a("v_lshrrev_b32 v2, 16, v2")
    a("v_mul_u32_u24 v3, 56, v2")
    a("v_sub_u32 v3, v0, v3")
    a("s_lshl_b32 s44, s33, 6")
    a("v_lshl_add_u32 v4, v2, 3, s44")
    a("s_movk_i32 s45, 896")
    a("v_mul_lo_u32 v4, v4, s45")
    a("v_lshl_add_u32 v11, v3, 4, v4")
    a("v_subrev_u32 v10, 2688, v11")
    a("v_add_u32 v12, 3584, v11")
    a("v_lshlrev_b32 v13, 6, v3")
    KR, VR, SW = 16, 60, 92
    if os.environ.get("PDELAY", "1") == "1":
        a("s_barrier")
    for i in range(4):
        a(f"buffer_load_dwordx4 {v(SW+4*i,4)}, v13, s[40:43], 0 offen offset:{16*i}")
    for r in range(11):
        if r < 3: ad, off = 10, r * 896
        elif r < 7: ad, off = 11, (r - 3) * 896
        else: ad, off = 12, (r - 7) * 896
        a(f"buffer_load_dwordx4 {v(KR+4*r,4)}, v{ad}, s[20:23], 0 offen offset:{off}")
    for r in range(8):
        ad, off = (11, r * 896) if r < 4 else (12, (r - 4) * 896)
        a(f"buffer_load_dwordx4 {v(VR+4*r,4)}, v{ad}, s[24:27], 0 offen offset:{off}")
    a("v_sub_u32 v5, 7, v2")
    a("v_and_b32 v6, 7, v3")
    a("v_xor_b32 v5, v5, v6")
    a("v_lshlrev_b32 v5, 4, v5")
    a("v_lshl_add_u32 v14, v3, 10, v5")
    a.stamp(2)
    a("s_waitcnt vmcnt(0)")
    a.stamp(3)
    WF, KF, RES, OUT = 108, 116, 138, 154
    for p in range(4):
        for e in range(2):
            ch = 2 * p + e
            for tap in range(4):
                src = SW + 2 * ch + (tap >> 1)
                if tap & 1: a(f"v_and_b32 v{WF + 2*tap + e}, 0xffff0000, v{src}")
                else: a(f"v_lshlrev_b32 v{WF + 2*tap + e}, 16, v{src}")
        for r in range(11):
            unpack(a, KF + 2 * r, KR + 4 * r + p)
        for i in range(8):
            a(f"v_pk_mul_f32 {v(RES+2*i,2)}, {v(KF+2*i,2)}, {v(WF+6,2)}")
        for tap in (2, 1, 0):
            for i in range(8):
                a(f"v_pk_fma_f32 {v(RES+2*i,2)}, {v(KF+2*(i+3-tap),2)}, {v(WF+2*tap,2)}, {v(RES+2*i,2)}")
        for r in range(8):
            unpack(a, KF + 2 * r, VR + 4 * r + p)
        for i in range(8):
            a(f"v_pk_mul_f32 {v(RES+2*i,2)}, {v(RES+2*i,2)}, {v(KF+2*i,2)}")
        for e in range(2):
            for d in range(4):
                a(f"v_cvt_pk_bf16_f32 v{OUT+4*e+d}, v{RES+2*(7-2*d)+e}, v{RES+2*(6-2*d)+e}")
        for e in range(2):
            a(f"ds_write_b128 v14, {v(OUT+4*e,4)} offset:{(2*p+e)*128}")
    a("s_branch ka_prep_bar")
    a.lab("ka_prep_flags")
    if os.environ.get("PDELAY", "1") == "1":
        a("s_barrier")
    a("s_cmp_ge_u32 s33, 7")
    a("s_cbranch_scc1 ka_prep_bar")
    a("v_mov_b32 v2, 0")
    a("v_lshlrev_b32 v4, 2, v1")
    a("s_mul_i32 s44, s33, 4352")
    a(f"s_add_u32 s44, s44, {FLAG_OFF}")
    a("buffer_store_dword v2, v4, s[28:31], s44 offen")
    a("s_branch ka_prep_bar")
    a.lab("ka_prep_stats")
    srd(a, 20, 4, 2048 * 896)
    a("s_lshl_b32 s44, s33, 6")
    a("s_sub_u32 s45, s32, 8")
    a("s_lshl_b32 s45, s45, 4")
    a("s_add_u32 s44, s44, s45")
    a("v_lshrrev_b32 v2, 2, v1")
    a("v_add_u32 v2, s44, v2")
    a("s_movk_i32 s45, 896")
    a("v_mul_lo_u32 v3, v2, s45")
    a("v_and_b32 v4, 3, v1")
    a("v_lshl_add_u32 v3, v4, 4, v3")
    for j in range(14):
        a(f"buffer_load_dwordx4 {v(16+4*j,4)}, v3, s[20:23], 0 offen offset:{64*j}")
    for r in range(8, 12):
        a(f"v_mov_b32 v{r}, 0")
    for j in range(14):
        a(f"s_waitcnt vmcnt({13-j})")
        if j == 13 and os.environ.get("PDELAY", "1") == "1":
            a("s_barrier")
        for i in range(4):
            t = 12 + 2 * (i & 1)
            unpack(a, t, 16 + 4 * j + i)
            a(f"v_add_f32 v8, v8, v{t}")
            a(f"v_add_f32 v9, v9, v{t+1}")
            a(f"v_fmac_f32 v10, v{t}, v{t}")
            a(f"v_fmac_f32 v11, v{t+1}, v{t+1}")
    a("v_add_f32 v8, v8, v9")
    a("v_add_f32 v10, v10, v11")
    a("s_nop 1")
    a("v_add_f32_dpp v8, v8, v8 quad_perm:[1,0,3,2] row_mask:0xf bank_mask:0xf")
    a("v_add_f32_dpp v10, v10, v10 quad_perm:[1,0,3,2] row_mask:0xf bank_mask:0xf")
    a("s_nop 1")
    a("v_add_f32_dpp v8, v8, v8 quad_perm:[2,3,0,1] row_mask:0xf bank_mask:0xf")
    a("v_add_f32_dpp v10, v10, v10 quad_perm:[2,3,0,1] row_mask:0xf bank_mask:0xf")
    a("v_mul_f32 v8, 0x3b124925, v8")
    a("v_mul_f32 v10, 0x3b124925, v10")
    a("v_fma_f32 v10, -v8, v8, v10")
    a("v_max_f32 v10, 0, v10")
    bf16r(a, 12, 8)
    bf16r(a, 10, 10)
    a("v_add_f32 v10, 0x3727c5ac, v10")
    bf16r(a, 10, 10)
    a("v_sqrt_f32 v10, v10")
    a("s_nop 0")
    bf16r(a, 13, 10)
    a("v_lshlrev_b32 v2, 3, v2")
    a(f"s_mov_b32 s44, {STATS_OFF}")
    a("buffer_store_dwordx2 v[12:13], v2, s[28:31], s44 offen")
    a.lab("ka_prep_bar")
    a.stamp(4)
    a("s_waitcnt lgkmcnt(0)")
    a("s_barrier")
    a.stamp(5)
    a("s_cmp_ge_u32 s32, 8")
    a("s_cbranch_scc1 ka_prep_end")
    a("v_lshrrev_b32 v2, 3, v0")
    a("v_and_b32 v3, 7, v0")
    a("v_xor_b32 v4, s32, v3")
    a("v_lshlrev_b32 v4, 4, v4")
    a("v_lshl_add_u32 v4, v2, 7, v4")
    a("v_lshlrev_b32 v5, 4, v3")
    a("v_lshl_add_u32 v5, v2, 12, v5")
    for it in range(7):
        a(f"ds_read_b128 {v(32+4*it,4)}, v4 offset:{it*8192}")
    a("s_lshl_b32 s44, s33, 7")
    a(f"s_sub_u32 s44, {UREV_OFF + 1984*2}, s44")
    for it in range(7):
        a(f"s_waitcnt lgkmcnt({6-it})")
        a(f"buffer_store_dwordx4 {v(32+4*it,4)}, v5, s[28:31], s44 offen")
        a(f"s_add_u32 s44, s44, {64*4096}")
    a.lab("ka_prep_end")
    a.fin(28, 0)
    a.lab("ka_end")
    a("s_endpgm")

HDR = """; Kernarg layout for this problem (104 bytes, ptrs only, base s[0:1]):
"""

def desc(name, vg, sg=102):
    acc = (vg + 3) // 4 * 4
    return f""".amdhsa_kernel {name}
  .amdhsa_next_free_vgpr {vg}
  .amdhsa_next_free_sgpr {sg}
  .amdhsa_accum_offset {acc}
  .amdhsa_group_segment_fixed_size 0
  .amdhsa_kernarg_size 104
  .amdhsa_user_sgpr_count 2
  .amdhsa_user_sgpr_kernarg_segment_ptr 1
  .amdhsa_system_sgpr_workgroup_id_x 1
.end_amdhsa_kernel
"""

def main():
    out = sys.argv[1] if len(sys.argv) > 1 else f"cdna_kernels/{NAME}.s"
    from gen_b import kernel_b, B_LDS, B_GRID
    kernels = [("ka_kernel", kernel_a, 256, 768, A_LDS, 168),
               ("kb_kernel", kernel_b, B_GRID, 512, B_LDS, 256)]
    txt = HDR
    for (n, f, g, b, lds, vg) in kernels:
        txt += f"; @launch kernel={n} grid=({g},1,1) block=({b},1,1) lds={lds}\n"
    txt += '.amdgcn_target "amdgcn-amd-amdhsa--gfx950"\n.text\n'
    for (n, f, g, b, lds, vg) in kernels:
        a = A()
        f(a)
        txt += f".globl {n}\n.p2align 8\n.type {n},@function\n" + "\n".join(a.L) + "\n"
    txt += '.section .rodata,"a"\n'
    for (n, f, g, b, lds, vg) in kernels:
        txt += ".p2align 6\n" + desc(n, vg)
    open(out, "w").write(txt)

if __name__ == "__main__":
    main()
```

```python
import sys, os
E = os.environ.get

NAME = "recurrent_scan__ssm_conv_h3__glu_gated_reglu__prompt"
KN = NAME + "_kernel"
H_OFF = 0
UREV_OFF = 0x700000
STATS_OFF = 0x8C0000
FLAG_OFF = 0x8D0000
HFLAG = FLAG_OFF
YFLAG = FLAG_OFF + 128
PFLAG = FLAG_OFF + 256
SFLAG = FLAG_OFF + 384
Y2_OFF = 0x900000
WS_REC = 0x1000000
DIAG = int(E("DIAG", "0"))
DIAG_OFF = 0xC00000

class A:
    def __init__(self):
        self.L = []
        self.n = 0
    def __call__(self, s):
        self.L.append("    " + s)
    def lab(self, s):
        self.L.append(s + ":")
    def new(self, p="L"):
        self.n += 1
        return f"{p}_{self.n}"
    def stamp(self, i, real=False):
        if E("TP"):
            role, idx, T = E("TP").split(":")
            if getattr(self, "role", "") == role and int(idx) == i:
                lp = self.new("tprobe")
                self.lab(lp)
                self("s_memrealtime s[98:99]")
                self("s_waitcnt lgkmcnt(0)")
                self("s_sub_u32 s98, s98, s96")
                self(f"s_cmp_lt_u32 s98, {T}")
                self(f"s_cbranch_scc1 {lp}")
        if E("LOOPST") and 5 <= i <= 10 and getattr(self, "post", False): return
        if DIAG:
            self(f"s_memrealtime s[{60+2*i}:{61+2*i}]" if (real or DIAG == 2) else f"s_memtime s[{60+2*i}:{61+2*i}]")
    def fin(self, vt=160):
        if DIAG:
            self.stamp(13)
            self("s_waitcnt vmcnt(0)")
            self.stamp(14)
            self.stamp(15, True)
            self("s_waitcnt lgkmcnt(0)")
            self("s_lshl_b32 s33, s2, 4")
            self("s_add_u32 s33, s33, s32")
            self("s_lshl_b32 s33, s33, 7")
            self(f"s_add_u32 s33, s33, {DIAG_OFF}")
            self(f"v_mov_b32 v{vt}, 0")
            for i in range(16):
                self(f"v_mov_b32 v{vt+1}, s{60+2*i}")
                self(f"buffer_store_dword v{vt+1}, v{vt}, s[28:31], s33 offen offset:{4*i}")

def v(a, n=1):
    return f"v{a}" if n == 1 else f"v[{a}:{a+n-1}]"

def srd(a, dst, lo, nrec):
    a(f"s_mov_b32 s{dst}, s{lo}")
    a(f"s_and_b32 s{dst+1}, s{lo+1}, 0xffff")
    a(f"s_mov_b32 s{dst+2}, {nrec}")
    a(f"s_mov_b32 s{dst+3}, 0x00020000")

def bf16r(a, dst, src):
    a(f"v_cvt_pk_bf16_f32 v{dst}, v{src}, v{src}")
    a(f"v_lshlrev_b32 v{dst}, 16, v{dst}")

def unpack(a, dst, src):
    a(f"v_lshlrev_b32 v{dst}, 16, v{src}")
    a(f"v_and_b32 v{dst+1}, 0xffff0000, v{src}")

STAGE = 24576
NST = 4
SPS = 2
RING_D = 6
RING = RING_D * 2048
PART = 64 * 272
CONV0 = 8 * RING
CPITCH = 4160
CONV_CH = 4 * CPITCH + 5120
A_STATS = CONV0 + 2 * CONV_CH
A_CS = A_STATS + 1024
Y2S = A_CS + 1024
STS = Y2S + 8192
SYNC = STS + 512
CNT_H, CNT_U, CNT_Y, CNT_R = SYNC, SYNC + 4, SYNC + 8, SYNC + 12
LDS = SYNC + 64

Q, K_, V_, SK, SSMK, SSMD, WG, WU, WD, OUT, DBG, WS = 4, 6, 8, 10, 12, 14, 16, 18, 20, 22, 24, 26
SA, SB, SC = 36, 40, 44
RB, FB, XCD, J, TB, CB = 48, 49, 50, 51, 52, 53
R0, R1, R2, R3, R4, R5 = 54, 55, 56, 57, 58, 59
T0, T1, T2 = 33, 34, 35
T3, T4, T5, T6 = 92, 93, 94, 95

def lds_spin(a, word, vt=2, sleep=1, mask=None):
    lp, dn = a.new("spin"), a.new("spun")
    a(f"v_mov_b32 v{vt+1}, {word}")
    a.lab(lp)
    a(f"ds_read_b32 v{vt}, v{vt+1}")
    a("s_waitcnt lgkmcnt(0)")
    a(f"v_readfirstlane_b32 s{T3}, v{vt}")
    a("s_nop 3")
    if mask is None:
        a(f"s_cmp_lg_u32 s{T3}, 0")
    else:
        a(f"s_and_b32 s{T3}, s{T3}, s{mask}")
        a(f"s_cmp_eq_u32 s{T3}, s{mask}")
    a(f"s_cbranch_scc1 {dn}")
    a(f"s_sleep {sleep}")
    a(f"s_branch {lp}")
    a.lab(dn)

def lds_set(a, word, vt=2):
    a(f"v_mov_b32 v{vt}, 1")
    a(f"v_mov_b32 v{vt+1}, {word}")
    a(f"ds_write_b32 v{vt+1}, v{vt}")

def poll(a, soff, nwords, vt=2, sleep=12):
    lp, dn = a.new("poll"), a.new("polled")
    a(f"v_min_u32 v{vt+1}, {nwords-1}, v1")
    a(f"v_lshlrev_b32 v{vt+1}, 2, v{vt+1}")
    a.lab(lp)
    a(f"buffer_load_dword v{vt}, v{vt+1}, s[28:31], s{soff} offen sc1")
    a("s_waitcnt vmcnt(0)")
    a(f"v_cmp_ne_u32 vcc, 1, v{vt}")
    a("s_nop 3")
    a("s_cmp_eq_u64 vcc, 0")
    a(f"s_cbranch_scc1 {dn}")
    a(f"s_sleep {sleep}")
    a(f"s_branch {lp}")
    a.lab(dn)

def arrive_publish(a, cnt, n, soff, voff, lanes, vt=2):
    sk = a.new("nopub")
    a(f"v_mov_b32 v{vt}, 1")
    a(f"v_mov_b32 v{vt+1}, {cnt}")
    a("s_mov_b64 exec, 1")
    a(f"ds_add_rtn_u32 v{vt+2}, v{vt+1}, v{vt}")
    a("s_mov_b64 exec, -1")
    a("s_waitcnt lgkmcnt(0)")
    a(f"v_readfirstlane_b32 s{T3}, v{vt+2}")
    a("s_nop 3")
    a(f"s_cmp_lg_u32 s{T3}, {n-1}")
    a(f"s_cbranch_scc1 {sk}")
    a(f"s_mov_b32 exec_lo, {hex((1 << lanes) - 1)}")
    a("s_mov_b32 exec_hi, 0")
    a(f"buffer_store_dword v{vt}, v{voff}, s[28:31], s{soff} offen sc1")
    a("s_mov_b64 exec, -1")
    a.lab(sk)

def kernel(a):
    a.lab(KN)
    a("s_cmp_ge_u32 s2, 256")
    a("s_cbranch_scc1 k_end")
    a.stamp(0, True)
    a.stamp(1)
    for _ in range(int(E("BEGSLEEP", "0"))): a("s_sleep 32")
    if E("TFIX") or E("TB0") or E("TE1") or E("TP"): a("s_memrealtime s[96:97]")
    a("s_load_dwordx8 s[4:11], s[0:1], 0")
    a("s_load_dwordx4 s[12:15], s[0:1], 32")
    a("s_load_dwordx8 s[16:23], s[0:1], 56")
    a("s_load_dwordx4 s[24:27], s[0:1], 88")
    a("v_and_b32 v1, 63, v0")
    a("v_lshrrev_b32 v2, 6, v0")
    a("s_nop 0")
    a("v_readfirstlane_b32 s32, v2")
    a("s_cmp_ge_u32 s2, 224")
    a("s_cbranch_scc1 k_prep")
    a(f"s_and_b32 s{XCD}, s2, 7")
    a(f"s_lshr_b32 s{J}, s2, 3")
    a(f"s_mul_i32 s{T0}, s{J}, 37")
    a(f"s_lshr_b32 s{T0}, s{T0}, 8")
    a(f"s_mul_i32 s{T1}, s{T0}, 7")
    a(f"s_sub_u32 s{CB}, s{J}, s{T1}")
    a(f"s_and_b32 s{T1}, s{XCD}, 4")
    a(f"s_add_u32 s{RB}, s{T1}, s{T0}")
    a(f"s_and_b32 s{T1}, s{XCD}, 3")
    a(f"s_mul_i32 s{T1}, s{T1}, 7")
    a(f"s_add_u32 s{FB}, s{T1}, s{CB}")
    a(f"s_lshl_b32 s{T1}, s{XCD}, 2")
    a(f"s_add_u32 s{TB}, s{T1}, s{T0}")
    a("s_cmp_ge_u32 s32, 8")
    a("s_cbranch_scc1 k_helper")

    a.role = "g"
    TG, CG = R0, R1
    a(f"s_lshr_b32 s{TG}, s32, 1")
    a(f"s_and_b32 s{CG}, s32, 1")
    AR = 10
    a("v_and_b32 v2, 31, v1")
    a("v_lshrrev_b32 v3, 5, v1")
    a("v_bfe_u32 v4, v1, 2, 2")
    a("v_xor_b32 v4, v3, v4")
    a(f"s_lshl_b32 s{T0}, s32, 5")
    a(f"v_add_u32 v5, s{T0}, v2")
    a("v_lshlrev_b32 v5, 6, v5")
    a(f"v_lshl_add_u32 v{AR+0}, v4, 4, v5")
    a(f"v_xor_b32 v{AR+1}, 0x800, v{AR+0}")
    a(f"v_xor_b32 v{AR+2}, 32, v{AR+0}")
    a(f"v_xor_b32 v{AR+3}, 32, v{AR+1}")
    a("v_bfe_u32 v4, v1, 4, 1")
    a("v_bfe_u32 v5, v1, 2, 2")
    a("v_bfe_u32 v6, v1, 3, 1")
    a("v_lshl_or_b32 v6, v4, 1, v6")
    a(f"s_lshl_b32 s{T0}, s{CG}, 1")
    a(f"v_xor_b32 v6, s{T0}, v6")
    a("v_lshl_add_u32 v7, v3, 3, v5")
    a("v_lshlrev_b32 v7, 7, v7")
    a("v_lshl_add_u32 v7, v4, 12, v7")
    a("v_lshl_add_u32 v7, v6, 5, v7")
    a("v_and_b32 v8, 3, v1")
    a("v_lshl_add_u32 v7, v8, 3, v7")
    a(f"v_add_u32 v{AR+4}, 0x4000, v7")
    a(f"v_xor_b32 v{AR+5}, 32, v{AR+4}")
    for i in range(6):
        a(f"v_add_u32 v{AR+6+i}, {SPS * STAGE}, v{AR+i}")
    a("v_mov_b32 v28, 0")
    a("v_mov_b32 v29, 0")
    a("v_mov_b32 v22, 0")
    a("v_and_b32 v24, 15, v1")
    a("v_lshlrev_b32 v24, 2, v24")
    a(f"s_mov_b32 s{T5}, 0")
    a("s_waitcnt lgkmcnt(0)")
    srd(a, 28, WS, WS_REC)
    HF, YF = R2, R3
    a(f"s_lshl_b32 s{HF}, s{RB}, 9")
    a(f"s_lshl_b32 s{T0}, s{FB}, 2")
    a(f"s_add_u32 s{HF}, s{HF}, s{T0}")
    a(f"s_add_u32 s{HF}, s{HF}, {HFLAG}")
    a(f"s_lshl_b32 s{YF}, s2, 9")
    a(f"s_add_u32 s{YF}, s{YF}, {FLAG_OFF}")
    if E("TGLOB"):
        lb = a.new("tg")
        a("s_cmp_lg_u32 s32, 0")
        a(f"s_cbranch_scc1 {lb}")
        a("s_not_b32 s98, s96")
        a("v_mov_b32 v2, s98")
        a("s_mov_b64 exec, 1")
        a(f"global_atomic_umax v22, v2, s[{DBG}:{DBG+1}] offset:128 sc1")
        a("s_mov_b64 exec, -1")
        a.lab(lb)
    a("s_cmp_eq_u32 s32, 7")
    a("s_cbranch_scc1 k_init")
    if E("GTOUCH", "1") == "1":
        srd(a, SA, Q, 2048 * 896)
        srd(a, SB, WG, 448 * 3584)
        srd(a, SC, WU, 448 * 3584)
        a(f"s_lshr_b32 s{T0}, s{XCD}, 2")
        a(f"s_lshl_b32 s{T0}, s{T0}, 10")
        a(f"s_mul_i32 s{T1}, s{J}, 37")
        a(f"s_add_u32 s{T0}, s{T0}, s{T1}")
        a(f"s_mul_i32 s{T0}, s{T0}, 896")
        a(f"s_lshl_b32 s{T1}, s32, 7")
        a(f"s_add_u32 s{T0}, s{T0}, s{T1}")
        a("v_mul_u32_u24 v2, 896, v1")
        a(f"s_lshl_b32 s{T1}, s{J}, 4")
        a(f"v_add_u32 v3, s{T1}, v1")
        a("v_mul_u32_u24 v4, 0x2493, v3")
        a("v_lshrrev_b32 v4, 16, v4")
        a("v_mul_u32_u24 v5, 7, v4")
        a("v_sub_u32 v5, v3, v5")
        a("v_mul_u32_u24 v4, 3584, v4")
        a("v_lshl_add_u32 v4, v5, 7, v4")
        a(f"s_and_b32 s{T1}, s{XCD}, 3")
        a(f"s_mul_i32 s{T1}, s{T1}, 896")
        a(f"s_mul_i32 s{T2}, s32, {64 * 3584}")
        a(f"s_add_u32 s{T1}, s{T1}, s{T2}")
        TD = int(E("TD", "0"))
        if TD:
            lb = a.new("k_td")
            a(f"s_cmp_lt_u32 s32, {int(E('TS0', '2'))}")
            a(f"s_cbranch_scc1 {lb}")
            a(f"s_sleep {TD}")
            a.lab(lb)
        a("s_mov_b32 exec_hi, 31")
        a(f"buffer_load_dword v6, v2, s[{SA}:{SA+3}], s{T0} offen")
        a("s_mov_b64 exec, 0xffff")
        a(f"buffer_load_dword v7, v4, s[{SB}:{SB+3}], s{T1} offen")
        a(f"buffer_load_dword v8, v4, s[{SC}:{SC+3}], s{T1} offen")
        a("s_mov_b64 exec, -1")
    a("s_branch k_main")
    a.lab("k_init")
    a("v_mov_b32 v2, 0")
    a(f"v_lshl_add_u32 v3, v1, 2, 0")
    a(f"v_add_u32 v3, {SYNC}, v3")
    a("s_mov_b64 exec, 0xff")
    a("ds_write_b32 v3, v2")
    a("s_waitcnt lgkmcnt(0)")
    a("s_mov_b64 exec, -1")
    a(f"global_load_dword v23, v22, s[{DBG}:{DBG+1}] sc1")
    if E("CTOUCH", "0") == "1":
        a("s_getpc_b64 s[98:99]")
        a.lab("k_pc")
        a(f"s_sub_u32 s98, s98, k_pc-{KN}")
        a("s_subb_u32 s99, s99, 0")
        a(f"s_lshl_b32 s{T0}, s{J}, 11")
        a("v_lshlrev_b32 v2, 7, v1")
        a(f"v_add_u32 v2, s{T0}, v2")
        a(f"v_min_u32 v2, k_last-{KN}, v2")
        a("s_mov_b64 exec, 0xffff")
        a("global_load_dword v9, v2, s[98:99]")
        a("s_mov_b64 exec, -1")
    a.lab("k_main")
    a(f"s_cmp_ge_u32 s{FB}, 16")
    a("s_cbranch_scc1 k_nostat")
    srd(a, SA, Q, 2048 * 896)
    a(f"s_lshl_b32 s{T0}, s{RB}, 8")
    a(f"s_lshl_b32 s{T1}, s{FB}, 4")
    a(f"s_add_u32 s{T0}, s{T0}, s{T1}")
    a(f"s_lshl_b32 s{T1}, s32, 1")
    a(f"s_add_u32 s{T0}, s{T0}, s{T1}")
    a("v_lshrrev_b32 v2, 5, v1")
    a(f"v_add_u32 v2, s{T0}, v2")
    a(f"s_movk_i32 s{T1}, 896")
    a(f"v_mul_lo_u32 v3, v2, s{T1}")
    a("v_and_b32 v4, 31, v1")
    a("v_lshl_add_u32 v3, v4, 4, v3")
    for r in range(36, 40): a(f"v_mov_b32 v{r}, 0")
    a(f"buffer_load_dwordx4 v[32:35], v3, s[{SA}:{SA+3}], 0 offen")
    a("s_mov_b32 exec_lo, 0xffffff")
    a("s_mov_b32 exec_hi, 0xffffff")
    a(f"buffer_load_dwordx4 v[36:39], v3, s[{SA}:{SA+3}], 0 offen offset:512")
    a("s_mov_b64 exec, -1")
    for r in range(40, 44): a(f"v_mov_b32 v{r}, 0")
    a("v_lshlrev_b32 v2, 3, v2")
    a("s_waitcnt vmcnt(0)")
    for i in range(8):
        t = 44 + 2 * (i & 1)
        unpack(a, t, 32 + i)
        a(f"v_add_f32 v40, v40, v{t}")
        a(f"v_add_f32 v41, v41, v{t+1}")
        a(f"v_fmac_f32 v42, v{t}, v{t}")
        a(f"v_fmac_f32 v43, v{t+1}, v{t+1}")
    a("v_add_f32 v40, v40, v41")
    a("v_add_f32 v42, v42, v43")
    for dpp in ("quad_perm:[1,0,3,2]", "quad_perm:[2,3,0,1]", "row_ror:4", "row_ror:8"):
        a("s_nop 1")
        a(f"v_add_f32_dpp v40, v40, v40 {dpp} row_mask:0xf bank_mask:0xf")
        a(f"v_add_f32_dpp v42, v42, v42 {dpp} row_mask:0xf bank_mask:0xf")
    a("v_mov_b32 v41, v40")
    a("v_mov_b32 v43, v42")
    a("s_nop 1")
    a("v_permlane16_swap_b32 v40, v41")
    a("v_permlane16_swap_b32 v42, v43")
    a("s_nop 1")
    a("v_add_f32 v40, v40, v41")
    a("v_add_f32 v42, v42, v43")
    a("v_mul_f32 v40, 0x3b124925, v40")
    a("v_mul_f32 v42, 0x3b124925, v42")
    a("v_fma_f32 v42, -v40, v40, v42")
    a("v_max_f32 v42, 0, v42")
    bf16r(a, 44, 40)
    bf16r(a, 42, 42)
    a("v_add_f32 v42, 0x3727c5ac, v42")
    bf16r(a, 42, 42)
    a("v_sqrt_f32 v42, v42")
    a("s_nop 0")
    bf16r(a, 45, 42)
    a(f"s_mov_b32 s{T0}, {STATS_OFF}")
    a("s_mov_b32 exec_lo, 1")
    a("s_mov_b32 exec_hi, 1")
    a(f"buffer_store_dwordx2 v[44:45], v2, s[28:31], s{T0} offen sc1")
    a("s_mov_b64 exec, -1")
    a.lab("k_nostat")

    SETS = {0: 32, 1: 48}
    def reads(c, st_):
        base = SETS[st_]
        stg = c % NST
        R, o = AR + 6 * (stg // SPS), (stg % SPS) * STAGE
        a(f"ds_read_b128 {v(base,4)}, v{R + 2*st_} offset:{o}")
        for ct in range(2):
            for half in range(2):
                a(f"ds_read_b64_tr_b16 {v(base + 8 + 4*ct + 2*half, 2)}, v{R + 4 + ct} offset:{o + st_*2048 + half*512}")
        a(f"ds_read_b128 {v(base+4,4)}, v{R + 2*st_ + 1} offset:{o}")
    def mfmas(c, st_):
        base = SETS[st_]
        first = (2 * c + st_ == 0)
        k = 0
        for tt in range(2):
            for ct in range(2):
                acc = 64 + 16 * (2 * ct + tt)
                cc = "0" if first else v(acc, 16)
                a(f"v_mfma_f32_32x32x16_bf16 {v(acc,16)}, {v(base + 8 + 4*ct, 4)}, {v(base + 4*tt, 4)}, {cc}")
                k += 1
    PC = int(E("PC", "11"))
    SC0 = int(E("SC0", "8"))
    SPC = int(E("SPC", "4"))
    SCD = int(E("SCD", "3"))
    def stats_ok(fail):
        a("v_cmp_ne_u32 vcc, 1, v25")
        a("s_nop 3")
        a("s_cmp_lg_u64 vcc, 0")
        a(f"s_cbranch_scc1 {fail}")
    def stats_load():
        a("v_lshlrev_b32 v26, 5, v1")
        a(f"s_lshl_b32 s{T0}, s{RB}, 11")
        a(f"s_add_u32 s{T0}, s{T0}, {STATS_OFF}")
        a(f"buffer_load_dwordx4 v[128:131], v26, s[28:31], s{T0} offen sc1")
        a(f"buffer_load_dwordx4 v[132:135], v26, s[28:31], s{T0} offen offset:16 sc1")
    if E("TB0"):
        lp = a.new("tprobe")
        a.lab(lp)
        a("s_memrealtime s[98:99]")
        a("s_waitcnt lgkmcnt(0)")
        a("s_sub_u32 s98, s98, s96")
        a(f"s_cmp_lt_u32 s98, {int(E('TB0'))}")
        a(f"s_cbranch_scc1 {lp}")
    a("s_barrier")
    a.stamp(2)
    reads(0, 0)
    for c in range(14):
        reads(c, 1)
        a("s_waitcnt lgkmcnt(6)")
        mfmas(c, 0)
        a("s_waitcnt lgkmcnt(0)")
        if c < 13:
            a("s_barrier")
            if E("LOOPST") and c in (1, 3, 5, 7, 9, 11): a.stamp(5 + c // 2)
            reads(c + 1, 0)
        if c == SPC - 1:
            a("s_waitcnt vmcnt(0)")
        if c == SPC:
            lb, lp, ok = a.new("k_sp"), a.new("k_spl"), a.new("k_spk")
            a("s_cmp_lg_u32 s32, 7")
            a(f"s_cbranch_scc1 {lb}")
            a.lab(lp)
            a(f"v_readfirstlane_b32 s{T0}, v23")
            a("s_nop 3")
            a(f"s_cmp_ge_u32 s{T0}, 32")
            a(f"s_cbranch_scc1 {ok}")
            a("s_sleep 8")
            a(f"global_load_dword v23, v22, s[{DBG}:{DBG+1}] sc1")
            a("s_waitcnt vmcnt(0)")
            a(f"s_branch {lp}")
            a.lab(ok)
            a(f"s_cmp_ge_u32 s{FB}, 16")
            a(f"s_cbranch_scc1 {lb}")
            a(f"s_and_b32 s{T1}, s{RB}, 3")
            a(f"s_mul_i32 s{T1}, s{T1}, 56")
            a(f"s_and_b32 s{T0}, s{RB}, 4")
            a(f"s_add_u32 s{T0}, s{T0}, s{T1}")
            a(f"s_lshl_b32 s{T0}, s{T0}, 9")
            a(f"s_lshl_b32 s{T1}, s{FB}, 2")
            a(f"s_add_u32 s{T0}, s{T0}, s{T1}")
            a(f"s_add_u32 s{T0}, s{T0}, {SFLAG}")
            a("v_lshrrev_b32 v26, 2, v1")
            a("v_lshlrev_b32 v26, 12, v26")
            a("v_and_b32 v27, 3, v1")
            a("v_lshl_add_u32 v26, v27, 9, v26")
            a("v_mov_b32 v27, 1")
            a("s_mov_b32 exec_lo, 0xfffffff")
            a("s_mov_b32 exec_hi, 0")
            a(f"buffer_store_dword v27, v26, s[28:31], s{T0} offen sc1")
            a("s_mov_b64 exec, -1")
            a.lab(lb)
        if c == SC0:
            lb = a.new("k_s0")
            a("s_cmp_lg_u32 s32, 7")
            a(f"s_cbranch_scc1 {lb}")
            a("s_waitcnt vmcnt(0)")
            a(f"buffer_load_dword v25, v24, s[28:31], s{YF} offen offset:384 sc1")
            a.lab(lb)
        if c in (SC0 + 2, SC0 + 4):
            lb, rt = a.new("k_s1"), a.new("k_s1r")
            a("s_cmp_lg_u32 s32, 7")
            a(f"s_cbranch_scc1 {lb}")
            a(f"s_cmp_eq_u32 s{T5}, 1")
            a(f"s_cbranch_scc1 {lb}")
            a("s_waitcnt vmcnt(0)")
            stats_ok(rt)
            stats_load()
            a(f"s_mov_b32 s{T5}, 1")
            a(f"s_branch {lb}")
            a.lab(rt)
            a(f"buffer_load_dword v25, v24, s[28:31], s{YF} offen offset:384 sc1")
            a.lab(lb)
        if c == int(E('TKC', '-1')):
            lb = a.new("k_notk")
            a("s_cmp_lg_u32 s32, 6")
            a(f"s_cbranch_scc1 {lb}")
            srd(a, SA, SSMK, 448 * 4096)
            a("v_lshlrev_b32 v31, 7, v1")
            a(f"s_lshl_b32 s{T0}, s2, 13")
            a(f"buffer_load_dword v31, v31, s[{SA}:{SA+3}], s{T0} offen")
            a.lab(lb)
        if c == int(E("KVT", "-1")):
            lb = a.new("k_nokv")
            a("s_cmp_lg_u32 s32, 5")
            a(f"s_cbranch_scc1 {lb}")
            srd(a, SA, K_, 2048 * 896)
            srd(a, SB, V_, 2048 * 896)
            a("v_lshlrev_b32 v31, 7, v1")
            a(f"s_lshl_b32 s{T0}, s2, 13")
            a(f"buffer_load_dword v30, v31, s[{SA}:{SA+3}], s{T0} offen")
            a(f"buffer_load_dword v31, v31, s[{SB}:{SB+3}], s{T0} offen")
            a.lab(lb)
        mfmas(c, 1)
    a.stamp(3)
    a.post = True
    if E("EPRIO", "1") == "1": a("s_setprio 2")
    a("v_and_b32 v2, 31, v1")
    a(f"s_lshl_b32 s{T0}, s32, 5")
    a(f"v_add_u32 v2, s{T0}, v2")
    a("v_lshlrev_b32 v3, 2, v2")
    a(f"v_add_u32 v4, {A_STATS}, v3")
    a("v_mov_b32 v3, v4")
    a("v_lshrrev_b32 v5, 5, v1")
    a("v_lshlrev_b32 v5, 4, v5")
    a(f"s_lshl_b32 s{T0}, s{CG}, 7")
    a(f"s_add_u32 s{T0}, s{T0}, {A_CS}")
    a(f"v_add_u32 v6, s{T0}, v5")
    a("v_lshlrev_b32 v2, 4, v1")
    a("v_xor_b32 v3, 128, v3")
    lb, lp, rt, ok = a.new("k_icd"), a.new("k_icl"), a.new("k_icr"), a.new("k_ick")
    a("s_cmp_lg_u32 s32, 7")
    a(f"s_cbranch_scc1 {lb}")
    a(f"s_cmp_eq_u32 s{T5}, 1")
    a(f"s_cbranch_scc1 {ok}")
    a.lab(lp)
    a("s_waitcnt vmcnt(0)")
    stats_ok(rt)
    stats_load()
    a(f"s_branch {ok}")
    a.lab(rt)
    a("s_sleep 2")
    a(f"buffer_load_dword v25, v24, s[28:31], s{YF} offen offset:384 sc1")
    a(f"s_branch {lp}")
    a.lab(ok)
    a("s_waitcnt vmcnt(0)")
    for i in range(4):
        a(f"v_xor_b32 v{136+i}, 0x80000000, v{128+2*i}")
    a("v_lshlrev_b32 v26, 4, v1")
    a(f"v_add_u32 v26, {A_STATS}, v26")
    a("ds_write_b128 v26, v[136:139]")
    a.lab(lb)
    if E("TE1"):
        lp = a.new("tprobe")
        a.lab(lp)
        a("s_memrealtime s[98:99]")
        a("s_waitcnt lgkmcnt(0)")
        a("s_sub_u32 s98, s98, s96")
        a(f"s_cmp_lt_u32 s98, {int(E('TE1'))}")
        a(f"s_cbranch_scc1 {lp}")
    a("s_waitcnt lgkmcnt(0)")
    a("s_barrier")
    a.stamp(4)
    a("ds_read_b32 v28, v4")
    a("ds_read_b32 v30, v3")
    CSR, CS2 = 128, 32
    for half, base in ((0, CSR), (1, CS2)):
        for ct in range(2):
            for mat in range(2):
                for q in range(2):
                    a(f"ds_read_b128 {v(base + 16*ct + 8*mat + 4*q, 4)}, v6 offset:{mat*512 + half*256 + ct*64 + q*32}")
    a("s_waitcnt lgkmcnt(0)")
    for i in range(0, 32, 2):
        a(f"v_pk_add_f32 {v(CSR+i,2)}, {v(CSR+i,2)}, {v(CS2+i,2)}")
    for tt in range(2):
        mr = 28 + 2 * tt
        a(f"s_lshl_b32 s{T0}, s{RB}, 3")
        a(f"s_lshl_b32 s{T1}, s{TG}, 1")
        a(f"s_add_u32 s{T0}, s{T0}, s{T1}")
        a(f"s_xor_b32 s{T1}, s{CG}, {tt}")
        a(f"s_add_u32 s{T0}, s{T0}, s{T1}")
        a(f"s_mul_i32 s{T0}, s{T0}, 224")
        a(f"s_lshl_b32 s{T1}, s{FB}, 3")
        a(f"s_add_u32 s{T0}, s{T0}, s{T1}")
        a(f"s_lshl_b32 s{T1}, s{CG}, 2")
        a(f"s_add_u32 s{T0}, s{T0}, s{T1}")
        a(f"s_lshl_b32 s{T0}, s{T0}, 9")
        for ct in range(2):
            acc = 64 + 16 * (2 * ct + tt)
            cs = CSR + 16 * ct
            for i in range(0, 16, 2):
                a(f"v_pk_fma_f32 {v(acc+i,2)}, {v(mr,2)}, {v(cs+i,2)}, {v(acc+i,2)} op_sel:[0,0,0] op_sel_hi:[0,1,1]")
            for i in range(8):
                a(f"v_max_f32 v{acc+i}, 0, v{acc+i}")
            for i in range(4):
                a(f"v_pk_mul_f32 {v(acc+2*i,2)}, {v(acc+2*i,2)}, {v(acc+8+2*i,2)}")
            O = 32 + 4 * (2 * tt + ct)
            for i in range(4):
                a(f"v_cvt_pk_bf16_f32 v{O+i}, v{acc+2*i}, v{acc+2*i+1}")
            a(f"buffer_store_dwordx4 {v(O,4)}, v2, s[28:31], s{T0} offen offset:{ct*1024} sc1")
    a.stamp(5)
    srd(a, SB, WD, 1792 * 896)
    a("v_lshlrev_b32 v10, 4, v1")
    a("v_lshrrev_b32 v2, 3, v1")
    a("v_mul_u32_u24 v2, 896, v2")
    a("v_bfe_u32 v3, v1, 4, 1")
    a("v_lshlrev_b32 v3, 2, v3")
    a("v_and_b32 v4, 7, v1")
    a("v_xor_b32 v3, v3, v4")
    a("v_lshl_add_u32 v2, v3, 4, v2")
    a(f"s_lshl_b32 s{T0}, s{CB}, 7")
    a(f"v_add_u32 v11, s{T0}, v2")
    RBASE, WROW, HB0, HB1 = R0, R1, R4, R5
    a(f"s_mul_i32 s{RBASE}, s32, {RING}")
    a(f"s_mul_i32 s{WROW}, s32, {14 * 16 * 896}")
    a(f"s_mul_i32 s{HB0}, s{TB}, 448")
    a(f"s_mul_i32 s{T0}, s32, 28")
    a(f"s_add_u32 s{HB0}, s{HB0}, s{T0}")
    a(f"s_lshl_b32 s{HB0}, s{HB0}, 9")
    a(f"s_add_u32 s{HB1}, s{HB0}, {224 * 512}")
    a("v_bfe_u32 v2, v1, 5, 1")
    a("v_bfe_u32 v3, v1, 2, 2")
    a("v_lshl_add_u32 v2, v2, 2, v3")
    a("v_lshlrev_b32 v2, 7, v2")
    a("v_bfe_u32 v3, v1, 4, 1")
    a("v_and_b32 v4, 3, v1")
    a("v_lshlrev_b32 v4, 3, v4")
    a("v_lshl_or_b32 v4, v3, 5, v4")
    a("v_bfe_u32 v3, v1, 3, 1")
    a("v_lshl_or_b32 v4, v3, 6, v4")
    a(f"v_add3_u32 v12, v2, v4, s{RBASE}")
    a("v_xor_b32 v13, 64, v12")
    a("v_lshlrev_b32 v5, 12, v1")
    a("s_waitcnt vmcnt(0)")
    a.stamp(6)
    arrive_publish(a, CNT_H, 8, HF, 5, 28)
    a("s_setprio 0")
    if E("GATE", "1") == "1":
        lp, dn = a.new("gate"), a.new("gated")
        a(f"v_mov_b32 v3, {CNT_U}")
        a.lab(lp)
        a("ds_read_b32 v2, v3")
        a("s_waitcnt lgkmcnt(0)")
        a(f"v_readfirstlane_b32 s{T0}, v2")
        a("s_nop 3")
        a(f"s_cmp_eq_u32 s{T0}, 4")
        a(f"s_cbranch_scc1 {dn}")
        a("s_sleep 1")
        a(f"s_branch {lp}")
        a.lab(dn)
    ops = ["flag"]
    WR = [128, 136, 144, 152, 160, 48, 56]
    HB = [16, 24, 32, 40]
    def issue_w(i):
        sl = i % RING_D
        for hh in range(2):
            a(f"s_add_u32 m0, s{RBASE}, {sl * 2048 + hh * 1024}")
            a(f"s_add_u32 s{T0}, s{WROW}, {(16 * i + 8 * hh) * 896}")
            a(f"buffer_load_dwordx4 v11, s[{SB}:{SB+3}], s{T0} offen lds")
            ops.append(("w", i))
    def issue_h(i):
        for tt in range(2):
            a(f"s_add_u32 s{T0}, s{HB0 + tt}, {i * 1024}")
            a(f"buffer_load_dwordx4 {v(HB[i % 4] + 4*tt, 4)}, v10, s[28:31], s{T0} offen sc1")
            ops.append(("h", i))
    def wait_for(*keys):
        last = max(max(n for n, o in enumerate(ops) if o == k) for k in keys)
        return len(ops) - 1 - last
    def treads(i, base):
        sl = i % RING_D
        for dt in range(2):
            for half in range(2):
                a(f"ds_read_b64_tr_b16 {v(base + 4*dt + 2*half, 2)}, v{12 + dt} offset:{sl*2048 + half*1024}")
    PACE = int(E("PACE", "6"))
    nw = 0
    for i in range(PACE):
        issue_w(nw); nw += 1
    for i in range(13):
        a(f"s_waitcnt vmcnt({wait_for(('w', i))})")
        if i < 7:
            treads(i, WR[i])
        if nw <= 12:
            if nw >= RING_D:
                assert nw - RING_D <= i
                a("s_waitcnt lgkmcnt(0)")
            issue_w(nw); nw += 1
    a.stamp(7)
    lp, dn = a.new("hpoll"), a.new("hpolled")
    a(f"s_mul_i32 s{T4}, s32, 7")
    a(f"s_lshr_b32 s{T4}, s{T4}, 1")
    a(f"s_lshl_b32 s{T4}, s{T4}, 2")
    a(f"s_add_u32 s{T4}, s{T4}, s{YF}")
    a("v_and_b32 v3, 3, v1")
    a("v_lshlrev_b32 v3, 2, v3")
    a.lab(lp)
    a(f"buffer_load_dword v2, v3, s[28:31], s{T4} offen sc1")
    a("s_waitcnt vmcnt(0)")
    a("v_cmp_ne_u32 vcc, 1, v2")
    a("s_nop 3")
    a("s_cmp_eq_u64 vcc, 0")
    a(f"s_cbranch_scc1 {dn}")
    a(f"s_sleep {int(E('HSLEEP', '6'))}")
    a(f"s_branch {lp}")
    a.lab(dn)
    a.stamp(8)
    ops.clear(); ops.append("base")
    for i in range(4):
        issue_h(i)
    for i in range(14):
        a(f"s_waitcnt vmcnt({wait_for(('h', i))})" + (" lgkmcnt(0)" if i in (0, 7, 13) else ""))
        base = WR[i % 7]
        for tt in range(2):
            for dt in range(2):
                acc = 64 + 16 * (2 * dt + tt)
                cc = "0" if i == 0 else v(acc, 16)
                a(f"v_mfma_f32_32x32x16_bf16 {v(acc,16)}, {v(base + 4*dt, 4)}, {v(HB[i % 4] + 4*tt, 4)}, {cc}")
        if i + 4 < 14: issue_h(i + 4)
        if i < 6:
            treads(i + 7, WR[i])
        if i == 0:
            a("s_waitcnt lgkmcnt(0)")
            issue_w(13)
        if i == 8:
            a(f"s_waitcnt vmcnt({min(wait_for(('w', 13)), 63)})")
            treads(13, WR[6])
            a("v_mov_b32 v2, 1")
            a(f"v_mov_b32 v3, {CNT_R}")
            a("s_waitcnt lgkmcnt(0)")
            a("s_mov_b64 exec, 1")
            a("ds_add_u32 v3, v2")
            a("s_mov_b64 exec, -1")
        if i == 9:
            a(f"s_lshl_b32 s{T0}, s{TB}, 6")
            a("v_lshrrev_b32 v2, 3, v0")
            a(f"v_add_u32 v3, s{T0}, v2")
            a(f"s_movk_i32 s{T1}, 896")
            a(f"v_mul_lo_u32 v4, v3, s{T1}")
            a("v_and_b32 v5, 7, v0")
            a("v_lshl_add_u32 v4, v5, 4, v4")
            a(f"s_lshl_b32 s{T0}, s{CB}, 7")
            a(f"v_add_u32 v14, s{T0}, v4")
            srd(a, SA, Q, 2048 * 896)
            a(f"buffer_load_dwordx4 v[128:131], v14, s[{SA}:{SA+3}], 0 offen")
            ops.append("x")
        if i == 6: a.stamp(9)
    a.stamp(10)
    lp, dn = a.new("pwait"), a.new("pwaited")
    a(f"v_mov_b32 v4, {CNT_Y}")
    a.lab(lp)
    a("ds_read_b64 v[2:3], v4")
    a("s_waitcnt lgkmcnt(0)")
    a(f"v_readfirstlane_b32 s{T0}, v2")
    a(f"v_readfirstlane_b32 s{T1}, v3")
    a("s_nop 3")
    a(f"s_lshl_b32 s{T0}, s{T0}, 8")
    a(f"s_add_u32 s{T0}, s{T0}, s{T1}")
    a(f"s_cmp_eq_u32 s{T0}, 0x408")
    a(f"s_cbranch_scc1 {dn}")
    a("s_sleep 1")
    a(f"s_branch {lp}")
    a.lab(dn)
    a("v_and_b32 v2, 31, v1")
    a("v_mul_u32_u24 v2, 272, v2")
    a("v_lshrrev_b32 v3, 5, v1")
    a("v_lshl_add_u32 v2, v3, 4, v2")
    a(f"s_mul_i32 s{T0}, s32, {PART}")
    a(f"v_add_u32 v2, s{T0}, v2")
    for tt in range(2):
        for dt in range(2):
            acc = 64 + 16 * (2 * dt + tt)
            for q in range(4):
                a(f"ds_write_b128 v2, {v(acc + 4*q, 4)} offset:{tt*32*272 + dt*128 + q*32}")
    a("s_branch k_final")

    a.lab("k_helper")
    a.role = "c"
    HW, MAT, MX, MW = R0, R1, R2, R3
    a(f"s_sub_u32 s{HW}, s32, 8")
    a(f"s_lshr_b32 s{MAT}, s{HW}, 1")
    a(f"s_lshl_b32 s{MX}, s{HW}, 12")
    a(f"s_lshl_b32 s{MW}, s{HW}, 11")
    a(f"s_add_u32 s{MW}, s{MW}, 16384")
    a(f"s_lshl_b32 s{T0}, s{RB}, 8")
    a(f"s_lshl_b32 s{T1}, s{HW}, 6")
    a(f"s_add_u32 s{T0}, s{T0}, s{T1}")
    a("v_lshrrev_b32 v2, 2, v1")
    a(f"v_add_u32 v2, s{T0}, v2")
    a(f"s_movk_i32 s{T1}, 896")
    a(f"v_mul_lo_u32 v2, v2, s{T1}")
    a("v_and_b32 v3, 3, v1")
    a("v_bfe_u32 v4, v1, 4, 2")
    a("v_xor_b32 v3, v3, v4")
    a("v_lshl_add_u32 v10, v3, 4, v2")
    a(f"s_and_b32 s{T0}, s{HW}, 1")
    a(f"s_lshl_b32 s{T0}, s{T0}, 4")
    a("v_lshrrev_b32 v2, 3, v1")
    a(f"v_add_u32 v2, s{T0}, v2")
    a(f"s_movk_i32 s{T1}, 3584")
    a(f"v_mul_lo_u32 v2, v2, s{T1}")
    a(f"s_lshl_b32 s{T0}, s{FB}, 7")
    a(f"v_add_u32 v2, s{T0}, v2")
    a("v_bfe_u32 v4, v1, 4, 1")
    a("v_lshlrev_b32 v4, 1, v4")
    a(f"s_lshl_b32 s{T0}, s{MAT}, 2")
    a(f"v_or_b32 v4, s{T0}, v4")
    a("v_and_b32 v3, 7, v1")
    a("v_xor_b32 v5, v3, v4")
    a("v_lshl_add_u32 v11, v5, 4, v2")
    a("s_waitcnt lgkmcnt(0)")
    srd(a, SA, Q, 2048 * 896)
    a(f"s_cmp_eq_u32 s{MAT}, 1")
    a(f"s_cselect_b32 s{SB}, s{WU}, s{WG}")
    a(f"s_cselect_b32 s{SB+1}, s{WU+1}, s{WG+1}")
    a(f"s_and_b32 s{SB+1}, s{SB+1}, 0xffff")
    a(f"s_mov_b32 s{SB+2}, {448 * 3584}")
    a(f"s_mov_b32 s{SB+3}, 0x00020000")
    def dma(c):
        st = c % NST
        for i in range(2):
            a(f"s_add_u32 m0, s{MW}, {st * STAGE + 1024 * i}")
            a(f"s_mov_b32 s{T0}, {(c * 32 + 8 * i) * 3584}")
            a(f"buffer_load_dwordx4 v11, s[{SB}:{SB+3}], s{T0} offen lds")
        for i in range(4):
            a(f"s_add_u32 m0, s{MX}, {st * STAGE + 1024 * i}")
            a(f"s_mov_b32 s{T0}, {64 * c + 14336 * i}")
            a(f"buffer_load_dwordx4 v10, s[{SA}:{SA+3}], s{T0} offen lds")
    PRO = int(E("PRO", "3"))
    PRO0 = int(E("PRO0", "3"))
    for c in range(PRO0):
        dma(c)
    srd(a, 28, WS, WS_REC)
    a("v_lshrrev_b32 v2, 3, v1")
    a("v_lshlrev_b32 v2, 7, v2")
    a("v_lshl_add_u32 v2, v5, 4, v2")
    a(f"v_add_u32 v20, s{MW}, v2")
    a(f"v_add_u32 v21, {SPS * STAGE}, v20")
    for r in range(24, 32):
        a(f"v_mov_b32 v{r}, 0")
    a("v_lshlrev_b32 v9, 4, v1")
    CHN, KROW = R4, R5
    a(f"s_lshl_b32 s{CHN}, s2, 1")
    a(f"s_add_u32 s{CHN}, s{CHN}, s{MAT}")
    a(f"s_lshl_b32 s{KROW}, s{CHN}, 12")
    a(f"s_add_u32 s{SC}, s{SSMK}, s{KROW}")
    a(f"s_addc_u32 s{SC+1}, s{SSMK+1}, 0")
    a(f"s_and_b32 s{SC+1}, s{SC+1}, 0xffff")
    a(f"s_movk_i32 s{SC+2}, 4096")
    a(f"s_mov_b32 s{SC+3}, 0x00020000")
    a(f"s_lshl_b32 s{T0}, s2, 2")
    a(f"s_load_dword s{T6}, s[{SSMD}:{SSMD+1}], s{T0}")
    a("v_subrev_u32 v12, 32, v9")
    a("v_subrev_u32 v13, 16, v9")
    a("v_add_u32 v14, 992, v9")
    BUF = [32, 40]
    def hreads(c):
        b = BUF[c & 1]
        stg = c % NST
        o = (stg % SPS) * STAGE
        for i in range(2):
            a(f"ds_read_b128 {v(b + 4*i, 4)}, v{20 + stg//SPS} offset:{o + 1024*i}")
    def hsum(c):
        b = BUF[c & 1]
        for i in range(8):
            t = 48 + 2 * (i & 1)
            unpack(a, t, b + i)
            a(f"v_add_f32 v{24 + 2*(i & 3)}, v{24 + 2*(i & 3)}, v{t}")
            a(f"v_add_f32 v{25 + 2*(i & 3)}, v{25 + 2*(i & 3)}, v{t+1}")
    BD = 104
    roff = [None, 0, 1024, 2048, 2080]
    CBASE, UBASE = T4, T5
    a(f"s_mul_i32 s{CBASE}, s{MAT}, {CONV_CH}")
    a(f"s_add_u32 s{CBASE}, s{CBASE}, {CONV0}")
    a(f"s_add_u32 s{UBASE}, s{CBASE}, {4 * CPITCH}")
    a(f"v_add_u32 v15, s{CBASE}, v9")
    woff = [0, 1024, 2048, 3072, 3104]
    EE = 144
    def build(r):
        D = BD + 8 * r
        E_ = EE + 12 * (r & 1)
        a(f"ds_write_b128 v15, {v(D,4)} offset:{woff[r]}")
        for p in range(4):
            a(f"v_alignbit_b32 v{E_+p}, v{D+p+1}, v{D+p}, 16")
        for p in range(4):
            a(f"v_mov_b32 v{E_+4+p}, v{D+p+1}")
        for p in range(4):
            a(f"v_alignbit_b32 v{E_+8+p}, v{D+p+2}, v{D+p+1}, 16")
        for sidx in range(3):
            a(f"ds_write_b128 v15, {v(E_+4*sidx,4)} offset:{woff[r] + (sidx+1)*CPITCH}")
    hops = []
    for c in range(PRO0): hops += [("d", c)] * 6
    nxt_d = PRO0
    def hwait(key):
        last = max(n for n, o in enumerate(hops) if o == key)
        return len(hops) - 1 - last
    KC = int(E("KC", "11"))
    BC = 99
    a(f"s_waitcnt vmcnt({hwait(('d', 0))})")
    a("s_barrier")
    a.stamp(2)
    for c in range(14):
        hreads(c)
        lim = min(13, c + PRO if c >= int(E("CATCH", "1")) else c + PRO0)
        while nxt_d <= lim:
            dma(nxt_d); hops += [("d", nxt_d)] * 6; nxt_d += 1
        if c == KC:
            a(f"s_lshl_b32 s{T2}, s2, 9")
            a(f"s_add_u32 s{T2}, s{T2}, {PFLAG}")
            a("v_and_b32 v17, 31, v1")
            a("v_lshlrev_b32 v17, 2, v17")
            a(f"buffer_load_dwordx4 {v(BD,4)}, v12, s[{SC}:{SC+3}], 0 offen")
            a(f"buffer_load_dwordx2 {v(BD+4,2)}, v13, s[{SC}:{SC+3}], 0 offen")
            for r in range(1, 5):
                a(f"buffer_load_dwordx4 {v(BD+8*r,4)}, v14, s[{SC}:{SC+3}], 0 offen offset:{roff[r]}")
                a(f"buffer_load_dwordx2 {v(BD+8*r+4,2)}, v14, s[{SC}:{SC+3}], 0 offen offset:{roff[r]+16}")
            hops += ["k"] * 10
            srd(a, SA, WD, 1792 * 896)
            a(f"s_mul_i32 s{T0}, s2, 7168")
            a(f"s_lshl_b32 s{T1}, s{HW}, 11")
            a(f"s_add_u32 s{T0}, s{T0}, s{T1}")
            a(f"buffer_load_dwordx4 v[52:55], v9, s[{SA}:{SA+3}], s{T0} offen")
            a(f"buffer_load_dwordx4 v[52:55], v9, s[{SA}:{SA+3}], s{T0} offen offset:1024")
            hops += ["p"] * 2
        if c == int(E("PMC", "13")):
            a(f"buffer_load_dword v16, v17, s[28:31], s{T2} offen sc1")
            hops += ["pm"]
        if c > 0:
            hsum(c - 1)
        if BC <= c < BC + 5 and not E('NOBUILD'):
            assert BC > KC + PRO
            build(c - BC)
        if c < 13:
            a(f"s_waitcnt vmcnt({hwait(('d', c + 1))}) lgkmcnt(0)")
            a("s_barrier")
        else:
            a("s_waitcnt lgkmcnt(0)")
    def urev_try():
        sk = a.new("k_urs")
        a("v_cmp_ne_u32 vcc, 1, v16")
        a(f"s_mov_b32 s{MX}, 0")
        a("s_nop 2")
        a("s_cmp_lg_u64 vcc, 0")
        a(f"s_cbranch_scc1 {sk}")
        a(f"s_add_u32 s{T0}, s{KROW}, {UREV_OFF}")
        a(f"s_add_u32 s{SC}, s{WS}, s{T0}")
        a(f"s_addc_u32 s{SC+1}, s{WS+1}, 0")
        a(f"s_and_b32 s{SC+1}, s{SC+1}, 0xffff")
        a(f"s_movk_i32 s{SC+2}, 4096")
        a(f"s_mov_b32 s{SC+3}, 0x00020000")
        for r in range(5):
            a(f"s_add_u32 m0, s{UBASE}, {r * 1024}")
            a(f"s_movk_i32 s{T0}, {r * 1024}")
            a(f"buffer_load_dwordx4 v9, s[{SC}:{SC+3}], s{T0} offen sc1 lds")
        a(f"s_mov_b32 s{MX}, 1")
        a("v_mov_b32 v2, 1")
        a(f"v_mov_b32 v3, {CNT_U}")
        a("s_mov_b64 exec, 1")
        a("ds_add_u32 v3, v2")
        a("s_mov_b64 exec, -1")
        a.lab(sk)
    hsum(13)
    a.stamp(3)
    a("s_nop 1")
    for i in range(8):
        a(f"v_add_f32_dpp v{24+i}, v{24+i}, v{24+i} row_ror:8 row_mask:0xf bank_mask:0xf")
    for i in range(8):
        a(f"v_mov_b32 v{32+i}, v{24+i}")
    a("s_nop 1")
    for i in range(8):
        a(f"v_permlane16_swap_b32 v{24+i}, v{32+i}")
    a("s_nop 1")
    for i in range(8):
        a(f"v_add_f32 v{24+i}, v{24+i}, v{32+i}")
    for i in range(8):
        a(f"v_mov_b32 v{32+i}, v{24+i}")
    a("s_nop 1")
    for i in range(8):
        a(f"v_permlane32_swap_b32 v{24+i}, v{32+i}")
    a("s_nop 1")
    for i in range(8):
        a(f"v_add_f32 v{24+i}, v{24+i}, v{32+i}")
    a(f"s_lshl_b32 s{T0}, s{HW}, 8")
    a(f"s_add_u32 s{T0}, s{T0}, {A_CS}")
    a(f"v_lshl_add_u32 v2, v1, 5, s{T0}")
    a("s_mov_b64 exec, 0xff")
    a("ds_write_b128 v2, v[24:27]")
    a("ds_write_b128 v2, v[28:31] offset:16")
    a("s_mov_b64 exec, -1")
    a("s_waitcnt lgkmcnt(0)")
    a("s_barrier")
    a.stamp(4)

    a(f"s_setprio {int(E('CPRIO', '1'))}")
    lb = a.new("k_kw")
    a(f"s_waitcnt vmcnt({hwait('pm')})")
    urev_try()
    a(f"s_cmp_eq_u32 s{MX}, 1")
    a(f"s_cbranch_scc1 {lb}")
    a(f"buffer_load_dword v16, v17, s[28:31], s{T2} offen sc1")
    a("s_waitcnt vmcnt(1)")
    a.lab(lb)
    a("s_waitcnt vmcnt(5)")
    a.stamp(11)
    for r in range(5):
        build(r)
        if r in (1, 3):
            lb = a.new("k_mid")
            a(f"s_cmp_eq_u32 s{MX}, 1")
            a(f"s_cbranch_scc1 {lb}")
            a("s_waitcnt vmcnt(0)")
            urev_try()
            a(f"s_cmp_eq_u32 s{MX}, 1")
            a(f"s_cbranch_scc1 {lb}")
            a(f"buffer_load_dword v16, v17, s[28:31], s{T2} offen sc1")
            a.lab(lb)
            a("s_waitcnt lgkmcnt(0)")
        elif r < 4: a("s_waitcnt lgkmcnt(4)")
    a.stamp(12)
    lp, ok = a.new("k_ppl"), a.new("k_ppk")
    a.lab(lp)
    a(f"s_cmp_eq_u32 s{MX}, 1")
    a(f"s_cbranch_scc1 {ok}")
    a("s_waitcnt vmcnt(0)")
    urev_try()
    a(f"s_cmp_eq_u32 s{MX}, 1")
    a(f"s_cbranch_scc1 {ok}")
    a("s_sleep 4")
    a(f"buffer_load_dword v16, v17, s[28:31], s{T2} offen sc1")
    a(f"s_branch {lp}")
    a.lab(ok)
    a.stamp(5)
    a("v_and_b32 v2, 15, v1")
    a("v_lshrrev_b32 v3, 4, v1")
    a("v_lshl_add_u32 v4, v3, 3, v2")
    a("v_add_u32 v4, 1, v4")
    a("v_and_b32 v5, 3, v4")
    a(f"v_mul_u32_u24 v5, {CPITCH}, v5")
    a("v_lshrrev_b32 v4, 2, v4")
    a("v_lshl_add_u32 v5, v4, 3, v5")
    a(f"v_add_u32 v22, s{CBASE}, v5")
    a("v_lshlrev_b32 v4, 5, v2")
    a("v_sub_u32 v4, 480, v4")
    a("v_lshl_add_u32 v4, v3, 4, v4")
    a(f"v_add_u32 v23, s{UBASE}, v4")
    a("v_lshlrev_b32 v4, 5, v2")
    a("v_lshl_add_u32 v8, v3, 3, v4")
    a("v_sub_u32 v5, 504, v8")
    a(f"v_add_u32 v19, s{UBASE}, v5")
    a(f"s_add_u32 s{KROW}, s{KROW}, {Y2_OFF}")
    a(f"s_cmp_eq_u32 s{MAT}, 0")
    a(f"s_cselect_b32 s{T0}, 16, 0")
    a(f"s_lshl_b32 s{T6}, s{T6}, s{T0}")
    a(f"s_and_b32 s{T6}, s{T6}, 0xffff0000")
    a("s_waitcnt vmcnt(0) lgkmcnt(0)")
    a.stamp(6)
    a(f"s_and_b32 s{T0}, s{HW}, 1")
    a(f"s_cmp_eq_u32 s{T0}, 1")
    a("s_cbranch_scc1 k_conv1")
    def conv_body(tiles):
        amax = max(tiles)
        SET = [(40, 72), (104, 136)]
        def rd(c0i):
            Tb, Hb = SET[c0i & 1]
            L = []
            for k in range(amax + 1):
                L.append(f"ds_read_b64 {v(Tb+4*k,2)}, v22 offset:{64*c0i + 512*k}")
                L.append(f"ds_read_b64 {v(Tb+4*k+2,2)}, v22 offset:{64*c0i + 512*k + 8}")
                L.append(f"ds_read_b128 {v(Hb+4*k,4)}, v23 offset:{64*c0i + 512*(7-k)}")
            return L
        for x in rd(0): a(x)
        for c0i in range(8):
            Tb, Hb = SET[c0i & 1]
            a("s_waitcnt lgkmcnt(0)")
            nxt = rd(c0i + 1) if c0i < 7 else []
            mf = []
            lists = [[(bi, aa, b - aa) for aa in range(b + 1)] for bi, b in enumerate(tiles)]
            while any(lists):
                for l_ in lists:
                    if l_: mf.append(l_.pop(0))
            seen = set()
            for n, (bi, aa, m) in enumerate(mf):
                acc = 24 + 4 * bi
                cc = "0" if (c0i == 0 and bi not in seen) else v(acc, 4)
                seen.add(bi)
                a(f"v_mfma_f32_16x16x32_bf16 {v(acc,4)}, {v(Tb+4*aa,4)}, {v(Hb+4*m,4)}, {cc}")
                for _ in range(2):
                    if nxt: a(nxt.pop(0))
            assert not nxt
        for bi, b in enumerate(tiles):
            a(f"ds_read_b64 {v(40+2*bi,2)}, v19 offset:{512*(7-b)}")
        a("s_waitcnt lgkmcnt(0)")
        a("s_nop 4")
        for bi, b in enumerate(tiles):
            acc = 24 + 4 * bi
            K0, K1 = 40 + 2 * bi, 41 + 2 * bi
            T = 48 + 8 * bi
            a(f"v_and_b32 v{T+0}, 0xffff0000, v{K1}")
            a(f"v_lshlrev_b32 v{T+1}, 16, v{K1}")
            a(f"v_and_b32 v{T+2}, 0xffff0000, v{K0}")
            a(f"v_lshlrev_b32 v{T+3}, 16, v{K0}")
            for e in range(4):
                a(f"v_fma_f32 v{T+e}, s{T6}, v{T+e}, v{acc+e}")
            a(f"v_cvt_pk_bf16_f32 v{T+4}, v{T+0}, v{T+1}")
            a(f"v_cvt_pk_bf16_f32 v{T+5}, v{T+2}, v{T+3}")
            a(f"buffer_store_dwordx2 {v(T+4,2)}, v8, s[28:31], s{KROW} offen offset:{512*b} sc1")
    conv_body([0, 3, 4, 7])
    a("s_branch k_conv_done")
    a.lab("k_conv1")
    conv_body([1, 2, 5, 6])
    a.lab("k_conv_done")
    a.stamp(7)
    a(f"s_lshr_b32 s{T0}, s2, 5")
    a(f"s_lshl_b32 s{T0}, s{T0}, 12")
    a(f"s_and_b32 s{T1}, s2, 31")
    a(f"s_lshl_b32 s{T1}, s{T1}, 2")
    a(f"s_add_u32 s{T0}, s{T0}, s{T1}")
    a(f"s_add_u32 s{T0}, s{T0}, {YFLAG}")
    a("v_lshrrev_b32 v5, 3, v1")
    a(f"v_mul_u32_u24 v5, {56*512}, v5")
    a("v_and_b32 v6, 7, v1")
    a("v_lshl_add_u32 v5, v6, 9, v5")
    a("s_waitcnt vmcnt(0)")
    a.stamp(8)
    arrive_publish(a, CNT_Y, 4, T0, 5, 32)
    a("v_lshrrev_b32 v6, 3, v1")
    a("v_and_b32 v7, 7, v1")
    a("v_lshlrev_b32 v5, 4, v7")
    a("v_lshl_add_u32 v5, v6, 12, v5")
    a(f"s_lshl_b32 s{T1}, s{CB}, 18")
    a(f"s_lshl_b32 s{T2}, s{TB}, 7")
    a(f"s_add_u32 s{T1}, s{T1}, s{T2}")
    a(f"s_lshl_b32 s{T2}, s{HW}, 16")
    a(f"s_add_u32 s{T1}, s{T1}, s{T2}")
    a(f"s_add_u32 s{T1}, s{T1}, {Y2_OFF}")
    a(f"s_add_u32 s{T2}, s{T1}, {8*4096}")
    a(f"s_lshl_b32 s{T0}, s{HW}, 1")
    a(f"v_xor_b32 v8, s{T0}, v7")
    a("v_lshlrev_b32 v8, 4, v8")
    a("v_lshl_add_u32 v8, v7, 10, v8")
    a("v_lshl_add_u32 v8, v6, 1, v8")
    a(f"v_add_u32 v8, {Y2S}, v8")
    a("v_xor_b32 v9, 16, v8")
    a(f"s_lshl_b32 s{T0}, s2, 9")
    a(f"s_lshl_b32 s{T4}, s{HW}, 5")
    a(f"s_add_u32 s{T0}, s{T0}, s{T4}")
    a(f"s_add_u32 s{T0}, s{T0}, {YFLAG}")
    poll(a, T0, 8, sleep=8)
    a.stamp(9)
    a(f"buffer_load_dwordx4 v[24:27], v5, s[28:31], s{T1} offen sc1")
    a(f"buffer_load_dwordx4 v[28:31], v5, s[28:31], s{T2} offen sc1")
    for it in range(2):
        a(f"s_waitcnt vmcnt({1-it})")
        for e in range(8):
            op = "ds_write_b16_d16_hi" if e & 1 else "ds_write_b16"
            a(f"{op} v{8+it}, v{24 + 4*it + e//2} offset:{e*128}")
    lb = a.new("k_nost")
    a("s_cmp_lg_u32 s32, 8")
    a(f"s_cbranch_scc1 {lb}")
    a(f"s_lshl_b32 s{T0}, s2, 9")
    a(f"s_and_b32 s{T1}, s{TB}, 3")
    a(f"s_lshl_b32 s{T1}, s{T1}, 4")
    a(f"s_add_u32 s{T0}, s{T0}, s{T1}")
    a(f"s_add_u32 s{T0}, s{T0}, {HFLAG}")
    poll(a, T0, 4, sleep=8)
    a("v_lshlrev_b32 v7, 3, v1")
    a(f"s_lshl_b32 s{T2}, s{TB}, 9")
    a(f"s_add_u32 s{T2}, s{T2}, {STATS_OFF}")
    a(f"buffer_load_dwordx2 v[24:25], v7, s[28:31], s{T2} offen sc1")
    a(f"v_add_u32 v7, {STS}, v7")
    a("s_waitcnt vmcnt(0)")
    a("ds_write_b64 v7, v[24:25]")
    a.lab(lb)
    a.stamp(10)
    a("s_waitcnt lgkmcnt(0)")
    a("s_barrier")
    a.fin()
    a("s_endpgm")

    a.lab("k_final")
    a.role = "f"
    a.stamp(11)
    a("s_waitcnt vmcnt(0) lgkmcnt(0)")
    a("s_barrier")
    a.stamp(12)
    a("v_lshrrev_b32 v2, 3, v0")
    a("v_and_b32 v3, 7, v0")
    a("v_mul_u32_u24 v4, 272, v2")
    a("v_lshl_add_u32 v4, v3, 5, v4")
    a(f"v_add_u32 v5, {3*PART}, v4")
    a(f"v_add_u32 v8, {6*PART}, v4")
    a("v_lshlrev_b32 v7, 3, v2")
    a(f"v_add_u32 v7, {STS}, v7")
    a("ds_read_b64 v[18:19], v7")
    PR = [24, 32, 40, 48, 96, 104, 112, 120]
    for w in range(8):
        ad = (4, 5, 8)[w // 3]
        for hh in range(2):
            a(f"ds_read_b128 {v(PR[w] + 4*hh, 4)}, v{ad} offset:{(w % 3) * PART + 16*hh}")
        if w == 5: a("s_waitcnt lgkmcnt(8)")
    a("v_lshrrev_b32 v6, 3, v2")
    a("v_xor_b32 v6, v6, v3")
    a("v_lshlrev_b32 v6, 4, v6")
    a("v_lshl_add_u32 v6, v2, 7, v6")
    a(f"v_add_u32 v6, {Y2S}, v6")
    a("ds_read_b128 v[56:59], v6")
    srd(a, SB, OUT, 2048 * 896)
    X, XN, Y = 64, 72, 80
    for i in range(4):
        unpack(a, X + 2 * i, 128 + i)
    a("v_rcp_f32 v21, v19")
    for e in range(8):
        a(f"v_sub_f32 v{XN+e}, v{X+e}, v18")
    a("v_mul_f32 v22, v21, v21")
    for e in range(8):
        a(f"v_mul_f32 v{XN+e}, v{XN+e}, v21")
    a("s_waitcnt lgkmcnt(0)")
    for (d, s_) in ((0, 1), (2, 3), (4, 5), (6, 7), (0, 2), (4, 6), (0, 4)):
        for i in range(0, 8, 2):
            a(f"v_pk_add_f32 {v(PR[d]+i,2)}, {v(PR[d]+i,2)}, {v(PR[s_]+i,2)}")
    for e in range(8):
        a(f"v_mul_f32 v{24+e}, v{24+e}, v22")
    for e in range(8):
        a(f"v_mul_f32 v{32+e}, 0xbfb8aa3b, v{24+e}")
    for e in range(8):
        a(f"v_exp_f32 v{32+e}, v{32+e}")
    for i in range(4):
        unpack(a, Y + 2 * i, 56 + i)
    for e in range(8):
        a(f"v_add_f32 v{32+e}, 1.0, v{32+e}")
    for e in range(8):
        a(f"v_rcp_f32 v{32+e}, v{32+e}")
    for e in range(8):
        a(f"v_mul_f32 v{XN+e}, v{XN+e}, v{Y+e}")
    for e in range(8):
        a(f"v_mul_f32 v{24+e}, v{24+e}, v{32+e}")
    for e in range(8):
        a(f"v_fma_f32 v{24+e}, v{XN+e}, v{24+e}, v{X+e}")
    for i in range(4):
        a(f"v_cvt_pk_bf16_f32 v{88+i}, v{24+2*i}, v{24+2*i+1}")
    for _ in range(int(E("ENDSLEEP", "0"))): a("s_sleep 32")
    if E("TGLOB"):
        a("v_mov_b32 v2, 0")
        a(f"global_load_dword v3, v2, s[{DBG}:{DBG+1}] offset:128 sc1")
        a("s_waitcnt vmcnt(0)")
        a("v_readfirstlane_b32 s96, v3")
        a("s_nop 3")
        a("s_not_b32 s96, s96")
    if E("TFIX"):
        lp = a.new("tfix")
        a.lab(lp)
        a("s_memrealtime s[98:99]")
        a("s_waitcnt lgkmcnt(0)")
        a("s_sub_u32 s98, s98, s96")
        a(f"s_cmp_lt_u32 s98, {int(E('TFIX'))}")
        a(f"s_cbranch_scc1 {lp}")
    a(f"buffer_store_dwordx4 v[88:91], v14, s[{SB}:{SB+3}], 0 offen")
    a.fin()
    a("s_endpgm")

    a.lab("k_prep")
    a.role = "p"
    P = R0
    a(f"s_sub_u32 s{P}, s2, 224")
    a("s_waitcnt lgkmcnt(0)")
    srd(a, 28, WS, WS_REC)
    a("s_cmp_ge_u32 s32, 8")
    a("s_cbranch_scc1 k_end")
    a("s_cmp_eq_u32 s32, 7")
    a("s_cbranch_scc1 k_prep_flags")
    srd(a, SA, K_, 2048 * 896)
    srd(a, SB, V_, 2048 * 896)
    srd(a, SC, SK, 448 * 8)
    a(f"s_movk_i32 s{T0}, 1171")
    a(f"v_mul_lo_u32 v2, v0, s{T0}")
    a("v_lshrrev_b32 v2, 16, v2")
    a("v_mul_u32_u24 v3, 56, v2")
    a("v_sub_u32 v3, v0, v3")
    a(f"s_lshl_b32 s{T0}, s{P}, 6")
    a(f"v_lshl_add_u32 v4, v2, 3, s{T0}")
    a(f"s_movk_i32 s{T1}, 896")
    a(f"v_mul_lo_u32 v4, v4, s{T1}")
    a("v_lshl_add_u32 v11, v3, 4, v4")
    a("v_subrev_u32 v10, 2688, v11")
    a("v_add_u32 v12, 3584, v11")
    a("v_lshlrev_b32 v13, 6, v3")
    KR, VR, SW = 16, 60, 92
    PD = E("PDELAY", "1") == "1"
    for i in range(4):
        a(f"buffer_load_dwordx4 {v(SW+4*i,4)}, v13, s[{SC}:{SC+3}], 0 offen offset:{16*i}")
    if PD: a("s_waitcnt vmcnt(0)")
    for r in range(11):
        if r < 3: ad, off = 10, r * 896
        elif r < 7: ad, off = 11, (r - 3) * 896
        else: ad, off = 12, (r - 7) * 896
        a(f"buffer_load_dwordx4 {v(KR+4*r,4)}, v{ad}, s[{SA}:{SA+3}], 0 offen offset:{off}")
    for r in range(8):
        ad, off = (11, r * 896) if r < 4 else (12, (r - 4) * 896)
        a(f"buffer_load_dwordx4 {v(VR+4*r,4)}, v{ad}, s[{SB}:{SB+3}], 0 offen offset:{off}")
    a("v_sub_u32 v5, 7, v2")
    a("v_and_b32 v6, 7, v3")
    a("v_xor_b32 v5, v5, v6")
    a("v_lshlrev_b32 v5, 4, v5")
    a("v_lshl_add_u32 v14, v3, 10, v5")
    a.stamp(2)
    a("s_waitcnt vmcnt(0)")
    a.stamp(3)
    WF, KF, RES, OUT_ = 108, 116, 138, 154
    for p in range(4):
        for e in range(2):
            ch = 2 * p + e
            for tap in range(4):
                src = SW + 2 * ch + (tap >> 1)
                if tap & 1: a(f"v_and_b32 v{WF + 2*tap + e}, 0xffff0000, v{src}")
                else: a(f"v_lshlrev_b32 v{WF + 2*tap + e}, 16, v{src}")
        for r in range(11):
            unpack(a, KF + 2 * r, KR + 4 * r + p)
        for i in range(8):
            a(f"v_pk_mul_f32 {v(RES+2*i,2)}, {v(KF+2*i,2)}, {v(WF+6,2)}")
        for tap in (2, 1, 0):
            for i in range(8):
                a(f"v_pk_fma_f32 {v(RES+2*i,2)}, {v(KF+2*(i+3-tap),2)}, {v(WF+2*tap,2)}, {v(RES+2*i,2)}")
        for r in range(8):
            unpack(a, KF + 2 * r, VR + 4 * r + p)
        for i in range(8):
            a(f"v_pk_mul_f32 {v(RES+2*i,2)}, {v(RES+2*i,2)}, {v(KF+2*i,2)}")
        for e in range(2):
            for d in range(4):
                a(f"v_cvt_pk_bf16_f32 v{OUT_+4*e+d}, v{RES+2*(7-2*d)+e}, v{RES+2*(6-2*d)+e}")
        for e in range(2):
            a(f"ds_write_b128 v14, {v(OUT_+4*e,4)} offset:{(2*p+e)*128}")
    a("s_branch k_prep_bar")
    a.lab("k_prep_flags")
    a("v_mov_b32 v4, 0")
    a("v_mov_b32 v5, 0")
    a("v_mov_b32 v6, 0")
    a("v_mov_b32 v7, 0")
    a("v_lshlrev_b32 v2, 4, v1")
    a(f"s_mul_i32 s{T0}, s{P}, 3584")
    a(f"s_add_u32 s{T0}, s{T0}, {FLAG_OFF}")
    for q in range(4):
        if q == 3: a("s_mov_b32 exec_hi, 0")
        a(f"buffer_store_dwordx4 v[4:7], v2, s[28:31], s{T0} offen offset:{1024*q} sc1")
    a("s_mov_b64 exec, 1")
    a("v_mov_b32 v3, 1")
    a("s_waitcnt vmcnt(0) lgkmcnt(0)")
    a(f"global_atomic_add v4, v3, s[{DBG}:{DBG+1}] sc1")
    a("s_mov_b64 exec, -1")
    a.lab("k_prep_bar")
    a.stamp(4)
    a("s_waitcnt lgkmcnt(0)")
    a("s_barrier")
    a.stamp(5)
    a("v_lshrrev_b32 v2, 3, v0")
    a("v_and_b32 v3, 7, v0")
    a("v_xor_b32 v4, s32, v3")
    a("v_lshlrev_b32 v4, 4, v4")
    a("v_lshl_add_u32 v4, v2, 7, v4")
    a("v_lshlrev_b32 v5, 4, v3")
    a("v_lshl_add_u32 v5, v2, 12, v5")
    for it in range(7):
        a(f"ds_read_b128 {v(32+4*it,4)}, v4 offset:{it*8192}")
    a(f"s_lshl_b32 s{T0}, s{P}, 7")
    a(f"s_sub_u32 s{T0}, {UREV_OFF + 1984*2}, s{T0}")
    for it in range(7):
        a(f"s_waitcnt lgkmcnt({6-it})")
        a(f"buffer_store_dwordx4 {v(32+4*it,4)}, v5, s[28:31], s{T0} offen sc1")
        a(f"s_add_u32 s{T0}, s{T0}, {64*4096}")
    lb, lp = a.new("k_prep_icd"), a.new("k_prep_icl")
    a("s_cmp_lg_u32 s32, 7")
    a(f"s_cbranch_scc1 {lb}")
    a("v_mov_b32 v22, 0")
    a.lab(lp)
    a(f"global_load_dword v23, v22, s[{DBG}:{DBG+1}] sc1")
    a("s_waitcnt vmcnt(0)")
    a(f"v_readfirstlane_b32 s{T0}, v23")
    a("s_nop 3")
    a(f"s_cmp_ge_u32 s{T0}, 32")
    a(f"s_cbranch_scc1 {lb}")
    a("s_sleep 12")
    a(f"s_branch {lp}")
    a.lab(lb)
    a("s_waitcnt vmcnt(0)")
    a("s_barrier")
    a.stamp(6)
    lb = a.new("k_prep_np")
    a("s_cmp_lg_u32 s32, 7")
    a(f"s_cbranch_scc1 {lb}")
    a("v_lshlrev_b32 v4, 9, v1")
    a(f"s_lshl_b32 s{T0}, s{P}, 2")
    a(f"s_add_u32 s{T0}, s{T0}, {PFLAG}")
    a("v_mov_b32 v3, 1")
    for q in range(4):
        if q == 3: a("s_mov_b32 exec_hi, 0")
        a(f"buffer_store_dword v3, v4, s[28:31], s{T0} offen sc1")
        a(f"s_add_u32 s{T0}, s{T0}, {64*512}")
    a("s_mov_b64 exec, -1")
    a.lab(lb)
    a.fin()
    a.lab("k_end")
    a.lab("k_last")
    a("s_endpgm")

HDR = open("cdna_kernels/" + NAME + ".s.ref").read().split("; Override launch")[0]

def main():
    out = sys.argv[1] if len(sys.argv) > 1 else f"cdna_kernels/{NAME}.s"
    a = A()
    kernel(a)
    txt = HDR
    txt += f"; @launch grid=(256,1,1) block=(768,1,1) lds={LDS}\n"
    txt += '.amdgcn_target "amdgcn-amd-amdhsa--gfx950"\n.text\n'
    txt += f".globl {KN}\n.p2align 8\n.type {KN},@function\n" + "\n".join(a.L) + "\n"
    txt += f'''.section .rodata,"a"
.p2align 6
.amdhsa_kernel {KN}
  .amdhsa_next_free_vgpr 168
  .amdhsa_next_free_sgpr 102
  .amdhsa_accum_offset 168
  .amdhsa_group_segment_fixed_size 0
  .amdhsa_kernarg_size 104
  .amdhsa_user_sgpr_count 2
  .amdhsa_user_sgpr_kernarg_segment_ptr 1
  .amdhsa_system_sgpr_workgroup_id_x 1
.end_amdhsa_kernel
'''
    open(out, "w").write(txt)

if __name__ == "__main__":
    main()
```

```python
import sys, os
E = os.environ.get

NAME = "recurrent_scan__ssm_conv_h3__glu_gated_reglu__prompt"
KN = NAME + "_kernel"
H_OFF = 0
UREV_OFF = 0x700000
STATS_OFF = 0x8C0000
FLAG_OFF = 0x8D0000
HFLAG = FLAG_OFF
YFLAG = FLAG_OFF + 128
PFLAG = FLAG_OFF + 256
SFLAG = FLAG_OFF + 384
Y2_OFF = 0x900000
WS_REC = 0x1000000
DIAG = int(E("DIAG", "0"))
DIAG_OFF = 0xC00000

class A:
    def __init__(self):
        self.L = []
        self.n = 0
    def __call__(self, s):
        self.L.append("    " + s)
    def lab(self, s):
        self.L.append(s + ":")
    def new(self, p="L"):
        self.n += 1
        return f"{p}_{self.n}"
    def stamp(self, i, real=False):
        if E("LOOPST") and 5 <= i <= 10 and getattr(self, "post", False): return
        if E("TM"):
            role, idx, mode, wv = E("TM").split(":")
            if getattr(self, "role", "") == role and int(idx) == i:
                lb = self.new("tm")
                self(f"s_cmp_lg_u32 s32, {wv}")
                self(f"s_cbranch_scc1 {lb}")
                self("s_memrealtime s[98:99]")
                self("s_waitcnt lgkmcnt(0)")
                self("s_sub_u32 s98, s98, s96")
                if mode == "min": self("s_sub_u32 s98, 0x10000, s98")
                r = 26 if (role == "g" and i <= 4) else 2
                self(f"v_mov_b32 v{r}, 0")
                self(f"v_mov_b32 v{r+1}, s98")
                self("s_mov_b64 exec, 1")
                self(f"global_atomic_umax v{r}, v{r+1}, s[24:25] offset:128 sc1")
                self("s_mov_b64 exec, -1")
                self.lab(lb)
        if E("TP"):
            role, idx, T = E("TP").split(":")
            if getattr(self, "role", "") == role and int(idx) == i:
                lp = self.new("tprobe")
                self.lab(lp)
                self("s_memrealtime s[98:99]")
                self("s_waitcnt lgkmcnt(0)")
                self("s_sub_u32 s98, s98, s96")
                self(f"s_cmp_lt_u32 s98, {T}")
                self(f"s_cbranch_scc1 {lp}")
        if E("LOOPST") and 5 <= i <= 10 and getattr(self, "post", False): return
        if DIAG:
            self(f"s_memrealtime s[{60+2*i}:{61+2*i}]" if (real or DIAG == 2) else f"s_memtime s[{60+2*i}:{61+2*i}]")
    def fin(self, vt=160):
        if DIAG:
            self.stamp(13)
            self("s_waitcnt vmcnt(0)")
            self.stamp(14)
            self.stamp(15, True)
            self("s_waitcnt lgkmcnt(0)")
            self("s_lshl_b32 s33, s2, 4")
            self("s_add_u32 s33, s33, s32")
            self("s_lshl_b32 s33, s33, 7")
            self(f"s_add_u32 s33, s33, {DIAG_OFF}")
            self(f"v_mov_b32 v{vt}, 0")
            for i in range(16):
                self(f"v_mov_b32 v{vt+1}, s{60+2*i}")
                self(f"buffer_store_dword v{vt+1}, v{vt}, s[28:31], s33 offen offset:{4*i}")

def v(a, n=1):
    return f"v{a}" if n == 1 else f"v[{a}:{a+n-1}]"

def srd(a, dst, lo, nrec):
    a(f"s_mov_b32 s{dst}, s{lo}")
    a(f"s_and_b32 s{dst+1}, s{lo+1}, 0xffff")
    a(f"s_mov_b32 s{dst+2}, {nrec}")
    a(f"s_mov_b32 s{dst+3}, 0x00020000")

def bf16r(a, dst, src):
    a(f"v_cvt_pk_bf16_f32 v{dst}, v{src}, v{src}")
    a(f"v_lshlrev_b32 v{dst}, 16, v{dst}")

def unpack(a, dst, src):
    a(f"v_lshlrev_b32 v{dst}, 16, v{src}")
    a(f"v_and_b32 v{dst+1}, 0xffff0000, v{src}")

STAGE = 24576
NST = 4
SPS = 2
RING_D = 6
RING = RING_D * 2048
PART = 64 * 272
CONV0 = 8 * RING
CPITCH = 4160
CONV_CH = 4 * CPITCH + 5120
A_STATS = CONV0 + 2 * CONV_CH
A_CS = A_STATS + 1024
Y2S = A_CS + 1024
STS = Y2S + 8192
SYNC = STS + 512
CNT_H, CNT_U, CNT_Y, CNT_R = SYNC, SYNC + 4, SYNC + 8, SYNC + 12
LDS = SYNC + 64

Q, K_, V_, SK, SSMK, SSMD, WG, WU, WD, OUT, DBG, WS = 4, 6, 8, 10, 12, 14, 16, 18, 20, 22, 24, 26
SA, SB, SC = 36, 40, 44
RB, FB, XCD, J, TB, CB = 48, 49, 50, 51, 52, 53
R0, R1, R2, R3, R4, R5 = 54, 55, 56, 57, 58, 59
T0, T1, T2 = 33, 34, 35
T3, T4, T5, T6 = 92, 93, 94, 95

def lds_spin(a, word, vt=2, sleep=1, mask=None):
    lp, dn = a.new("spin"), a.new("spun")
    a(f"v_mov_b32 v{vt+1}, {word}")
    a.lab(lp)
    a(f"ds_read_b32 v{vt}, v{vt+1}")
    a("s_waitcnt lgkmcnt(0)")
    a(f"v_readfirstlane_b32 s{T3}, v{vt}")
    a("s_nop 3")
    if mask is None:
        a(f"s_cmp_lg_u32 s{T3}, 0")
    else:
        a(f"s_and_b32 s{T3}, s{T3}, s{mask}")
        a(f"s_cmp_eq_u32 s{T3}, s{mask}")
    a(f"s_cbranch_scc1 {dn}")
    a(f"s_sleep {sleep}")
    a(f"s_branch {lp}")
    a.lab(dn)

def lds_set(a, word, vt=2):
    a(f"v_mov_b32 v{vt}, 1")
    a(f"v_mov_b32 v{vt+1}, {word}")
    a(f"ds_write_b32 v{vt+1}, v{vt}")

def poll(a, soff, nwords, vt=2, sleep=12):
    lp, dn = a.new("poll"), a.new("polled")
    a(f"v_min_u32 v{vt+1}, {nwords-1}, v1")
    a(f"v_lshlrev_b32 v{vt+1}, 2, v{vt+1}")
    a.lab(lp)
    a(f"buffer_load_dword v{vt}, v{vt+1}, s[28:31], s{soff} offen sc1")
    a("s_waitcnt vmcnt(0)")
    a(f"v_cmp_ne_u32 vcc, 1, v{vt}")
    a("s_nop 3")
    a("s_cmp_eq_u64 vcc, 0")
    a(f"s_cbranch_scc1 {dn}")
    a(f"s_sleep {sleep}")
    a(f"s_branch {lp}")
    a.lab(dn)

def arrive_publish(a, cnt, n, soff, voff, lanes, vt=2):
    sk = a.new("nopub")
    a(f"v_mov_b32 v{vt}, 1")
    a(f"v_mov_b32 v{vt+1}, {cnt}")
    a("s_mov_b64 exec, 1")
    a(f"ds_add_rtn_u32 v{vt+2}, v{vt+1}, v{vt}")
    a("s_mov_b64 exec, -1")
    a("s_waitcnt lgkmcnt(0)")
    a(f"v_readfirstlane_b32 s{T3}, v{vt+2}")
    a("s_nop 3")
    a(f"s_cmp_lg_u32 s{T3}, {n-1}")
    a(f"s_cbranch_scc1 {sk}")
    a(f"s_mov_b32 exec_lo, {hex((1 << lanes) - 1)}")
    a("s_mov_b32 exec_hi, 0")
    a(f"buffer_store_dword v{vt}, v{voff}, s[28:31], s{soff} offen sc1")
    a("s_mov_b64 exec, -1")
    a.lab(sk)

def kernel(a):
    a.lab(KN)
    a("s_cmp_ge_u32 s2, 256")
    a("s_cbranch_scc1 k_end")
    a.stamp(0, True)
    a.stamp(1)
    for _ in range(int(E("BEGSLEEP", "0"))): a("s_sleep 32")
    if E("TFIX") or E("TB0") or E("TE1") or E("TP"): a("s_memrealtime s[96:97]")
    a("s_load_dwordx8 s[4:11], s[0:1], 0")
    a("s_load_dwordx4 s[12:15], s[0:1], 32")
    a("s_load_dwordx8 s[16:23], s[0:1], 56")
    a("s_load_dwordx4 s[24:27], s[0:1], 88")
    a("v_and_b32 v1, 63, v0")
    a("v_lshrrev_b32 v2, 6, v0")
    a("s_nop 0")
    a("v_readfirstlane_b32 s32, v2")
    a("s_cmp_ge_u32 s2, 224")
    a("s_cbranch_scc1 k_prep")
    a(f"s_and_b32 s{XCD}, s2, 7")
    a(f"s_lshr_b32 s{J}, s2, 3")
    a(f"s_mul_i32 s{T0}, s{J}, 37")
    a(f"s_lshr_b32 s{T0}, s{T0}, 8")
    a(f"s_mul_i32 s{T1}, s{T0}, 7")
    a(f"s_sub_u32 s{CB}, s{J}, s{T1}")
    a(f"s_and_b32 s{T1}, s{XCD}, 4")
    a(f"s_add_u32 s{RB}, s{T1}, s{T0}")
    a(f"s_and_b32 s{T1}, s{XCD}, 3")
    a(f"s_mul_i32 s{T1}, s{T1}, 7")
    a(f"s_add_u32 s{FB}, s{T1}, s{CB}")
    a(f"s_lshl_b32 s{T1}, s{XCD}, 2")
    a(f"s_add_u32 s{TB}, s{T1}, s{T0}")
    a("s_cmp_ge_u32 s32, 8")
    a("s_cbranch_scc1 k_helper")

    a.role = "g"
    TG, CG = R0, R1
    a(f"s_lshr_b32 s{TG}, s32, 1")
    a(f"s_and_b32 s{CG}, s32, 1")
    AR = 10
    a("v_and_b32 v2, 31, v1")
    a("v_lshrrev_b32 v3, 5, v1")
    a("v_bfe_u32 v4, v1, 2, 2")
    a("v_xor_b32 v4, v3, v4")
    a(f"s_lshl_b32 s{T0}, s32, 5")
    a(f"v_add_u32 v5, s{T0}, v2")
    a("v_lshlrev_b32 v5, 6, v5")
    a(f"v_lshl_add_u32 v{AR+0}, v4, 4, v5")
    a(f"v_xor_b32 v{AR+1}, 0x800, v{AR+0}")
    a(f"v_xor_b32 v{AR+2}, 32, v{AR+0}")
    a(f"v_xor_b32 v{AR+3}, 32, v{AR+1}")
    a("v_bfe_u32 v4, v1, 4, 1")
    a("v_bfe_u32 v5, v1, 2, 2")
    a("v_bfe_u32 v6, v1, 3, 1")
    a("v_lshl_or_b32 v6, v4, 1, v6")
    a(f"s_lshl_b32 s{T0}, s{CG}, 1")
    a(f"v_xor_b32 v6, s{T0}, v6")
    a("v_lshl_add_u32 v7, v3, 3, v5")
    a("v_lshlrev_b32 v7, 7, v7")
    a("v_lshl_add_u32 v7, v4, 12, v7")
    a("v_lshl_add_u32 v7, v6, 5, v7")
    a("v_and_b32 v8, 3, v1")
    a("v_lshl_add_u32 v7, v8, 3, v7")
    a(f"v_add_u32 v{AR+4}, 0x4000, v7")
    a(f"v_xor_b32 v{AR+5}, 32, v{AR+4}")
    for i in range(6):
        a(f"v_add_u32 v{AR+6+i}, {SPS * STAGE}, v{AR+i}")
    a("v_mov_b32 v28, 0")
    a("v_mov_b32 v29, 0")
    a("v_mov_b32 v22, 0")
    a("v_and_b32 v24, 15, v1")
    a("v_lshlrev_b32 v24, 2, v24")
    a(f"s_mov_b32 s{T5}, 0")
    a("s_waitcnt lgkmcnt(0)")
    srd(a, 28, WS, WS_REC)
    HF, YF = R2, R3
    a(f"s_lshl_b32 s{HF}, s{RB}, 9")
    a(f"s_lshl_b32 s{T0}, s{FB}, 2")
    a(f"s_add_u32 s{HF}, s{HF}, s{T0}")
    a(f"s_add_u32 s{HF}, s{HF}, {HFLAG}")
    a(f"s_lshl_b32 s{YF}, s2, 9")
    a(f"s_add_u32 s{YF}, s{YF}, {FLAG_OFF}")
    if E("TGLOB"):
        lb = a.new("tg")
        a("s_cmp_lg_u32 s32, 0")
        a(f"s_cbranch_scc1 {lb}")
        a("s_not_b32 s98, s96")
        a("v_mov_b32 v2, s98")
        a("s_mov_b64 exec, 1")
        a(f"global_atomic_umax v22, v2, s[{DBG}:{DBG+1}] offset:128 sc1")
        a("s_mov_b64 exec, -1")
        a.lab(lb)
    a("s_cmp_eq_u32 s32, 7")
    a("s_cbranch_scc1 k_init")
    if E("GTOUCH", "1") == "1":
        srd(a, SA, Q, 2048 * 896)
        srd(a, SB, WG, 448 * 3584)
        srd(a, SC, WU, 448 * 3584)
        a(f"s_lshr_b32 s{T0}, s{XCD}, 2")
        a(f"s_lshl_b32 s{T0}, s{T0}, 10")
        a(f"s_mul_i32 s{T1}, s{J}, 37")
        a(f"s_add_u32 s{T0}, s{T0}, s{T1}")
        a(f"s_mul_i32 s{T0}, s{T0}, 896")
        a(f"s_lshl_b32 s{T1}, s32, 7")
        a(f"s_add_u32 s{T0}, s{T0}, s{T1}")
        a("v_mul_u32_u24 v2, 896, v1")
        a(f"s_lshl_b32 s{T1}, s{J}, 4")
        a(f"v_add_u32 v3, s{T1}, v1")
        a("v_mul_u32_u24 v4, 0x2493, v3")
        a("v_lshrrev_b32 v4, 16, v4")
        a("v_mul_u32_u24 v5, 7, v4")
        a("v_sub_u32 v5, v3, v5")
        a("v_mul_u32_u24 v4, 3584, v4")
        a("v_lshl_add_u32 v4, v5, 7, v4")
        a(f"s_and_b32 s{T1}, s{XCD}, 3")
        a(f"s_mul_i32 s{T1}, s{T1}, 896")
        a(f"s_mul_i32 s{T2}, s32, {64 * 3584}")
        a(f"s_add_u32 s{T1}, s{T1}, s{T2}")
        TD = int(E("TD", "0"))
        if TD:
            lb = a.new("k_td")
            a(f"s_cmp_lt_u32 s32, {int(E('TS0', '2'))}")
            a(f"s_cbranch_scc1 {lb}")
            a(f"s_sleep {TD}")
            a.lab(lb)
        a("s_mov_b32 exec_hi, 31")
        a(f"buffer_load_dword v6, v2, s[{SA}:{SA+3}], s{T0} offen")
        a("s_mov_b64 exec, 0xffff")
        a(f"buffer_load_dword v7, v4, s[{SB}:{SB+3}], s{T1} offen")
        a(f"buffer_load_dword v8, v4, s[{SC}:{SC+3}], s{T1} offen")
        a("s_mov_b64 exec, -1")
    a("s_branch k_main")
    a.lab("k_init")
    a("v_mov_b32 v2, 0")
    a(f"v_lshl_add_u32 v3, v1, 2, 0")
    a(f"v_add_u32 v3, {SYNC}, v3")
    a("s_mov_b64 exec, 0xff")
    a("ds_write_b32 v3, v2")
    a("s_waitcnt lgkmcnt(0)")
    a("s_mov_b64 exec, -1")
    a(f"global_load_dword v23, v22, s[{DBG}:{DBG+1}] sc1")
    if E("CTOUCH", "0") == "1":
        a("s_getpc_b64 s[98:99]")
        a.lab("k_pc")
        a(f"s_sub_u32 s98, s98, k_pc-{KN}")
        a("s_subb_u32 s99, s99, 0")
        a(f"s_lshl_b32 s{T0}, s{J}, 11")
        a("v_lshlrev_b32 v2, 7, v1")
        a(f"v_add_u32 v2, s{T0}, v2")
        a(f"v_min_u32 v2, k_last-{KN}, v2")
        a("s_mov_b64 exec, 0xffff")
        a("global_load_dword v9, v2, s[98:99]")
        a("s_mov_b64 exec, -1")
    a.lab("k_main")
    a(f"s_cmp_ge_u32 s{FB}, 16")
    a("s_cbranch_scc1 k_nostat")
    srd(a, SA, Q, 2048 * 896)
    a(f"s_lshl_b32 s{T0}, s{RB}, 8")
    a(f"s_lshl_b32 s{T1}, s{FB}, 4")
    a(f"s_add_u32 s{T0}, s{T0}, s{T1}")
    a(f"s_lshl_b32 s{T1}, s32, 1")
    a(f"s_add_u32 s{T0}, s{T0}, s{T1}")
    a("v_lshrrev_b32 v2, 5, v1")
    a(f"v_add_u32 v2, s{T0}, v2")
    a(f"s_movk_i32 s{T1}, 896")
    a(f"v_mul_lo_u32 v3, v2, s{T1}")
    a("v_and_b32 v4, 31, v1")
    a("v_lshl_add_u32 v3, v4, 4, v3")
    for r in range(36, 40): a(f"v_mov_b32 v{r}, 0")
    a(f"buffer_load_dwordx4 v[32:35], v3, s[{SA}:{SA+3}], 0 offen")
    a("s_mov_b32 exec_lo, 0xffffff")
    a("s_mov_b32 exec_hi, 0xffffff")
    a(f"buffer_load_dwordx4 v[36:39], v3, s[{SA}:{SA+3}], 0 offen offset:512")
    a("s_mov_b64 exec, -1")
    for r in range(40, 44): a(f"v_mov_b32 v{r}, 0")
    a("v_lshlrev_b32 v2, 3, v2")
    a("s_waitcnt vmcnt(0)")
    for i in range(8):
        t = 44 + 2 * (i & 1)
        unpack(a, t, 32 + i)
        a(f"v_add_f32 v40, v40, v{t}")
        a(f"v_add_f32 v41, v41, v{t+1}")
        a(f"v_fmac_f32 v42, v{t}, v{t}")
        a(f"v_fmac_f32 v43, v{t+1}, v{t+1}")
    a("v_add_f32 v40, v40, v41")
    a("v_add_f32 v42, v42, v43")
    for dpp in ("quad_perm:[1,0,3,2]", "quad_perm:[2,3,0,1]", "row_ror:4", "row_ror:8"):
        a("s_nop 1")
        a(f"v_add_f32_dpp v40, v40, v40 {dpp} row_mask:0xf bank_mask:0xf")
        a(f"v_add_f32_dpp v42, v42, v42 {dpp} row_mask:0xf bank_mask:0xf")
    a("v_mov_b32 v41, v40")
    a("v_mov_b32 v43, v42")
    a("s_nop 1")
    a("v_permlane16_swap_b32 v40, v41")
    a("v_permlane16_swap_b32 v42, v43")
    a("s_nop 1")
    a("v_add_f32 v40, v40, v41")
    a("v_add_f32 v42, v42, v43")
    a("v_mul_f32 v40, 0x3b124925, v40")
    a("v_mul_f32 v42, 0x3b124925, v42")
    a("v_fma_f32 v42, -v40, v40, v42")
    a("v_max_f32 v42, 0, v42")
    bf16r(a, 44, 40)
    bf16r(a, 42, 42)
    a("v_add_f32 v42, 0x3727c5ac, v42")
    bf16r(a, 42, 42)
    a("v_sqrt_f32 v42, v42")
    a("s_nop 0")
    bf16r(a, 45, 42)
    a(f"s_mov_b32 s{T0}, {STATS_OFF}")
    a("s_mov_b32 exec_lo, 1")
    a("s_mov_b32 exec_hi, 1")
    a(f"buffer_store_dwordx2 v[44:45], v2, s[28:31], s{T0} offen sc1")
    a("s_mov_b64 exec, -1")
    a.lab("k_nostat")

    SETS = {0: 32, 1: 48}
    def reads(c, st_):
        base = SETS[st_]
        stg = c % NST
        R, o = AR + 6 * (stg // SPS), (stg % SPS) * STAGE
        a(f"ds_read_b128 {v(base,4)}, v{R + 2*st_} offset:{o}")
        for ct in range(2):
            for half in range(2):
                a(f"ds_read_b64_tr_b16 {v(base + 8 + 4*ct + 2*half, 2)}, v{R + 4 + ct} offset:{o + st_*2048 + half*512}")
        a(f"ds_read_b128 {v(base+4,4)}, v{R + 2*st_ + 1} offset:{o}")
    def mfmas(c, st_):
        base = SETS[st_]
        first = (2 * c + st_ == 0)
        k = 0
        for tt in range(2):
            for ct in range(2):
                acc = 64 + 16 * (2 * ct + tt)
                cc = "0" if first else v(acc, 16)
                a(f"v_mfma_f32_32x32x16_bf16 {v(acc,16)}, {v(base + 8 + 4*ct, 4)}, {v(base + 4*tt, 4)}, {cc}")
                k += 1
    EARLY = int(E("EARLY", "6"))
    RBASE, WROW = T6, J
    srd(a, SB, WD, 1792 * 896)
    a("v_lshrrev_b32 v2, 3, v1")
    a("v_mul_u32_u24 v2, 896, v2")
    a("v_bfe_u32 v3, v1, 4, 1")
    a("v_lshlrev_b32 v3, 2, v3")
    a("v_and_b32 v4, 7, v1")
    a("v_xor_b32 v3, v3, v4")
    a("v_lshl_add_u32 v2, v3, 4, v2")
    a(f"s_lshl_b32 s{T0}, s{CB}, 7")
    a(f"v_add_u32 v9, s{T0}, v2")
    a(f"s_xor_b32 s{RBASE}, s32, 4")
    a(f"s_mul_i32 s{RBASE}, s{RBASE}, {RING}")
    a(f"s_mul_i32 s{WROW}, s32, {14 * 16 * 896}")
    def early_w(n):
        for i in range(n):
            for hh in range(2):
                a(f"s_add_u32 m0, s{RBASE}, {i * 2048 + hh * 1024}")
                a(f"s_add_u32 s{T0}, s{WROW}, {(16 * i + 8 * hh) * 896}")
                a(f"buffer_load_dwordx4 v9, s[{SB}:{SB+3}], s{T0} offen lds")
    PC = int(E("PC", "11"))
    SC0 = int(E("SC0", "8"))
    SPC = int(E("SPC", "4"))
    SCD = int(E("SCD", "3"))
    def stats_ok(fail):
        a("v_cmp_ne_u32 vcc, 1, v25")
        a("s_nop 3")
        a("s_cmp_lg_u64 vcc, 0")
        a(f"s_cbranch_scc1 {fail}")
    def stats_load():
        a("v_lshlrev_b32 v26, 5, v1")
        a(f"s_lshl_b32 s{T0}, s{RB}, 11")
        a(f"s_add_u32 s{T0}, s{T0}, {STATS_OFF}")
        a(f"buffer_load_dwordx4 v[128:131], v26, s[28:31], s{T0} offen sc1")
        a(f"buffer_load_dwordx4 v[132:135], v26, s[28:31], s{T0} offen offset:16 sc1")
    if E("TB0"):
        lp = a.new("tprobe")
        a.lab(lp)
        a("s_memrealtime s[98:99]")
        a("s_waitcnt lgkmcnt(0)")
        a("s_sub_u32 s98, s98, s96")
        a(f"s_cmp_lt_u32 s98, {int(E('TB0'))}")
        a(f"s_cbranch_scc1 {lp}")
    a("s_barrier")
    a.stamp(2)
    reads(0, 0)
    for c in range(14):
        reads(c, 1)
        a("s_waitcnt lgkmcnt(6)")
        mfmas(c, 0)
        a("s_waitcnt lgkmcnt(0)")
        if c < 13:
            a("s_barrier")
            if E("LOOPST") and c in (1, 3, 5, 7, 9, 11): a.stamp(5 + c // 2)
            reads(c + 1, 0)
        if c == SPC - 1:
            a("s_waitcnt vmcnt(0)")
        if c == SPC:
            lb, lp, ok = a.new("k_sp"), a.new("k_spl"), a.new("k_spk")
            a("s_cmp_lg_u32 s32, 7")
            a(f"s_cbranch_scc1 {lb}")
            a.lab(lp)
            a(f"v_readfirstlane_b32 s{T0}, v23")
            a("s_nop 3")
            a(f"s_cmp_ge_u32 s{T0}, 32")
            a(f"s_cbranch_scc1 {ok}")
            a("s_sleep 8")
            a(f"global_load_dword v23, v22, s[{DBG}:{DBG+1}] sc1")
            a("s_waitcnt vmcnt(0)")
            a(f"s_branch {lp}")
            a.lab(ok)
            a(f"s_cmp_ge_u32 s{FB}, 16")
            a(f"s_cbranch_scc1 {lb}")
            a(f"s_and_b32 s{T1}, s{RB}, 3")
            a(f"s_mul_i32 s{T1}, s{T1}, 56")
            a(f"s_and_b32 s{T0}, s{RB}, 4")
            a(f"s_add_u32 s{T0}, s{T0}, s{T1}")
            a(f"s_lshl_b32 s{T0}, s{T0}, 9")
            a(f"s_lshl_b32 s{T1}, s{FB}, 2")
            a(f"s_add_u32 s{T0}, s{T0}, s{T1}")
            a(f"s_add_u32 s{T0}, s{T0}, {SFLAG}")
            a("v_lshrrev_b32 v26, 2, v1")
            a("v_lshlrev_b32 v26, 12, v26")
            a("v_and_b32 v27, 3, v1")
            a("v_lshl_add_u32 v26, v27, 9, v26")
            a("v_mov_b32 v27, 1")
            a("s_mov_b32 exec_lo, 0xfffffff")
            a("s_mov_b32 exec_hi, 0")
            a(f"buffer_store_dword v27, v26, s[28:31], s{T0} offen sc1")
            a("s_mov_b64 exec, -1")
            a.lab(lb)
        if c == SC0:
            lb = a.new("k_s0")
            a("s_cmp_lg_u32 s32, 7")
            a(f"s_cbranch_scc1 {lb}")
            a("s_waitcnt vmcnt(0)")
            a(f"buffer_load_dword v25, v24, s[28:31], s{YF} offen offset:384 sc1")
            a.lab(lb)
        if c in (SC0 + 2, SC0 + 4):
            lb, rt = a.new("k_s1"), a.new("k_s1r")
            a("s_cmp_lg_u32 s32, 7")
            a(f"s_cbranch_scc1 {lb}")
            a(f"s_cmp_eq_u32 s{T5}, 1")
            a(f"s_cbranch_scc1 {lb}")
            a("s_waitcnt vmcnt(0)")
            stats_ok(rt)
            stats_load()
            a(f"s_mov_b32 s{T5}, 1")
            a(f"s_branch {lb}")
            a.lab(rt)
            a(f"buffer_load_dword v25, v24, s[28:31], s{YF} offen offset:384 sc1")
            a.lab(lb)
        if c == int(E('TKC', '-1')):
            lb = a.new("k_notk")
            a("s_cmp_lg_u32 s32, 6")
            a(f"s_cbranch_scc1 {lb}")
            srd(a, SA, SSMK, 448 * 4096)
            a("v_lshlrev_b32 v31, 7, v1")
            a(f"s_lshl_b32 s{T0}, s2, 13")
            a(f"buffer_load_dword v31, v31, s[{SA}:{SA+3}], s{T0} offen")
            a.lab(lb)
        if EARLY and c in (10, 11, 12):
            pair = {10: 0, 11: 1, 12: 2}[c]
            lb = a.new("k_noew")
            a(f"s_cmp_lg_u32 s{TG}, {pair}")
            a(f"s_cbranch_scc1 {lb}")
            early_w(EARLY)
            a.lab(lb)
        WT0 = int(E("WT0", "-99"))
        if WT0 <= c < WT0 + 7:
            lb = a.new("k_nowt")
            a(f"s_cmp_lg_u32 s32, {c - WT0}")
            a(f"s_cbranch_scc1 {lb}")
            srd(a, SA, WD, 1792 * 896)
            a("v_lshlrev_b32 v31, 7, v1")
            a(f"s_mul_i32 s{T0}, s{J}, {448 * 128}")
            a(f"s_add_u32 s{T0}, s{T0}, {(c - WT0) * 8192}")
            a(f"buffer_load_dword v31, v31, s[{SA}:{SA+3}], s{T0} offen")
            a.lab(lb)
        if c == int(E("KVT", "-1")):
            lb = a.new("k_nokv")
            a("s_cmp_lg_u32 s32, 5")
            a(f"s_cbranch_scc1 {lb}")
            srd(a, SA, K_, 2048 * 896)
            srd(a, SB, V_, 2048 * 896)
            a("v_lshlrev_b32 v31, 7, v1")
            a(f"s_lshl_b32 s{T0}, s2, 13")
            a(f"buffer_load_dword v30, v31, s[{SA}:{SA+3}], s{T0} offen")
            a(f"buffer_load_dword v31, v31, s[{SB}:{SB+3}], s{T0} offen")
            a.lab(lb)
        mfmas(c, 1)
    a.stamp(3)
    a.post = True
    if E("EPRIO", "1") == "1": a("s_setprio 2")
    srd(a, SB, WD, 1792 * 896)
    a("v_lshlrev_b32 v10, 4, v1")
    a("v_lshrrev_b32 v2, 3, v1")
    a("v_mul_u32_u24 v2, 896, v2")
    a("v_bfe_u32 v3, v1, 4, 1")
    a("v_lshlrev_b32 v3, 2, v3")
    a("v_and_b32 v4, 7, v1")
    a("v_xor_b32 v3, v3, v4")
    a("v_lshl_add_u32 v2, v3, 4, v2")
    a(f"s_lshl_b32 s{T0}, s{CB}, 7")
    a(f"v_add_u32 v11, s{T0}, v2")
    RBASE, WROW, HB0, HB1 = T6, J, R4, R5
    a(f"s_xor_b32 s{RBASE}, s32, 4")
    a(f"s_mul_i32 s{RBASE}, s{RBASE}, {RING}")
    a(f"s_mul_i32 s{WROW}, s32, {14 * 16 * 896}")
    a(f"s_mul_i32 s{HB0}, s{TB}, 448")
    a(f"s_mul_i32 s{T0}, s32, 28")
    a(f"s_add_u32 s{HB0}, s{HB0}, s{T0}")
    a(f"s_lshl_b32 s{HB0}, s{HB0}, 9")
    a(f"s_add_u32 s{HB1}, s{HB0}, {224 * 512}")
    a("v_bfe_u32 v2, v1, 5, 1")
    a("v_bfe_u32 v3, v1, 2, 2")
    a("v_lshl_add_u32 v2, v2, 2, v3")
    a("v_lshlrev_b32 v2, 7, v2")
    a("v_bfe_u32 v3, v1, 4, 1")
    a("v_and_b32 v4, 3, v1")
    a("v_lshlrev_b32 v4, 3, v4")
    a("v_lshl_or_b32 v4, v3, 5, v4")
    a("v_bfe_u32 v3, v1, 3, 1")
    a("v_lshl_or_b32 v4, v3, 6, v4")
    a(f"v_add3_u32 v12, v2, v4, s{RBASE}")
    a("v_xor_b32 v13, 64, v12")
    a("v_and_b32 v2, 31, v1")
    a(f"s_lshl_b32 s{T0}, s32, 5")
    a(f"v_add_u32 v2, s{T0}, v2")
    a("v_lshlrev_b32 v3, 2, v2")
    a(f"v_add_u32 v4, {A_STATS}, v3")
    a("v_mov_b32 v3, v4")
    a("v_lshrrev_b32 v5, 5, v1")
    a("v_lshlrev_b32 v5, 4, v5")
    a(f"s_lshl_b32 s{T0}, s{CG}, 7")
    a(f"s_add_u32 s{T0}, s{T0}, {A_CS}")
    a(f"v_add_u32 v6, s{T0}, v5")
    a("v_lshlrev_b32 v2, 4, v1")
    a("v_xor_b32 v3, 128, v3")
    lb, lp, rt, ok = a.new("k_icd"), a.new("k_icl"), a.new("k_icr"), a.new("k_ick")
    a("s_cmp_lg_u32 s32, 7")
    a(f"s_cbranch_scc1 {lb}")
    a(f"s_cmp_eq_u32 s{T5}, 1")
    a(f"s_cbranch_scc1 {ok}")
    a.lab(lp)
    a("s_waitcnt vmcnt(0)")
    stats_ok(rt)
    stats_load()
    a(f"s_branch {ok}")
    a.lab(rt)
    a("s_sleep 2")
    a(f"buffer_load_dword v25, v24, s[28:31], s{YF} offen offset:384 sc1")
    a(f"s_branch {lp}")
    a.lab(ok)
    a("s_waitcnt vmcnt(0)")
    for i in range(4):
        a(f"v_xor_b32 v{136+i}, 0x80000000, v{128+2*i}")
    a("v_lshlrev_b32 v26, 4, v1")
    a(f"v_add_u32 v26, {A_STATS}, v26")
    a("ds_write_b128 v26, v[136:139]")
    a.lab(lb)
    if E("TE1"):
        lp = a.new("tprobe")
        a.lab(lp)
        a("s_memrealtime s[98:99]")
        a("s_waitcnt lgkmcnt(0)")
        a("s_sub_u32 s98, s98, s96")
        a(f"s_cmp_lt_u32 s98, {int(E('TE1'))}")
        a(f"s_cbranch_scc1 {lp}")
    a("s_waitcnt lgkmcnt(0)")
    a("s_barrier")
    a.stamp(4)
    a("ds_read_b32 v28, v4")
    a("ds_read_b32 v30, v3")
    CSR, CS2 = 128, 32
    for half, base in ((0, CSR), (1, CS2)):
        for ct in range(2):
            for mat in range(2):
                for q in range(2):
                    a(f"ds_read_b128 {v(base + 16*ct + 8*mat + 4*q, 4)}, v6 offset:{mat*512 + half*256 + ct*64 + q*32}")
    a("s_waitcnt lgkmcnt(0)")
    for i in range(0, 32, 2):
        a(f"v_pk_add_f32 {v(CSR+i,2)}, {v(CSR+i,2)}, {v(CS2+i,2)}")
    ops = ["start"]
    WR = [128, 136, 144, 152, 160, 48, 56]
    HB = [16, 24, 32, 40]
    def issue_w(i):
        sl = i % RING_D
        for hh in range(2):
            a(f"s_add_u32 m0, s{RBASE}, {sl * 2048 + hh * 1024}")
            a(f"s_add_u32 s{T0}, s{WROW}, {(16 * i + 8 * hh) * 896}")
            a(f"buffer_load_dwordx4 v11, s[{SB}:{SB+3}], s{T0} offen lds")
            ops.append(("w", i))
    def issue_h(i):
        for tt in range(2):
            a(f"s_add_u32 s{T0}, s{HB0 + tt}, {i * 1024}")
            a(f"buffer_load_dwordx4 {v(HB[i % 4] + 4*tt, 4)}, v10, s[28:31], s{T0} offen sc1")
            ops.append(("h", i))
    def wait_for(*keys):
        last = max(max(n for n, o in enumerate(ops) if o == k) for k in keys)
        return len(ops) - 1 - last
    def treads(i, base):
        sl = i % RING_D
        for dt in range(2):
            for half in range(2):
                a(f"ds_read_b64_tr_b16 {v(base + 4*dt + 2*half, 2)}, v{12 + dt} offset:{sl*2048 + half*1024}")
    PRE0 = int(E("PRE0", "4"))
    PREPOS = int(E("PREPOS", "0"))
    if EARLY:
        PRE0 = EARLY
        lb = a.new("k_noew")
        a(f"s_cmp_lg_u32 s{TG}, 3")
        a(f"s_cbranch_scc1 {lb}")
        early_w(EARLY)
        a.lab(lb)
    elif PREPOS == 0:
        for i in range(PRE0):
            issue_w(i)
    for tt in range(2):
        mr = 28 + 2 * tt
        a(f"s_lshl_b32 s{T0}, s{RB}, 3")
        a(f"s_lshl_b32 s{T1}, s{TG}, 1")
        a(f"s_add_u32 s{T0}, s{T0}, s{T1}")
        a(f"s_xor_b32 s{T1}, s{CG}, {tt}")
        a(f"s_add_u32 s{T0}, s{T0}, s{T1}")
        a(f"s_mul_i32 s{T0}, s{T0}, 224")
        a(f"s_lshl_b32 s{T1}, s{FB}, 3")
        a(f"s_add_u32 s{T0}, s{T0}, s{T1}")
        a(f"s_lshl_b32 s{T1}, s{CG}, 2")
        a(f"s_add_u32 s{T0}, s{T0}, s{T1}")
        a(f"s_lshl_b32 s{T0}, s{T0}, 9")
        for ct in range(2):
            acc = 64 + 16 * (2 * ct + tt)
            cs = CSR + 16 * ct
            for i in range(0, 16, 2):
                a(f"v_pk_fma_f32 {v(acc+i,2)}, {v(mr,2)}, {v(cs+i,2)}, {v(acc+i,2)} op_sel:[0,0,0] op_sel_hi:[0,1,1]")
            for i in range(8):
                a(f"v_max_f32 v{acc+i}, 0, v{acc+i}")
            for i in range(4):
                a(f"v_pk_mul_f32 {v(acc+2*i,2)}, {v(acc+2*i,2)}, {v(acc+8+2*i,2)}")
            O = 32 + 4 * (2 * tt + ct)
            for i in range(4):
                a(f"v_cvt_pk_bf16_f32 v{O+i}, v{acc+2*i}, v{acc+2*i+1}")
            a(f"buffer_store_dwordx4 {v(O,4)}, v2, s[28:31], s{T0} offen offset:{ct*1024} sc1")
    if PREPOS == 1:
        for i in range(PRE0):
            issue_w(i)
    a.stamp(5)
    a("v_lshlrev_b32 v5, 12, v1")
    a(f"s_waitcnt vmcnt({2 * PRE0 if PREPOS == 1 else 0})")
    a.stamp(6)
    arrive_publish(a, CNT_H, 8, HF, 5, 28)
    a("s_setprio 0")
    if E("GATE", "1") == "1":
        lp, dn = a.new("gate"), a.new("gated")
        a(f"v_mov_b32 v3, {CNT_U}")
        a.lab(lp)
        a("ds_read_b32 v2, v3")
        a("s_waitcnt lgkmcnt(0)")
        a(f"v_readfirstlane_b32 s{T0}, v2")
        a("s_nop 3")
        a(f"s_cmp_eq_u32 s{T0}, 4")
        a(f"s_cbranch_scc1 {dn}")
        a("s_sleep 1")
        a(f"s_branch {lp}")
        a.lab(dn)
    ops.clear(); ops.append("flag")
    PACE = int(E("PACE", "6"))
    nw = PRE0
    while nw < PACE:
        issue_w(nw); nw += 1
    if PREPOS == 1:
        a(f"s_waitcnt vmcnt({2 * (PACE - PRE0)})")
    for i in range(13):
        if i >= PRE0:
            a(f"s_waitcnt vmcnt({wait_for(('w', i))})")
        if i < 7:
            treads(i, WR[i])
        if nw <= 12:
            if nw >= RING_D:
                assert nw - RING_D <= i
                a("s_waitcnt lgkmcnt(0)")
            issue_w(nw); nw += 1
    a.stamp(7)
    lp, dn = a.new("hpoll"), a.new("hpolled")
    a(f"s_mul_i32 s{T4}, s32, 7")
    a(f"s_lshr_b32 s{T4}, s{T4}, 1")
    a(f"s_lshl_b32 s{T4}, s{T4}, 2")
    a(f"s_add_u32 s{T4}, s{T4}, s{YF}")
    a("v_and_b32 v3, 3, v1")
    a("v_lshlrev_b32 v3, 2, v3")
    a.lab(lp)
    a(f"buffer_load_dword v2, v3, s[28:31], s{T4} offen sc1")
    a("s_waitcnt vmcnt(0)")
    a("v_cmp_ne_u32 vcc, 1, v2")
    a("s_nop 3")
    a("s_cmp_eq_u64 vcc, 0")
    a(f"s_cbranch_scc1 {dn}")
    a(f"s_sleep {int(E('HSLEEP', '6'))}")
    a(f"s_branch {lp}")
    a.lab(dn)
    a.stamp(8)
    ops.clear(); ops.append("base")
    for i in range(4):
        issue_h(i)
    for i in range(14):
        a(f"s_waitcnt vmcnt({wait_for(('h', i))})" + (" lgkmcnt(0)" if i in (0, 7, 13) else ""))
        base = WR[i % 7]
        for tt in range(2):
            for dt in range(2):
                acc = 64 + 16 * (2 * dt + tt)
                cc = "0" if i == 0 else v(acc, 16)
                a(f"v_mfma_f32_32x32x16_bf16 {v(acc,16)}, {v(base + 4*dt, 4)}, {v(HB[i % 4] + 4*tt, 4)}, {cc}")
        if i + 4 < 14: issue_h(i + 4)
        if i < 6:
            treads(i + 7, WR[i])
        if i == 0:
            a("s_waitcnt lgkmcnt(0)")
            issue_w(13)
        if i == 8:
            a(f"s_waitcnt vmcnt({min(wait_for(('w', 13)), 63)})")
            treads(13, WR[6])
            a("v_mov_b32 v2, 1")
            a(f"v_mov_b32 v3, {CNT_R}")
            a("s_waitcnt lgkmcnt(0)")
            a("s_mov_b64 exec, 1")
            a("ds_add_u32 v3, v2")
            a("s_mov_b64 exec, -1")
        if i == 9:
            a(f"s_lshl_b32 s{T0}, s{TB}, 6")
            a("v_lshrrev_b32 v2, 3, v0")
            a(f"v_add_u32 v3, s{T0}, v2")
            a(f"s_movk_i32 s{T1}, 896")
            a(f"v_mul_lo_u32 v4, v3, s{T1}")
            a("v_and_b32 v5, 7, v0")
            a("v_lshl_add_u32 v4, v5, 4, v4")
            a(f"s_lshl_b32 s{T0}, s{CB}, 7")
            a(f"v_add_u32 v14, s{T0}, v4")
            srd(a, SA, Q, 2048 * 896)
            a(f"buffer_load_dwordx4 v[128:131], v14, s[{SA}:{SA+3}], 0 offen")
            ops.append("x")
        if i == 6: a.stamp(9)
    a.stamp(10)
    lp, dn = a.new("pwait"), a.new("pwaited")
    a(f"v_mov_b32 v4, {CNT_Y}")
    a.lab(lp)
    a("ds_read_b64 v[2:3], v4")
    a("s_waitcnt lgkmcnt(0)")
    a(f"v_readfirstlane_b32 s{T0}, v2")
    a(f"v_readfirstlane_b32 s{T1}, v3")
    a("s_nop 3")
    a(f"s_lshl_b32 s{T0}, s{T0}, 8")
    a(f"s_add_u32 s{T0}, s{T0}, s{T1}")
    a(f"s_cmp_eq_u32 s{T0}, 0x408")
    a(f"s_cbranch_scc1 {dn}")
    a("s_sleep 1")
    a(f"s_branch {lp}")
    a.lab(dn)
    a("v_and_b32 v2, 31, v1")
    a("v_mul_u32_u24 v2, 272, v2")
    a("v_lshrrev_b32 v3, 5, v1")
    a("v_lshl_add_u32 v2, v3, 4, v2")
    a(f"s_mul_i32 s{T0}, s32, {PART}")
    a(f"v_add_u32 v2, s{T0}, v2")
    for tt in range(2):
        for dt in range(2):
            acc = 64 + 16 * (2 * dt + tt)
            for q in range(4):
                a(f"ds_write_b128 v2, {v(acc + 4*q, 4)} offset:{tt*32*272 + dt*128 + q*32}")
    a("s_branch k_final")

    a.lab("k_helper")
    a.role = "c"
    HW, MAT, MX, MW = R0, R1, R2, R3
    a(f"s_sub_u32 s{HW}, s32, 8")
    a(f"s_lshr_b32 s{MAT}, s{HW}, 1")
    a(f"s_lshl_b32 s{MX}, s{HW}, 12")
    a(f"s_lshl_b32 s{MW}, s{HW}, 11")
    a(f"s_add_u32 s{MW}, s{MW}, 16384")
    a(f"s_lshl_b32 s{T0}, s{RB}, 8")
    a(f"s_lshl_b32 s{T1}, s{HW}, 6")
    a(f"s_add_u32 s{T0}, s{T0}, s{T1}")
    a("v_lshrrev_b32 v2, 2, v1")
    a(f"v_add_u32 v2, s{T0}, v2")
    a(f"s_movk_i32 s{T1}, 896")
    a(f"v_mul_lo_u32 v2, v2, s{T1}")
    a("v_and_b32 v3, 3, v1")
    a("v_bfe_u32 v4, v1, 4, 2")
    a("v_xor_b32 v3, v3, v4")
    a("v_lshl_add_u32 v10, v3, 4, v2")
    a(f"s_and_b32 s{T0}, s{HW}, 1")
    a(f"s_lshl_b32 s{T0}, s{T0}, 4")
    a("v_lshrrev_b32 v2, 3, v1")
    a(f"v_add_u32 v2, s{T0}, v2")
    a(f"s_movk_i32 s{T1}, 3584")
    a(f"v_mul_lo_u32 v2, v2, s{T1}")
    a(f"s_lshl_b32 s{T0}, s{FB}, 7")
    a(f"v_add_u32 v2, s{T0}, v2")
    a("v_bfe_u32 v4, v1, 4, 1")
    a("v_lshlrev_b32 v4, 1, v4")
    a(f"s_lshl_b32 s{T0}, s{MAT}, 2")
    a(f"v_or_b32 v4, s{T0}, v4")
    a("v_and_b32 v3, 7, v1")
    a("v_xor_b32 v5, v3, v4")
    a("v_lshl_add_u32 v11, v5, 4, v2")
    a("s_waitcnt lgkmcnt(0)")
    srd(a, SA, Q, 2048 * 896)
    a(f"s_cmp_eq_u32 s{MAT}, 1")
    a(f"s_cselect_b32 s{SB}, s{WU}, s{WG}")
    a(f"s_cselect_b32 s{SB+1}, s{WU+1}, s{WG+1}")
    a(f"s_and_b32 s{SB+1}, s{SB+1}, 0xffff")
    a(f"s_mov_b32 s{SB+2}, {448 * 3584}")
    a(f"s_mov_b32 s{SB+3}, 0x00020000")
    def dma(c):
        st = c % NST
        for i in range(2):
            a(f"s_add_u32 m0, s{MW}, {st * STAGE + 1024 * i}")
            a(f"s_mov_b32 s{T0}, {(c * 32 + 8 * i) * 3584}")
            a(f"buffer_load_dwordx4 v11, s[{SB}:{SB+3}], s{T0} offen lds")
        for i in range(4):
            a(f"s_add_u32 m0, s{MX}, {st * STAGE + 1024 * i}")
            a(f"s_mov_b32 s{T0}, {64 * c + 14336 * i}")
            a(f"buffer_load_dwordx4 v10, s[{SA}:{SA+3}], s{T0} offen lds")
    PRO = int(E("PRO", "3"))
    PRO0 = int(E("PRO0", "3"))
    for c in range(PRO0):
        dma(c)
    srd(a, 28, WS, WS_REC)
    a("v_lshrrev_b32 v2, 3, v1")
    a("v_lshlrev_b32 v2, 7, v2")
    a("v_lshl_add_u32 v2, v5, 4, v2")
    a(f"v_add_u32 v20, s{MW}, v2")
    a(f"v_add_u32 v21, {SPS * STAGE}, v20")
    for r in range(24, 32):
        a(f"v_mov_b32 v{r}, 0")
    a("v_lshlrev_b32 v9, 4, v1")
    CHN, KROW = R4, R5
    a(f"s_lshl_b32 s{CHN}, s2, 1")
    a(f"s_add_u32 s{CHN}, s{CHN}, s{MAT}")
    a(f"s_lshl_b32 s{KROW}, s{CHN}, 12")
    a(f"s_add_u32 s{SC}, s{SSMK}, s{KROW}")
    a(f"s_addc_u32 s{SC+1}, s{SSMK+1}, 0")
    a(f"s_and_b32 s{SC+1}, s{SC+1}, 0xffff")
    a(f"s_movk_i32 s{SC+2}, 4096")
    a(f"s_mov_b32 s{SC+3}, 0x00020000")
    a(f"s_lshl_b32 s{T0}, s2, 2")
    a(f"s_load_dword s{T6}, s[{SSMD}:{SSMD+1}], s{T0}")
    a("v_subrev_u32 v12, 32, v9")
    a("v_subrev_u32 v13, 16, v9")
    a("v_add_u32 v14, 992, v9")
    BUF = [32, 40]
    def hreads(c):
        b = BUF[c & 1]
        stg = c % NST
        o = (stg % SPS) * STAGE
        for i in range(2):
            a(f"ds_read_b128 {v(b + 4*i, 4)}, v{20 + stg//SPS} offset:{o + 1024*i}")
    def hsum(c):
        b = BUF[c & 1]
        for i in range(8):
            t = 48 + 2 * (i & 1)
            unpack(a, t, b + i)
            a(f"v_add_f32 v{24 + 2*(i & 3)}, v{24 + 2*(i & 3)}, v{t}")
            a(f"v_add_f32 v{25 + 2*(i & 3)}, v{25 + 2*(i & 3)}, v{t+1}")
    BD = 104
    roff = [None, 0, 1024, 2048, 2080]
    CBASE, UBASE = T4, T5
    a(f"s_mul_i32 s{CBASE}, s{MAT}, {CONV_CH}")
    a(f"s_add_u32 s{CBASE}, s{CBASE}, {CONV0}")
    a(f"s_add_u32 s{UBASE}, s{CBASE}, {4 * CPITCH}")
    a(f"v_add_u32 v15, s{CBASE}, v9")
    woff = [0, 1024, 2048, 3072, 3104]
    EE = 144
    def build(r):
        D = BD + 8 * r
        E_ = EE + 12 * (r & 1)
        a(f"ds_write_b128 v15, {v(D,4)} offset:{woff[r]}")
        for p in range(4):
            a(f"v_alignbit_b32 v{E_+p}, v{D+p+1}, v{D+p}, 16")
        for p in range(4):
            a(f"v_mov_b32 v{E_+4+p}, v{D+p+1}")
        for p in range(4):
            a(f"v_alignbit_b32 v{E_+8+p}, v{D+p+2}, v{D+p+1}, 16")
        for sidx in range(3):
            a(f"ds_write_b128 v15, {v(E_+4*sidx,4)} offset:{woff[r] + (sidx+1)*CPITCH}")
    hops = []
    for c in range(PRO0): hops += [("d", c)] * 6
    nxt_d = PRO0
    def hwait(key):
        last = max(n for n, o in enumerate(hops) if o == key)
        return len(hops) - 1 - last
    KC = int(E("KC", "11"))
    BC = 99
    a(f"s_waitcnt vmcnt({hwait(('d', 0))})")
    a("s_barrier")
    a.stamp(2)
    for c in range(14):
        hreads(c)
        lim = min(13, c + PRO if c >= int(E("CATCH", "1")) else c + PRO0)
        while nxt_d <= lim:
            dma(nxt_d); hops += [("d", nxt_d)] * 6; nxt_d += 1
        if c == KC:
            a(f"s_lshl_b32 s{T2}, s2, 9")
            a(f"s_add_u32 s{T2}, s{T2}, {PFLAG}")
            a("v_and_b32 v17, 31, v1")
            a("v_lshlrev_b32 v17, 2, v17")
            a(f"buffer_load_dwordx4 {v(BD,4)}, v12, s[{SC}:{SC+3}], 0 offen")
            a(f"buffer_load_dwordx2 {v(BD+4,2)}, v13, s[{SC}:{SC+3}], 0 offen")
            for r in range(1, 5):
                a(f"buffer_load_dwordx4 {v(BD+8*r,4)}, v14, s[{SC}:{SC+3}], 0 offen offset:{roff[r]}")
                a(f"buffer_load_dwordx2 {v(BD+8*r+4,2)}, v14, s[{SC}:{SC+3}], 0 offen offset:{roff[r]+16}")
            hops += ["k"] * 10
            srd(a, SA, WD, 1792 * 896)
            a(f"s_mul_i32 s{T0}, s2, 7168")
            a(f"s_lshl_b32 s{T1}, s{HW}, 11")
            a(f"s_add_u32 s{T0}, s{T0}, s{T1}")
            a(f"buffer_load_dwordx4 v[52:55], v9, s[{SA}:{SA+3}], s{T0} offen")
            a(f"buffer_load_dwordx4 v[52:55], v9, s[{SA}:{SA+3}], s{T0} offen offset:1024")
            hops += ["p"] * 2
        if c == int(E("PMC", "13")):
            a(f"buffer_load_dword v16, v17, s[28:31], s{T2} offen sc1")
            hops += ["pm"]
        if c > 0:
            hsum(c - 1)
        if BC <= c < BC + 5 and not E('NOBUILD'):
            assert BC > KC + PRO
            build(c - BC)
        if c < 13:
            a(f"s_waitcnt vmcnt({hwait(('d', c + 1))}) lgkmcnt(0)")
            a("s_barrier")
        else:
            a("s_waitcnt lgkmcnt(0)")
    def urev_try():
        sk = a.new("k_urs")
        a("v_cmp_ne_u32 vcc, 1, v16")
        a(f"s_mov_b32 s{MX}, 0")
        a("s_nop 2")
        a("s_cmp_lg_u64 vcc, 0")
        a(f"s_cbranch_scc1 {sk}")
        a(f"s_add_u32 s{T0}, s{KROW}, {UREV_OFF}")
        a(f"s_add_u32 s{SC}, s{WS}, s{T0}")
        a(f"s_addc_u32 s{SC+1}, s{WS+1}, 0")
        a(f"s_and_b32 s{SC+1}, s{SC+1}, 0xffff")
        a(f"s_movk_i32 s{SC+2}, 4096")
        a(f"s_mov_b32 s{SC+3}, 0x00020000")
        for r in range(5):
            a(f"s_add_u32 m0, s{UBASE}, {r * 1024}")
            a(f"s_movk_i32 s{T0}, {r * 1024}")
            a(f"buffer_load_dwordx4 v9, s[{SC}:{SC+3}], s{T0} offen sc1 lds")
        a(f"s_mov_b32 s{MX}, 1")
        a("v_mov_b32 v2, 1")
        a(f"v_mov_b32 v3, {CNT_U}")
        a("s_mov_b64 exec, 1")
        a("ds_add_u32 v3, v2")
        a("s_mov_b64 exec, -1")
        a.lab(sk)
    hsum(13)
    a.stamp(3)
    a("s_nop 1")
    for i in range(8):
        a(f"v_add_f32_dpp v{24+i}, v{24+i}, v{24+i} row_ror:8 row_mask:0xf bank_mask:0xf")
    for i in range(8):
        a(f"v_mov_b32 v{32+i}, v{24+i}")
    a("s_nop 1")
    for i in range(8):
        a(f"v_permlane16_swap_b32 v{24+i}, v{32+i}")
    a("s_nop 1")
    for i in range(8):
        a(f"v_add_f32 v{24+i}, v{24+i}, v{32+i}")
    for i in range(8):
        a(f"v_mov_b32 v{32+i}, v{24+i}")
    a("s_nop 1")
    for i in range(8):
        a(f"v_permlane32_swap_b32 v{24+i}, v{32+i}")
    a("s_nop 1")
    for i in range(8):
        a(f"v_add_f32 v{24+i}, v{24+i}, v{32+i}")
    a(f"s_lshl_b32 s{T0}, s{HW}, 8")
    a(f"s_add_u32 s{T0}, s{T0}, {A_CS}")
    a(f"v_lshl_add_u32 v2, v1, 5, s{T0}")
    a("s_mov_b64 exec, 0xff")
    a("ds_write_b128 v2, v[24:27]")
    a("ds_write_b128 v2, v[28:31] offset:16")
    a("s_mov_b64 exec, -1")
    a("s_waitcnt lgkmcnt(0)")
    a("s_barrier")
    a.stamp(4)

    a(f"s_setprio {int(E('CPRIO', '1'))}")
    lb = a.new("k_kw")
    a(f"s_waitcnt vmcnt({hwait('pm')})")
    urev_try()
    a(f"s_cmp_eq_u32 s{MX}, 1")
    a(f"s_cbranch_scc1 {lb}")
    a(f"buffer_load_dword v16, v17, s[28:31], s{T2} offen sc1")
    a("s_waitcnt vmcnt(1)")
    a.lab(lb)
    a("s_waitcnt vmcnt(5)")
    a.stamp(11)
    for r in range(5):
        build(r)
        if r in (1, 3):
            lb = a.new("k_mid")
            a(f"s_cmp_eq_u32 s{MX}, 1")
            a(f"s_cbranch_scc1 {lb}")
            a("s_waitcnt vmcnt(0)")
            urev_try()
            a(f"s_cmp_eq_u32 s{MX}, 1")
            a(f"s_cbranch_scc1 {lb}")
            a(f"buffer_load_dword v16, v17, s[28:31], s{T2} offen sc1")
            a.lab(lb)
            a("s_waitcnt lgkmcnt(0)")
        elif r < 4: a("s_waitcnt lgkmcnt(4)")
    a.stamp(12)
    lp, ok = a.new("k_ppl"), a.new("k_ppk")
    a.lab(lp)
    a(f"s_cmp_eq_u32 s{MX}, 1")
    a(f"s_cbranch_scc1 {ok}")
    a("s_waitcnt vmcnt(0)")
    urev_try()
    a(f"s_cmp_eq_u32 s{MX}, 1")
    a(f"s_cbranch_scc1 {ok}")
    a("s_sleep 4")
    a(f"buffer_load_dword v16, v17, s[28:31], s{T2} offen sc1")
    a(f"s_branch {lp}")
    a.lab(ok)
    a.stamp(5)
    a("v_and_b32 v2, 15, v1")
    a("v_lshrrev_b32 v3, 4, v1")
    a("v_lshl_add_u32 v4, v3, 3, v2")
    a("v_add_u32 v4, 1, v4")
    a("v_and_b32 v5, 3, v4")
    a(f"v_mul_u32_u24 v5, {CPITCH}, v5")
    a("v_lshrrev_b32 v4, 2, v4")
    a("v_lshl_add_u32 v5, v4, 3, v5")
    a(f"v_add_u32 v22, s{CBASE}, v5")
    a("v_lshlrev_b32 v4, 5, v2")
    a("v_sub_u32 v4, 480, v4")
    a("v_lshl_add_u32 v4, v3, 4, v4")
    a(f"v_add_u32 v23, s{UBASE}, v4")
    a("v_lshlrev_b32 v4, 5, v2")
    a("v_lshl_add_u32 v8, v3, 3, v4")
    a("v_sub_u32 v5, 504, v8")
    a(f"v_add_u32 v19, s{UBASE}, v5")
    a(f"s_add_u32 s{KROW}, s{KROW}, {Y2_OFF}")
    a(f"s_cmp_eq_u32 s{MAT}, 0")
    a(f"s_cselect_b32 s{T0}, 16, 0")
    a(f"s_lshl_b32 s{T6}, s{T6}, s{T0}")
    a(f"s_and_b32 s{T6}, s{T6}, 0xffff0000")
    a("s_waitcnt vmcnt(0) lgkmcnt(0)")
    a.stamp(6)
    a(f"s_and_b32 s{T0}, s{HW}, 1")
    a(f"s_cmp_eq_u32 s{T0}, 1")
    a("s_cbranch_scc1 k_conv1")
    def conv_body(tiles):
        amax = max(tiles)
        SET = [(40, 72), (104, 136)]
        def rd(c0i):
            Tb, Hb = SET[c0i & 1]
            L = []
            for k in range(amax + 1):
                L.append(f"ds_read_b64 {v(Tb+4*k,2)}, v22 offset:{64*c0i + 512*k}")
                L.append(f"ds_read_b64 {v(Tb+4*k+2,2)}, v22 offset:{64*c0i + 512*k + 8}")
                L.append(f"ds_read_b128 {v(Hb+4*k,4)}, v23 offset:{64*c0i + 512*(7-k)}")
            return L
        for x in rd(0): a(x)
        for c0i in range(int(E('NC0', '8'))):
            Tb, Hb = SET[c0i & 1]
            a("s_waitcnt lgkmcnt(0)")
            nxt = rd(c0i + 1) if c0i < int(E('NC0', '8')) - 1 else []
            mf = []
            lists = [[(bi, aa, b - aa) for aa in range(b + 1)] for bi, b in enumerate(tiles)]
            while any(lists):
                for l_ in lists:
                    if l_: mf.append(l_.pop(0))
            seen = set()
            for n, (bi, aa, m) in enumerate(mf):
                acc = 24 + 4 * bi
                cc = "0" if (c0i == 0 and bi not in seen) else v(acc, 4)
                seen.add(bi)
                a(f"v_mfma_f32_16x16x32_bf16 {v(acc,4)}, {v(Tb+4*aa,4)}, {v(Hb+4*m,4)}, {cc}")
                for _ in range(2):
                    if nxt: a(nxt.pop(0))
            assert not nxt
        for bi, b in enumerate(tiles):
            a(f"ds_read_b64 {v(40+2*bi,2)}, v19 offset:{512*(7-b)}")
        a("s_waitcnt lgkmcnt(0)")
        a("s_nop 4")
        for bi, b in enumerate(tiles):
            acc = 24 + 4 * bi
            K0, K1 = 40 + 2 * bi, 41 + 2 * bi
            T = 48 + 8 * bi
            a(f"v_and_b32 v{T+0}, 0xffff0000, v{K1}")
            a(f"v_lshlrev_b32 v{T+1}, 16, v{K1}")
            a(f"v_and_b32 v{T+2}, 0xffff0000, v{K0}")
            a(f"v_lshlrev_b32 v{T+3}, 16, v{K0}")
            for e in range(4):
                a(f"v_fma_f32 v{T+e}, s{T6}, v{T+e}, v{acc+e}")
            a(f"v_cvt_pk_bf16_f32 v{T+4}, v{T+0}, v{T+1}")
            a(f"v_cvt_pk_bf16_f32 v{T+5}, v{T+2}, v{T+3}")
            a(f"buffer_store_dwordx2 {v(T+4,2)}, v8, s[28:31], s{KROW} offen offset:{512*b} sc1")
    conv_body([0, 3, 4, 7])
    a("s_branch k_conv_done")
    a.lab("k_conv1")
    conv_body([1, 2, 5, 6])
    a.lab("k_conv_done")
    a.stamp(7)
    a(f"s_lshr_b32 s{T0}, s2, 5")
    a(f"s_lshl_b32 s{T0}, s{T0}, 12")
    a(f"s_and_b32 s{T1}, s2, 31")
    a(f"s_lshl_b32 s{T1}, s{T1}, 2")
    a(f"s_add_u32 s{T0}, s{T0}, s{T1}")
    a(f"s_add_u32 s{T0}, s{T0}, {YFLAG}")
    a("v_lshrrev_b32 v5, 3, v1")
    a(f"v_mul_u32_u24 v5, {56*512}, v5")
    a("v_and_b32 v6, 7, v1")
    a("v_lshl_add_u32 v5, v6, 9, v5")
    a("s_waitcnt vmcnt(0)")
    a.stamp(8)
    arrive_publish(a, CNT_Y, 4, T0, 5, 32)
    a("v_lshrrev_b32 v6, 3, v1")
    a("v_and_b32 v7, 7, v1")
    a("v_lshlrev_b32 v5, 4, v7")
    a("v_lshl_add_u32 v5, v6, 12, v5")
    a(f"s_lshl_b32 s{T1}, s{CB}, 18")
    a(f"s_lshl_b32 s{T2}, s{TB}, 7")
    a(f"s_add_u32 s{T1}, s{T1}, s{T2}")
    a(f"s_lshl_b32 s{T2}, s{HW}, 16")
    a(f"s_add_u32 s{T1}, s{T1}, s{T2}")
    a(f"s_add_u32 s{T1}, s{T1}, {Y2_OFF}")
    a(f"s_add_u32 s{T2}, s{T1}, {8*4096}")
    a(f"s_lshl_b32 s{T0}, s{HW}, 1")
    a(f"v_xor_b32 v8, s{T0}, v7")
    a("v_lshlrev_b32 v8, 4, v8")
    a("v_lshl_add_u32 v8, v7, 10, v8")
    a("v_lshl_add_u32 v8, v6, 1, v8")
    a(f"v_add_u32 v8, {Y2S}, v8")
    a("v_xor_b32 v9, 16, v8")
    a(f"s_lshl_b32 s{T0}, s2, 9")
    a(f"s_lshl_b32 s{T4}, s{HW}, 5")
    a(f"s_add_u32 s{T0}, s{T0}, s{T4}")
    a(f"s_add_u32 s{T0}, s{T0}, {YFLAG}")
    poll(a, T0, 8, sleep=8)
    a.stamp(9)
    a(f"buffer_load_dwordx4 v[24:27], v5, s[28:31], s{T1} offen sc1")
    a(f"buffer_load_dwordx4 v[28:31], v5, s[28:31], s{T2} offen sc1")
    for it in range(2):
        a(f"s_waitcnt vmcnt({1-it})")
        for e in range(8):
            op = "ds_write_b16_d16_hi" if e & 1 else "ds_write_b16"
            a(f"{op} v{8+it}, v{24 + 4*it + e//2} offset:{e*128}")
    lb = a.new("k_nost")
    a("s_cmp_lg_u32 s32, 8")
    a(f"s_cbranch_scc1 {lb}")
    a(f"s_lshl_b32 s{T0}, s2, 9")
    a(f"s_and_b32 s{T1}, s{TB}, 3")
    a(f"s_lshl_b32 s{T1}, s{T1}, 4")
    a(f"s_add_u32 s{T0}, s{T0}, s{T1}")
    a(f"s_add_u32 s{T0}, s{T0}, {HFLAG}")
    poll(a, T0, 4, sleep=8)
    a("v_lshlrev_b32 v7, 3, v1")
    a(f"s_lshl_b32 s{T2}, s{TB}, 9")
    a(f"s_add_u32 s{T2}, s{T2}, {STATS_OFF}")
    a(f"buffer_load_dwordx2 v[24:25], v7, s[28:31], s{T2} offen sc1")
    a(f"v_add_u32 v7, {STS}, v7")
    a("s_waitcnt vmcnt(0)")
    a("ds_write_b64 v7, v[24:25]")
    a.lab(lb)
    a.stamp(10)
    a("s_waitcnt lgkmcnt(0)")
    a("s_barrier")
    a.fin()
    a("s_endpgm")

    a.lab("k_final")
    a.role = "f"
    a.stamp(11)
    a("s_waitcnt vmcnt(0) lgkmcnt(0)")
    a("s_barrier")
    a.stamp(12)
    a("v_lshrrev_b32 v2, 3, v0")
    a("v_and_b32 v3, 7, v0")
    a("v_mul_u32_u24 v4, 272, v2")
    a("v_lshl_add_u32 v4, v3, 5, v4")
    a(f"v_add_u32 v5, {3*PART}, v4")
    a(f"v_add_u32 v8, {6*PART}, v4")
    a("v_lshlrev_b32 v7, 3, v2")
    a(f"v_add_u32 v7, {STS}, v7")
    a("ds_read_b64 v[18:19], v7")
    PR = [24, 32, 40, 48, 96, 104, 112, 120]
    for w in range(8):
        ad = (4, 5, 8)[w // 3]
        for hh in range(2):
            a(f"ds_read_b128 {v(PR[w] + 4*hh, 4)}, v{ad} offset:{(w % 3) * PART + 16*hh}")
        if w == 5: a("s_waitcnt lgkmcnt(8)")
    a("v_lshrrev_b32 v6, 3, v2")
    a("v_xor_b32 v6, v6, v3")
    a("v_lshlrev_b32 v6, 4, v6")
    a("v_lshl_add_u32 v6, v2, 7, v6")
    a(f"v_add_u32 v6, {Y2S}, v6")
    a("ds_read_b128 v[56:59], v6")
    srd(a, SB, OUT, 2048 * 896)
    X, XN, Y = 64, 72, 80
    for i in range(4):
        unpack(a, X + 2 * i, 128 + i)
    a("v_rcp_f32 v21, v19")
    for e in range(8):
        a(f"v_sub_f32 v{XN+e}, v{X+e}, v18")
    a("v_mul_f32 v22, v21, v21")
    for e in range(8):
        a(f"v_mul_f32 v{XN+e}, v{XN+e}, v21")
    a("s_waitcnt lgkmcnt(0)")
    for (d, s_) in ((0, 1), (2, 3), (4, 5), (6, 7), (0, 2), (4, 6), (0, 4)):
        for i in range(0, 8, 2):
            a(f"v_pk_add_f32 {v(PR[d]+i,2)}, {v(PR[d]+i,2)}, {v(PR[s_]+i,2)}")
    for e in range(8):
        a(f"v_mul_f32 v{24+e}, v{24+e}, v22")
    for e in range(8):
        a(f"v_mul_f32 v{32+e}, 0xbfb8aa3b, v{24+e}")
    for e in range(8):
        a(f"v_exp_f32 v{32+e}, v{32+e}")
    for i in range(4):
        unpack(a, Y + 2 * i, 56 + i)
    for e in range(8):
        a(f"v_add_f32 v{32+e}, 1.0, v{32+e}")
    for e in range(8):
        a(f"v_rcp_f32 v{32+e}, v{32+e}")
    for e in range(8):
        a(f"v_mul_f32 v{XN+e}, v{XN+e}, v{Y+e}")
    for e in range(8):
        a(f"v_mul_f32 v{24+e}, v{24+e}, v{32+e}")
    for e in range(8):
        a(f"v_fma_f32 v{24+e}, v{XN+e}, v{24+e}, v{X+e}")
    for i in range(4):
        a(f"v_cvt_pk_bf16_f32 v{88+i}, v{24+2*i}, v{24+2*i+1}")
    for _ in range(int(E("ENDSLEEP", "0"))): a("s_sleep 32")
    if E("TGLOB"):
        a("v_mov_b32 v2, 0")
        a(f"global_load_dword v3, v2, s[{DBG}:{DBG+1}] offset:128 sc1")
        a("s_waitcnt vmcnt(0)")
        a("v_readfirstlane_b32 s96, v3")
        a("s_nop 3")
        a("s_not_b32 s96, s96")
    if E("TFIX"):
        lp = a.new("tfix")
        a.lab(lp)
        a("s_memrealtime s[98:99]")
        a("s_waitcnt lgkmcnt(0)")
        a("s_sub_u32 s98, s98, s96")
        a(f"s_cmp_lt_u32 s98, {int(E('TFIX'))}")
        a(f"s_cbranch_scc1 {lp}")
    a(f"buffer_store_dwordx4 v[88:91], v14, s[{SB}:{SB+3}], 0 offen {E('OST', 'sc1')}")
    a.fin()
    a("s_endpgm")

    a.lab("k_prep")
    a.role = "p"
    P = R0
    a(f"s_sub_u32 s{P}, s2, 224")
    a("s_waitcnt lgkmcnt(0)")
    srd(a, 28, WS, WS_REC)
    a("s_cmp_ge_u32 s32, 8")
    a("s_cbranch_scc1 k_end")
    a("s_cmp_eq_u32 s32, 7")
    a("s_cbranch_scc1 k_prep_flags")
    srd(a, SA, K_, 2048 * 896)
    srd(a, SB, V_, 2048 * 896)
    srd(a, SC, SK, 448 * 8)
    a(f"s_movk_i32 s{T0}, 1171")
    a(f"v_mul_lo_u32 v2, v0, s{T0}")
    a("v_lshrrev_b32 v2, 16, v2")
    a("v_mul_u32_u24 v3, 56, v2")
    a("v_sub_u32 v3, v0, v3")
    a(f"s_lshl_b32 s{T0}, s{P}, 6")
    a(f"v_lshl_add_u32 v4, v2, 3, s{T0}")
    a(f"s_movk_i32 s{T1}, 896")
    a(f"v_mul_lo_u32 v4, v4, s{T1}")
    a("v_lshl_add_u32 v11, v3, 4, v4")
    a("v_subrev_u32 v10, 2688, v11")
    a("v_add_u32 v12, 3584, v11")
    a("v_lshlrev_b32 v13, 6, v3")
    KR, VR, SW = 16, 60, 92
    PD = E("PDELAY", "1") == "1"
    for i in range(4):
        a(f"buffer_load_dwordx4 {v(SW+4*i,4)}, v13, s[{SC}:{SC+3}], 0 offen offset:{16*i}")
    if PD: a("s_waitcnt vmcnt(0)")
    for r in range(11):
        if r < 3: ad, off = 10, r * 896
        elif r < 7: ad, off = 11, (r - 3) * 896
        else: ad, off = 12, (r - 7) * 896
        a(f"buffer_load_dwordx4 {v(KR+4*r,4)}, v{ad}, s[{SA}:{SA+3}], 0 offen offset:{off}")
    for r in range(8):
        ad, off = (11, r * 896) if r < 4 else (12, (r - 4) * 896)
        a(f"buffer_load_dwordx4 {v(VR+4*r,4)}, v{ad}, s[{SB}:{SB+3}], 0 offen offset:{off}")
    a("v_sub_u32 v5, 7, v2")
    a("v_and_b32 v6, 7, v3")
    a("v_xor_b32 v5, v5, v6")
    a("v_lshlrev_b32 v5, 4, v5")
    a("v_lshl_add_u32 v14, v3, 10, v5")
    a.stamp(2)
    a("s_waitcnt vmcnt(0)")
    a.stamp(3)
    WF, KF, RES, OUT_ = 108, 116, 138, 154
    for p in range(4):
        for e in range(2):
            ch = 2 * p + e
            for tap in range(4):
                src = SW + 2 * ch + (tap >> 1)
                if tap & 1: a(f"v_and_b32 v{WF + 2*tap + e}, 0xffff0000, v{src}")
                else: a(f"v_lshlrev_b32 v{WF + 2*tap + e}, 16, v{src}")
        for r in range(11):
            unpack(a, KF + 2 * r, KR + 4 * r + p)
        for i in range(8):
            a(f"v_pk_mul_f32 {v(RES+2*i,2)}, {v(KF+2*i,2)}, {v(WF+6,2)}")
        for tap in (2, 1, 0):
            for i in range(8):
                a(f"v_pk_fma_f32 {v(RES+2*i,2)}, {v(KF+2*(i+3-tap),2)}, {v(WF+2*tap,2)}, {v(RES+2*i,2)}")
        for r in range(8):
            unpack(a, KF + 2 * r, VR + 4 * r + p)
        for i in range(8):
            a(f"v_pk_mul_f32 {v(RES+2*i,2)}, {v(RES+2*i,2)}, {v(KF+2*i,2)}")
        for e in range(2):
            for d in range(4):
                a(f"v_cvt_pk_bf16_f32 v{OUT_+4*e+d}, v{RES+2*(7-2*d)+e}, v{RES+2*(6-2*d)+e}")
        for e in range(2):
            a(f"ds_write_b128 v14, {v(OUT_+4*e,4)} offset:{(2*p+e)*128}")
    a("s_branch k_prep_bar")
    a.lab("k_prep_flags")
    a("v_mov_b32 v4, 0")
    a("v_mov_b32 v5, 0")
    a("v_mov_b32 v6, 0")
    a("v_mov_b32 v7, 0")
    a("v_lshlrev_b32 v2, 4, v1")
    a(f"s_mul_i32 s{T0}, s{P}, 3584")
    a(f"s_add_u32 s{T0}, s{T0}, {FLAG_OFF}")
    for q in range(4):
        if q == 3: a("s_mov_b32 exec_hi, 0")
        a(f"buffer_store_dwordx4 v[4:7], v2, s[28:31], s{T0} offen offset:{1024*q} sc1")
    a("s_mov_b64 exec, 1")
    a("v_mov_b32 v3, 1")
    a("s_waitcnt vmcnt(0) lgkmcnt(0)")
    a(f"global_atomic_add v4, v3, s[{DBG}:{DBG+1}] sc1")
    a("s_mov_b64 exec, -1")
    a.lab("k_prep_bar")
    a.stamp(4)
    a("s_waitcnt lgkmcnt(0)")
    a("s_barrier")
    a.stamp(5)
    a("v_lshrrev_b32 v2, 3, v0")
    a("v_and_b32 v3, 7, v0")
    a("v_xor_b32 v4, s32, v3")
    a("v_lshlrev_b32 v4, 4, v4")
    a("v_lshl_add_u32 v4, v2, 7, v4")
    a("v_lshlrev_b32 v5, 4, v3")
    a("v_lshl_add_u32 v5, v2, 12, v5")
    for it in range(7):
        a(f"ds_read_b128 {v(32+4*it,4)}, v4 offset:{it*8192}")
    a(f"s_lshl_b32 s{T0}, s{P}, 7")
    a(f"s_sub_u32 s{T0}, {UREV_OFF + 1984*2}, s{T0}")
    for it in range(7):
        a(f"s_waitcnt lgkmcnt({6-it})")
        a(f"buffer_store_dwordx4 {v(32+4*it,4)}, v5, s[28:31], s{T0} offen sc1")
        a(f"s_add_u32 s{T0}, s{T0}, {64*4096}")
    lb, lp = a.new("k_prep_icd"), a.new("k_prep_icl")
    a("s_cmp_lg_u32 s32, 7")
    a(f"s_cbranch_scc1 {lb}")
    a("v_mov_b32 v22, 0")
    a.lab(lp)
    a(f"global_load_dword v23, v22, s[{DBG}:{DBG+1}] sc1")
    a("s_waitcnt vmcnt(0)")
    a(f"v_readfirstlane_b32 s{T0}, v23")
    a("s_nop 3")
    a(f"s_cmp_ge_u32 s{T0}, 32")
    a(f"s_cbranch_scc1 {lb}")
    a("s_sleep 12")
    a(f"s_branch {lp}")
    a.lab(lb)
    a("s_waitcnt vmcnt(0)")
    a("s_barrier")
    a.stamp(6)
    lb = a.new("k_prep_np")
    a("s_cmp_lg_u32 s32, 7")
    a(f"s_cbranch_scc1 {lb}")
    a("v_lshlrev_b32 v4, 9, v1")
    a(f"s_lshl_b32 s{T0}, s{P}, 2")
    a(f"s_add_u32 s{T0}, s{T0}, {PFLAG}")
    a("v_mov_b32 v3, 1")
    for q in range(4):
        if q == 3: a("s_mov_b32 exec_hi, 0")
        a(f"buffer_store_dword v3, v4, s[28:31], s{T0} offen sc1")
        a(f"s_add_u32 s{T0}, s{T0}, {64*512}")
    a("s_mov_b64 exec, -1")
    a.lab(lb)
    a.fin()
    a.lab("k_end")
    a.lab("k_last")
    a("s_endpgm")

HDR = open("cdna_kernels/" + NAME + ".s.ref").read().split("; Override launch")[0]

def main():
    out = sys.argv[1] if len(sys.argv) > 1 else f"cdna_kernels/{NAME}.s"
    a = A()
    kernel(a)
    txt = HDR
    txt += f"; @launch grid=(256,1,1) block=(768,1,1) lds={LDS}\n"
    txt += '.amdgcn_target "amdgcn-amd-amdhsa--gfx950"\n.text\n'
    txt += f".globl {KN}\n.p2align 8\n.type {KN},@function\n" + "\n".join(a.L) + "\n"
    txt += f'''.section .rodata,"a"
.p2align 6
.amdhsa_kernel {KN}
  .amdhsa_next_free_vgpr 168
  .amdhsa_next_free_sgpr 102
  .amdhsa_accum_offset 168
  .amdhsa_group_segment_fixed_size 0
  .amdhsa_kernarg_size 104
  .amdhsa_user_sgpr_count 2
  .amdhsa_user_sgpr_kernarg_segment_ptr 1
  .amdhsa_system_sgpr_workgroup_id_x 1
.end_amdhsa_kernel
'''
    open(out, "w").write(txt)

if __name__ == "__main__":
    main()
```

```python
import sys, os
E = os.environ.get

NAME = "recurrent_scan__ssm_conv_h3__glu_gated_reglu__prompt"
KN = NAME + "_kernel"
H_OFF = 0
UREV_OFF = 0x700000
STATS_OFF = 0x8C0000
FLAG_OFF = 0x8D0000
HFLAG = FLAG_OFF
YFLAG = FLAG_OFF + 128
PFLAG = FLAG_OFF + 256
SFLAG = FLAG_OFF + 384
Y2_OFF = 0x900000
WS_REC = 0x1000000
DIAG = int(E("DIAG", "0"))
DIAG_OFF = 0xC00000

class A:
    def __init__(self):
        self.L = []
        self.n = 0
    def __call__(self, s):
        self.L.append("    " + s)
    def lab(self, s):
        self.L.append(s + ":")
    def new(self, p="L"):
        self.n += 1
        return f"{p}_{self.n}"
    def stamp(self, i, real=False):
        if E("LOOPST") and 5 <= i <= 10 and getattr(self, "post", False): return
        if E("TM"):
            role, idx, mode, wv = E("TM").split(":")
            if getattr(self, "role", "") == role and int(idx) == i:
                lb = self.new("tm")
                self(f"s_cmp_lg_u32 s32, {wv}")
                self(f"s_cbranch_scc1 {lb}")
                self("s_memrealtime s[98:99]")
                self("s_waitcnt lgkmcnt(0)")
                self("s_sub_u32 s98, s98, s96")
                if mode == "min": self("s_sub_u32 s98, 0x10000, s98")
                r = 26 if (role == "g" and i <= 4) else 2
                self(f"v_mov_b32 v{r}, 0")
                self(f"v_mov_b32 v{r+1}, s98")
                self("s_mov_b64 exec, 1")
                self(f"global_atomic_umax v{r}, v{r+1}, s[24:25] offset:128 sc1")
                self("s_mov_b64 exec, -1")
                self.lab(lb)
        if E("TP"):
            role, idx, T = E("TP").split(":")
            if getattr(self, "role", "") == role and int(idx) == i:
                lp = self.new("tprobe")
                self.lab(lp)
                self("s_memrealtime s[98:99]")
                self("s_waitcnt lgkmcnt(0)")
                self("s_sub_u32 s98, s98, s96")
                self(f"s_cmp_lt_u32 s98, {T}")
                self(f"s_cbranch_scc1 {lp}")
        if E("LOOPST") and 5 <= i <= 10 and getattr(self, "post", False): return
        if DIAG:
            self(f"s_memrealtime s[{60+2*i}:{61+2*i}]" if (real or DIAG == 2) else f"s_memtime s[{60+2*i}:{61+2*i}]")
    def fin(self, vt=160):
        if DIAG:
            self.stamp(13)
            self("s_waitcnt vmcnt(0)")
            self.stamp(14)
            self.stamp(15, True)
            self("s_waitcnt lgkmcnt(0)")
            self("s_lshl_b32 s33, s2, 4")
            self("s_add_u32 s33, s33, s32")
            self("s_lshl_b32 s33, s33, 7")
            self(f"s_add_u32 s33, s33, {DIAG_OFF}")
            self(f"v_mov_b32 v{vt}, 0")
            for i in range(16):
                self(f"v_mov_b32 v{vt+1}, s{60+2*i}")
                self(f"buffer_store_dword v{vt+1}, v{vt}, s[28:31], s33 offen offset:{4*i}")

def v(a, n=1):
    return f"v{a}" if n == 1 else f"v[{a}:{a+n-1}]"

def srd(a, dst, lo, nrec):
    a(f"s_mov_b32 s{dst}, s{lo}")
    a(f"s_and_b32 s{dst+1}, s{lo+1}, 0xffff")
    a(f"s_mov_b32 s{dst+2}, {nrec}")
    a(f"s_mov_b32 s{dst+3}, 0x00020000")

def bf16r(a, dst, src):
    a(f"v_cvt_pk_bf16_f32 v{dst}, v{src}, v{src}")
    a(f"v_lshlrev_b32 v{dst}, 16, v{dst}")

def unpack(a, dst, src):
    a(f"v_lshlrev_b32 v{dst}, 16, v{src}")
    a(f"v_and_b32 v{dst+1}, 0xffff0000, v{src}")

STAGE = 24576
NST = 4
SPS = 2
RING_D = 6
RING = RING_D * 2048
PART = 64 * 272
CONV0 = 8 * RING
CPITCH = 4160
CONV_CH = 4 * CPITCH + 5120
A_STATS = CONV0 + 2 * CONV_CH
A_CS = A_STATS + 1024
Y2S = A_CS + 1024
STS = Y2S + 8192
SYNC = STS + 512
CNT_H, CNT_U, CNT_Y, CNT_R = SYNC, SYNC + 4, SYNC + 8, SYNC + 12
LDS = SYNC + 64

Q, K_, V_, SK, SSMK, SSMD, WG, WU, WD, OUT, DBG, WS = 4, 6, 8, 10, 12, 14, 16, 18, 20, 22, 24, 26
SA, SB, SC = 36, 40, 44
RB, FB, XCD, J, TB, CB = 48, 49, 50, 51, 52, 53
R0, R1, R2, R3, R4, R5 = 54, 55, 56, 57, 58, 59
T0, T1, T2 = 33, 34, 35
T3, T4, T5, T6 = 92, 93, 94, 95

def lds_spin(a, word, vt=2, sleep=1, mask=None):
    lp, dn = a.new("spin"), a.new("spun")
    a(f"v_mov_b32 v{vt+1}, {word}")
    a.lab(lp)
    a(f"ds_read_b32 v{vt}, v{vt+1}")
    a("s_waitcnt lgkmcnt(0)")
    a(f"v_readfirstlane_b32 s{T3}, v{vt}")
    a("s_nop 3")
    if mask is None:
        a(f"s_cmp_lg_u32 s{T3}, 0")
    else:
        a(f"s_and_b32 s{T3}, s{T3}, s{mask}")
        a(f"s_cmp_eq_u32 s{T3}, s{mask}")
    a(f"s_cbranch_scc1 {dn}")
    a(f"s_sleep {sleep}")
    a(f"s_branch {lp}")
    a.lab(dn)

def lds_set(a, word, vt=2):
    a(f"v_mov_b32 v{vt}, 1")
    a(f"v_mov_b32 v{vt+1}, {word}")
    a(f"ds_write_b32 v{vt+1}, v{vt}")

def poll(a, soff, nwords, vt=2, sleep=12):
    lp, dn = a.new("poll"), a.new("polled")
    a(f"v_min_u32 v{vt+1}, {nwords-1}, v1")
    a(f"v_lshlrev_b32 v{vt+1}, 2, v{vt+1}")
    a.lab(lp)
    a(f"buffer_load_dword v{vt}, v{vt+1}, s[28:31], s{soff} offen sc1")
    a("s_waitcnt vmcnt(0)")
    a(f"v_cmp_ne_u32 vcc, 1, v{vt}")
    a("s_nop 3")
    a("s_cmp_eq_u64 vcc, 0")
    a(f"s_cbranch_scc1 {dn}")
    a(f"s_sleep {sleep}")
    a(f"s_branch {lp}")
    a.lab(dn)

def arrive_publish(a, cnt, n, soff, voff, lanes, vt=2):
    sk = a.new("nopub")
    a(f"v_mov_b32 v{vt}, 1")
    a(f"v_mov_b32 v{vt+1}, {cnt}")
    a("s_mov_b64 exec, 1")
    a(f"ds_add_rtn_u32 v{vt+2}, v{vt+1}, v{vt}")
    a("s_mov_b64 exec, -1")
    a("s_waitcnt lgkmcnt(0)")
    a(f"v_readfirstlane_b32 s{T3}, v{vt+2}")
    a("s_nop 3")
    a(f"s_cmp_lg_u32 s{T3}, {n-1}")
    a(f"s_cbranch_scc1 {sk}")
    a(f"s_mov_b32 exec_lo, {hex((1 << lanes) - 1)}")
    a("s_mov_b32 exec_hi, 0")
    a(f"buffer_store_dword v{vt}, v{voff}, s[28:31], s{soff} offen sc1")
    a("s_mov_b64 exec, -1")
    a.lab(sk)

def kernel(a):
    a.lab(KN)
    a("s_cmp_ge_u32 s2, 256")
    a("s_cbranch_scc1 k_end")
    a.stamp(0, True)
    a.stamp(1)
    for _ in range(int(E("BEGSLEEP", "0"))): a("s_sleep 32")
    if E("TFIX") or E("TB0") or E("TE1") or E("TP"): a("s_memrealtime s[96:97]")
    a("s_load_dwordx8 s[4:11], s[0:1], 0")
    a("s_load_dwordx4 s[12:15], s[0:1], 32")
    a("s_load_dwordx8 s[16:23], s[0:1], 56")
    a("s_load_dwordx4 s[24:27], s[0:1], 88")
    a("v_and_b32 v1, 63, v0")
    a("v_lshrrev_b32 v2, 6, v0")
    a("s_nop 0")
    a("v_readfirstlane_b32 s32, v2")
    a("s_cmp_ge_u32 s2, 224")
    a("s_cbranch_scc1 k_prep")
    a(f"s_and_b32 s{XCD}, s2, 7")
    a(f"s_lshr_b32 s{J}, s2, 3")
    a(f"s_mul_i32 s{T0}, s{J}, 37")
    a(f"s_lshr_b32 s{T0}, s{T0}, 8")
    a(f"s_mul_i32 s{T1}, s{T0}, 7")
    a(f"s_sub_u32 s{CB}, s{J}, s{T1}")
    a(f"s_and_b32 s{T1}, s{XCD}, 4")
    a(f"s_add_u32 s{RB}, s{T1}, s{T0}")
    a(f"s_and_b32 s{T1}, s{XCD}, 3")
    a(f"s_mul_i32 s{T1}, s{T1}, 7")
    a(f"s_add_u32 s{FB}, s{T1}, s{CB}")
    a(f"s_lshl_b32 s{T1}, s{XCD}, 2")
    a(f"s_add_u32 s{TB}, s{T1}, s{T0}")
    ROWMAP = E("ROWMAP", "0") == "1"
    if ROWMAP:
        a(f"s_mov_b32 s{RB}, s{XCD}")
        a(f"s_mov_b32 s{FB}, s{J}")
    a("s_cmp_ge_u32 s32, 8")
    a("s_cbranch_scc1 k_helper")

    a.role = "g"
    TG, CG = R0, R1
    a(f"s_lshr_b32 s{TG}, s32, 1")
    a(f"s_and_b32 s{CG}, s32, 1")
    AR = 10
    a("v_and_b32 v2, 31, v1")
    a("v_lshrrev_b32 v3, 5, v1")
    a("v_bfe_u32 v4, v1, 2, 2")
    a("v_xor_b32 v4, v3, v4")
    a(f"s_lshl_b32 s{T0}, s32, 5")
    a(f"v_add_u32 v5, s{T0}, v2")
    a("v_lshlrev_b32 v5, 6, v5")
    a(f"v_lshl_add_u32 v{AR+0}, v4, 4, v5")
    a(f"v_xor_b32 v{AR+1}, 0x800, v{AR+0}")
    a(f"v_xor_b32 v{AR+2}, 32, v{AR+0}")
    a(f"v_xor_b32 v{AR+3}, 32, v{AR+1}")
    a("v_bfe_u32 v4, v1, 4, 1")
    a("v_bfe_u32 v5, v1, 2, 2")
    a("v_bfe_u32 v6, v1, 3, 1")
    a("v_lshl_or_b32 v6, v4, 1, v6")
    a(f"s_lshl_b32 s{T0}, s{CG}, 1")
    a(f"v_xor_b32 v6, s{T0}, v6")
    a("v_lshl_add_u32 v7, v3, 3, v5")
    a("v_lshlrev_b32 v7, 7, v7")
    a("v_lshl_add_u32 v7, v4, 12, v7")
    a("v_lshl_add_u32 v7, v6, 5, v7")
    a("v_and_b32 v8, 3, v1")
    a("v_lshl_add_u32 v7, v8, 3, v7")
    a(f"v_add_u32 v{AR+4}, 0x4000, v7")
    a(f"v_xor_b32 v{AR+5}, 32, v{AR+4}")
    for i in range(6):
        a(f"v_add_u32 v{AR+6+i}, {SPS * STAGE}, v{AR+i}")
    a("v_mov_b32 v28, 0")
    a("v_mov_b32 v29, 0")
    a("v_mov_b32 v22, 0")
    a("v_and_b32 v24, 15, v1")
    a("v_lshlrev_b32 v24, 2, v24")
    a(f"s_mov_b32 s{T5}, 0")
    a("s_waitcnt lgkmcnt(0)")
    srd(a, 28, WS, WS_REC)
    HF, YF = R2, R3
    a(f"s_lshl_b32 s{HF}, s{RB}, 9")
    a(f"s_lshl_b32 s{T0}, s{FB}, 2")
    a(f"s_add_u32 s{HF}, s{HF}, s{T0}")
    a(f"s_add_u32 s{HF}, s{HF}, {HFLAG}")
    a(f"s_lshl_b32 s{YF}, s2, 9")
    a(f"s_add_u32 s{YF}, s{YF}, {FLAG_OFF}")
    if E("TGLOB"):
        lb = a.new("tg")
        a("s_cmp_lg_u32 s32, 0")
        a(f"s_cbranch_scc1 {lb}")
        a("s_not_b32 s98, s96")
        a("v_mov_b32 v2, s98")
        a("s_mov_b64 exec, 1")
        a(f"global_atomic_umax v22, v2, s[{DBG}:{DBG+1}] offset:128 sc1")
        a("s_mov_b64 exec, -1")
        a.lab(lb)
    a("s_cmp_eq_u32 s32, 7")
    a("s_cbranch_scc1 k_init")
    if E("GTOUCH", "1") == "1":
        srd(a, SA, Q, 2048 * 896)
        srd(a, SB, WG, 448 * 3584)
        srd(a, SC, WU, 448 * 3584)
        if ROWMAP:
            a(f"s_lshl_b32 s{T0}, s{XCD}, 8")
            a(f"s_mul_i32 s{T1}, s{J}, 10")
            a(f"s_add_u32 s{T0}, s{T0}, s{T1}")
            a(f"s_mul_i32 s{T0}, s{T0}, 896")
            a(f"s_lshl_b32 s{T1}, s32, 7")
            a(f"s_add_u32 s{T0}, s{T0}, s{T1}")
            a("v_mul_u32_u24 v2, 896, v1")
            a("v_mul_u32_u24 v4, 3584, v1")
            a(f"s_lshl_b32 s{T1}, s{J}, 7")
            a(f"s_mul_i32 s{T2}, s32, {64 * 3584}")
            a(f"s_add_u32 s{T1}, s{T1}, s{T2}")
            a(f"buffer_load_dword v7, v4, s[{SB}:{SB+3}], s{T1} offen")
            a(f"buffer_load_dword v8, v4, s[{SC}:{SC+3}], s{T1} offen")
            a("s_mov_b64 exec, 0x3ff")
            a(f"buffer_load_dword v6, v2, s[{SA}:{SA+3}], s{T0} offen")
            a("s_mov_b64 exec, -1")
        else:
            a(f"s_lshr_b32 s{T0}, s{XCD}, 2")
            a(f"s_lshl_b32 s{T0}, s{T0}, 10")
            a(f"s_mul_i32 s{T1}, s{J}, 37")
            a(f"s_add_u32 s{T0}, s{T0}, s{T1}")
            a(f"s_mul_i32 s{T0}, s{T0}, 896")
            a(f"s_lshl_b32 s{T1}, s32, 7")
            a(f"s_add_u32 s{T0}, s{T0}, s{T1}")
            a("v_mul_u32_u24 v2, 896, v1")
            a(f"s_lshl_b32 s{T1}, s{J}, 4")
            a(f"v_add_u32 v3, s{T1}, v1")
            a("v_mul_u32_u24 v4, 0x2493, v3")
            a("v_lshrrev_b32 v4, 16, v4")
            a("v_mul_u32_u24 v5, 7, v4")
            a("v_sub_u32 v5, v3, v5")
            a("v_mul_u32_u24 v4, 3584, v4")
            a("v_lshl_add_u32 v4, v5, 7, v4")
            a(f"s_and_b32 s{T1}, s{XCD}, 3")
            a(f"s_mul_i32 s{T1}, s{T1}, 896")
            a(f"s_mul_i32 s{T2}, s32, {64 * 3584}")
            a(f"s_add_u32 s{T1}, s{T1}, s{T2}")
            TD = int(E("TD", "0"))
            if TD:
                lb = a.new("k_td")
                a(f"s_cmp_lt_u32 s32, {int(E('TS0', '2'))}")
                a(f"s_cbranch_scc1 {lb}")
                a(f"s_sleep {TD}")
                a.lab(lb)
            a("s_mov_b32 exec_hi, 31")
            a(f"buffer_load_dword v6, v2, s[{SA}:{SA+3}], s{T0} offen")
            a("s_mov_b64 exec, 0xffff")
            a(f"buffer_load_dword v7, v4, s[{SB}:{SB+3}], s{T1} offen")
            a(f"buffer_load_dword v8, v4, s[{SC}:{SC+3}], s{T1} offen")
            a("s_mov_b64 exec, -1")
    a("s_branch k_main")
    a.lab("k_init")
    a("v_mov_b32 v2, 0")
    a(f"v_lshl_add_u32 v3, v1, 2, 0")
    a(f"v_add_u32 v3, {SYNC}, v3")
    a("s_mov_b64 exec, 0xff")
    a("ds_write_b32 v3, v2")
    a("s_waitcnt lgkmcnt(0)")
    a("s_mov_b64 exec, -1")
    a(f"global_load_dword v23, v22, s[{DBG}:{DBG+1}] sc1")
    if E("CTOUCH", "0") == "1":
        a("s_getpc_b64 s[98:99]")
        a.lab("k_pc")
        a(f"s_sub_u32 s98, s98, k_pc-{KN}")
        a("s_subb_u32 s99, s99, 0")
        a(f"s_lshl_b32 s{T0}, s{J}, 11")
        a("v_lshlrev_b32 v2, 7, v1")
        a(f"v_add_u32 v2, s{T0}, v2")
        a(f"v_min_u32 v2, k_last-{KN}, v2")
        a("s_mov_b64 exec, 0xffff")
        a("global_load_dword v9, v2, s[98:99]")
        a("s_mov_b64 exec, -1")
    a.lab("k_main")
    a(f"s_cmp_ge_u32 s{FB}, 16")
    a("s_cbranch_scc1 k_nostat")
    srd(a, SA, Q, 2048 * 896)
    a(f"s_lshl_b32 s{T0}, s{RB}, 8")
    a(f"s_lshl_b32 s{T1}, s{FB}, 4")
    a(f"s_add_u32 s{T0}, s{T0}, s{T1}")
    a(f"s_lshl_b32 s{T1}, s32, 1")
    a(f"s_add_u32 s{T0}, s{T0}, s{T1}")
    a("v_lshrrev_b32 v2, 5, v1")
    a(f"v_add_u32 v2, s{T0}, v2")
    a(f"s_movk_i32 s{T1}, 896")
    a(f"v_mul_lo_u32 v3, v2, s{T1}")
    a("v_and_b32 v4, 31, v1")
    a("v_lshl_add_u32 v3, v4, 4, v3")
    for r in range(36, 40): a(f"v_mov_b32 v{r}, 0")
    a(f"buffer_load_dwordx4 v[32:35], v3, s[{SA}:{SA+3}], 0 offen")
    a("s_mov_b32 exec_lo, 0xffffff")
    a("s_mov_b32 exec_hi, 0xffffff")
    a(f"buffer_load_dwordx4 v[36:39], v3, s[{SA}:{SA+3}], 0 offen offset:512")
    a("s_mov_b64 exec, -1")
    for r in range(40, 44): a(f"v_mov_b32 v{r}, 0")
    a("v_lshlrev_b32 v2, 3, v2")
    a("s_waitcnt vmcnt(0)")
    for i in range(8):
        t = 44 + 2 * (i & 1)
        unpack(a, t, 32 + i)
        a(f"v_add_f32 v40, v40, v{t}")
        a(f"v_add_f32 v41, v41, v{t+1}")
        a(f"v_fmac_f32 v42, v{t}, v{t}")
        a(f"v_fmac_f32 v43, v{t+1}, v{t+1}")
    a("v_add_f32 v40, v40, v41")
    a("v_add_f32 v42, v42, v43")
    for dpp in ("quad_perm:[1,0,3,2]", "quad_perm:[2,3,0,1]", "row_ror:4", "row_ror:8"):
        a("s_nop 1")
        a(f"v_add_f32_dpp v40, v40, v40 {dpp} row_mask:0xf bank_mask:0xf")
        a(f"v_add_f32_dpp v42, v42, v42 {dpp} row_mask:0xf bank_mask:0xf")
    a("v_mov_b32 v41, v40")
    a("v_mov_b32 v43, v42")
    a("s_nop 1")
    a("v_permlane16_swap_b32 v40, v41")
    a("v_permlane16_swap_b32 v42, v43")
    a("s_nop 1")
    a("v_add_f32 v40, v40, v41")
    a("v_add_f32 v42, v42, v43")
    a("v_mul_f32 v40, 0x3b124925, v40")
    a("v_mul_f32 v42, 0x3b124925, v42")
    a("v_fma_f32 v42, -v40, v40, v42")
    a("v_max_f32 v42, 0, v42")
    bf16r(a, 44, 40)
    bf16r(a, 42, 42)
    a("v_add_f32 v42, 0x3727c5ac, v42")
    bf16r(a, 42, 42)
    a("v_sqrt_f32 v42, v42")
    a("s_nop 0")
    bf16r(a, 45, 42)
    a(f"s_mov_b32 s{T0}, {STATS_OFF}")
    a("s_mov_b32 exec_lo, 1")
    a("s_mov_b32 exec_hi, 1")
    a(f"buffer_store_dwordx2 v[44:45], v2, s[28:31], s{T0} offen sc1")
    a("s_mov_b64 exec, -1")
    a.lab("k_nostat")

    SETS = {0: 32, 1: 48}
    def reads(c, st_):
        base = SETS[st_]
        stg = c % NST
        R, o = AR + 6 * (stg // SPS), (stg % SPS) * STAGE
        a(f"ds_read_b128 {v(base,4)}, v{R + 2*st_} offset:{o}")
        for ct in range(2):
            for half in range(2):
                a(f"ds_read_b64_tr_b16 {v(base + 8 + 4*ct + 2*half, 2)}, v{R + 4 + ct} offset:{o + st_*2048 + half*512}")
        a(f"ds_read_b128 {v(base+4,4)}, v{R + 2*st_ + 1} offset:{o}")
    def mfmas(c, st_):
        base = SETS[st_]
        first = (2 * c + st_ == 0)
        k = 0
        for tt in range(2):
            for ct in range(2):
                acc = 64 + 16 * (2 * ct + tt)
                cc = "0" if first else v(acc, 16)
                a(f"v_mfma_f32_32x32x16_bf16 {v(acc,16)}, {v(base + 8 + 4*ct, 4)}, {v(base + 4*tt, 4)}, {cc}")
                k += 1
    EARLY = int(E("EARLY", "6"))
    RBASE, WROW = T6, J
    srd(a, SB, WD, 1792 * 896)
    a("v_lshrrev_b32 v2, 3, v1")
    a("v_mul_u32_u24 v2, 896, v2")
    a("v_bfe_u32 v3, v1, 4, 1")
    a("v_lshlrev_b32 v3, 2, v3")
    a("v_and_b32 v4, 7, v1")
    a("v_xor_b32 v3, v3, v4")
    a("v_lshl_add_u32 v2, v3, 4, v2")
    a(f"s_lshl_b32 s{T0}, s{CB}, 7")
    a(f"v_add_u32 v9, s{T0}, v2")
    a(f"s_xor_b32 s{RBASE}, s32, 4")
    a(f"s_mul_i32 s{RBASE}, s{RBASE}, {RING}")
    a(f"s_mul_i32 s{WROW}, s32, {14 * 16 * 896}")
    def early_w(n):
        for i in range(n):
            for hh in range(2):
                a(f"s_add_u32 m0, s{RBASE}, {i * 2048 + hh * 1024}")
                a(f"s_add_u32 s{T0}, s{WROW}, {(16 * i + 8 * hh) * 896}")
                a(f"buffer_load_dwordx4 v9, s[{SB}:{SB+3}], s{T0} offen lds")
    PC = int(E("PC", "11"))
    SC0 = int(E("SC0", "8"))
    SPC = int(E("SPC", "4"))
    SCD = int(E("SCD", "3"))
    def stats_ok(fail):
        a("v_cmp_ne_u32 vcc, 1, v25")
        a("s_nop 3")
        a("s_cmp_lg_u64 vcc, 0")
        a(f"s_cbranch_scc1 {fail}")
    def stats_load():
        a("v_lshlrev_b32 v26, 5, v1")
        a(f"s_lshl_b32 s{T0}, s{RB}, 11")
        a(f"s_add_u32 s{T0}, s{T0}, {STATS_OFF}")
        a(f"buffer_load_dwordx4 v[128:131], v26, s[28:31], s{T0} offen sc1")
        a(f"buffer_load_dwordx4 v[132:135], v26, s[28:31], s{T0} offen offset:16 sc1")
    if E("TB0"):
        lp = a.new("tprobe")
        a.lab(lp)
        a("s_memrealtime s[98:99]")
        a("s_waitcnt lgkmcnt(0)")
        a("s_sub_u32 s98, s98, s96")
        a(f"s_cmp_lt_u32 s98, {int(E('TB0'))}")
        a(f"s_cbranch_scc1 {lp}")
    a("s_barrier")
    a.stamp(2)
    reads(0, 0)
    for c in range(14):
        reads(c, 1)
        a("s_waitcnt lgkmcnt(6)")
        mfmas(c, 0)
        a("s_waitcnt lgkmcnt(0)")
        if c < 13:
            a("s_barrier")
            if E("LOOPST") and c in (1, 3, 5, 7, 9, 11): a.stamp(5 + c // 2)
            reads(c + 1, 0)
        if c == SPC - 1:
            a("s_waitcnt vmcnt(0)")
        if c == SPC:
            lb, lp, ok = a.new("k_sp"), a.new("k_spl"), a.new("k_spk")
            a("s_cmp_lg_u32 s32, 7")
            a(f"s_cbranch_scc1 {lb}")
            a.lab(lp)
            a(f"v_readfirstlane_b32 s{T0}, v23")
            a("s_nop 3")
            a(f"s_cmp_ge_u32 s{T0}, 32")
            a(f"s_cbranch_scc1 {ok}")
            a("s_sleep 8")
            a(f"global_load_dword v23, v22, s[{DBG}:{DBG+1}] sc1")
            a("s_waitcnt vmcnt(0)")
            a(f"s_branch {lp}")
            a.lab(ok)
            a(f"s_cmp_ge_u32 s{FB}, 16")
            a(f"s_cbranch_scc1 {lb}")
            if ROWMAP:
                a(f"s_add_u32 s{T0}, s{HF}, {SFLAG - HFLAG}")
                a("v_lshlrev_b32 v26, 12, v1")
            else:
                a(f"s_and_b32 s{T1}, s{RB}, 3")
                a(f"s_mul_i32 s{T1}, s{T1}, 56")
                a(f"s_and_b32 s{T0}, s{RB}, 4")
                a(f"s_add_u32 s{T0}, s{T0}, s{T1}")
                a(f"s_lshl_b32 s{T0}, s{T0}, 9")
                a(f"s_lshl_b32 s{T1}, s{FB}, 2")
                a(f"s_add_u32 s{T0}, s{T0}, s{T1}")
                a(f"s_add_u32 s{T0}, s{T0}, {SFLAG}")
                a("v_lshrrev_b32 v26, 2, v1")
                a("v_lshlrev_b32 v26, 12, v26")
                a("v_and_b32 v27, 3, v1")
                a("v_lshl_add_u32 v26, v27, 9, v26")
            a("v_mov_b32 v27, 1")
            a("s_mov_b32 exec_lo, 0xfffffff")
            a("s_mov_b32 exec_hi, 0")
            a(f"buffer_store_dword v27, v26, s[28:31], s{T0} offen sc1")
            a("s_mov_b64 exec, -1")
            a.lab(lb)
        if c == SC0:
            lb = a.new("k_s0")
            a("s_cmp_lg_u32 s32, 7")
            a(f"s_cbranch_scc1 {lb}")
            a("s_waitcnt vmcnt(0)")
            a(f"buffer_load_dword v25, v24, s[28:31], s{YF} offen offset:384 sc1")
            a.lab(lb)
        if c in (SC0 + 2, SC0 + 4):
            lb, rt = a.new("k_s1"), a.new("k_s1r")
            a("s_cmp_lg_u32 s32, 7")
            a(f"s_cbranch_scc1 {lb}")
            a(f"s_cmp_eq_u32 s{T5}, 1")
            a(f"s_cbranch_scc1 {lb}")
            a("s_waitcnt vmcnt(0)")
            stats_ok(rt)
            stats_load()
            a(f"s_mov_b32 s{T5}, 1")
            a(f"s_branch {lb}")
            a.lab(rt)
            a(f"buffer_load_dword v25, v24, s[28:31], s{YF} offen offset:384 sc1")
            a.lab(lb)
        if c == int(E('TKC', '-1')):
            lb = a.new("k_notk")
            a("s_cmp_lg_u32 s32, 6")
            a(f"s_cbranch_scc1 {lb}")
            srd(a, SA, SSMK, 448 * 4096)
            a("v_lshlrev_b32 v31, 7, v1")
            a(f"s_lshl_b32 s{T0}, s2, 13")
            a(f"buffer_load_dword v31, v31, s[{SA}:{SA+3}], s{T0} offen")
            a.lab(lb)
        if EARLY and c in (10, 11, 12):
            pair = {10: 0, 11: 1, 12: 2}[c]
            lb = a.new("k_noew")
            a(f"s_cmp_lg_u32 s{TG}, {pair}")
            a(f"s_cbranch_scc1 {lb}")
            early_w(EARLY)
            a.lab(lb)
        WT0 = int(E("WT0", "-99"))
        if WT0 <= c < WT0 + 7:
            lb = a.new("k_nowt")
            a(f"s_cmp_lg_u32 s32, {c - WT0}")
            a(f"s_cbranch_scc1 {lb}")
            srd(a, SA, WD, 1792 * 896)
            a("v_lshlrev_b32 v31, 7, v1")
            a(f"s_mul_i32 s{T0}, s{J}, {448 * 128}")
            a(f"s_add_u32 s{T0}, s{T0}, {(c - WT0) * 8192}")
            a(f"buffer_load_dword v31, v31, s[{SA}:{SA+3}], s{T0} offen")
            a.lab(lb)
        if c == int(E("KVT", "-1")):
            lb = a.new("k_nokv")
            a("s_cmp_lg_u32 s32, 5")
            a(f"s_cbranch_scc1 {lb}")
            srd(a, SA, K_, 2048 * 896)
            srd(a, SB, V_, 2048 * 896)
            a("v_lshlrev_b32 v31, 7, v1")
            a(f"s_lshl_b32 s{T0}, s2, 13")
            a(f"buffer_load_dword v30, v31, s[{SA}:{SA+3}], s{T0} offen")
            a(f"buffer_load_dword v31, v31, s[{SB}:{SB+3}], s{T0} offen")
            a.lab(lb)
        mfmas(c, 1)
    a.stamp(3)
    a.post = True
    if E("EPRIO", "1") == "1": a("s_setprio 2")
    srd(a, SB, WD, 1792 * 896)
    a("v_lshlrev_b32 v10, 4, v1")
    a("v_lshrrev_b32 v2, 3, v1")
    a("v_mul_u32_u24 v2, 896, v2")
    a("v_bfe_u32 v3, v1, 4, 1")
    a("v_lshlrev_b32 v3, 2, v3")
    a("v_and_b32 v4, 7, v1")
    a("v_xor_b32 v3, v3, v4")
    a("v_lshl_add_u32 v2, v3, 4, v2")
    a(f"s_lshl_b32 s{T0}, s{CB}, 7")
    a(f"v_add_u32 v11, s{T0}, v2")
    RBASE, WROW, HB0, HB1 = T6, J, R4, R5
    a(f"s_xor_b32 s{RBASE}, s32, 4")
    a(f"s_mul_i32 s{RBASE}, s{RBASE}, {RING}")
    a(f"s_mul_i32 s{WROW}, s32, {14 * 16 * 896}")
    a(f"s_mul_i32 s{HB0}, s{TB}, 448")
    a(f"s_mul_i32 s{T0}, s32, 28")
    a(f"s_add_u32 s{HB0}, s{HB0}, s{T0}")
    a(f"s_lshl_b32 s{HB0}, s{HB0}, 9")
    a(f"s_add_u32 s{HB1}, s{HB0}, {224 * 512}")
    a("v_bfe_u32 v2, v1, 5, 1")
    a("v_bfe_u32 v3, v1, 2, 2")
    a("v_lshl_add_u32 v2, v2, 2, v3")
    a("v_lshlrev_b32 v2, 7, v2")
    a("v_bfe_u32 v3, v1, 4, 1")
    a("v_and_b32 v4, 3, v1")
    a("v_lshlrev_b32 v4, 3, v4")
    a("v_lshl_or_b32 v4, v3, 5, v4")
    a("v_bfe_u32 v3, v1, 3, 1")
    a("v_lshl_or_b32 v4, v3, 6, v4")
    a(f"v_add3_u32 v12, v2, v4, s{RBASE}")
    a("v_xor_b32 v13, 64, v12")
    a("v_and_b32 v2, 31, v1")
    a(f"s_lshl_b32 s{T0}, s32, 5")
    a(f"v_add_u32 v2, s{T0}, v2")
    a("v_lshlrev_b32 v3, 2, v2")
    a(f"v_add_u32 v4, {A_STATS}, v3")
    a("v_mov_b32 v3, v4")
    a("v_lshrrev_b32 v5, 5, v1")
    a("v_lshlrev_b32 v5, 4, v5")
    a(f"s_lshl_b32 s{T0}, s{CG}, 7")
    a(f"s_add_u32 s{T0}, s{T0}, {A_CS}")
    a(f"v_add_u32 v6, s{T0}, v5")
    a("v_lshlrev_b32 v2, 4, v1")
    a("v_xor_b32 v3, 128, v3")
    lb, lp, rt, ok = a.new("k_icd"), a.new("k_icl"), a.new("k_icr"), a.new("k_ick")
    a("s_cmp_lg_u32 s32, 7")
    a(f"s_cbranch_scc1 {lb}")
    a(f"s_cmp_eq_u32 s{T5}, 1")
    a(f"s_cbranch_scc1 {ok}")
    a.lab(lp)
    a("s_waitcnt vmcnt(0)")
    stats_ok(rt)
    stats_load()
    a(f"s_branch {ok}")
    a.lab(rt)
    a("s_sleep 2")
    a(f"buffer_load_dword v25, v24, s[28:31], s{YF} offen offset:384 sc1")
    a(f"s_branch {lp}")
    a.lab(ok)
    a("s_waitcnt vmcnt(0)")
    for i in range(4):
        a(f"v_xor_b32 v{136+i}, 0x80000000, v{128+2*i}")
    a("v_lshlrev_b32 v26, 4, v1")
    a(f"v_add_u32 v26, {A_STATS}, v26")
    a("ds_write_b128 v26, v[136:139]")
    a.lab(lb)
    if E("TE1"):
        lp = a.new("tprobe")
        a.lab(lp)
        a("s_memrealtime s[98:99]")
        a("s_waitcnt lgkmcnt(0)")
        a("s_sub_u32 s98, s98, s96")
        a(f"s_cmp_lt_u32 s98, {int(E('TE1'))}")
        a(f"s_cbranch_scc1 {lp}")
    a("s_waitcnt lgkmcnt(0)")
    a("s_barrier")
    a.stamp(4)
    a("ds_read_b32 v28, v4")
    a("ds_read_b32 v30, v3")
    CSR, CS2 = 128, 32
    for half, base in ((0, CSR), (1, CS2)):
        for ct in range(2):
            for mat in range(2):
                for q in range(2):
                    a(f"ds_read_b128 {v(base + 16*ct + 8*mat + 4*q, 4)}, v6 offset:{mat*512 + half*256 + ct*64 + q*32}")
    a("s_waitcnt lgkmcnt(0)")
    for i in range(0, 32, 2):
        a(f"v_pk_add_f32 {v(CSR+i,2)}, {v(CSR+i,2)}, {v(CS2+i,2)}")
    ops = ["start"]
    WR = [128, 136, 144, 152, 160, 48, 56]
    HB = [16, 24, 32, 40]
    def issue_w(i):
        sl = i % RING_D
        for hh in range(2):
            a(f"s_add_u32 m0, s{RBASE}, {sl * 2048 + hh * 1024}")
            a(f"s_add_u32 s{T0}, s{WROW}, {(16 * i + 8 * hh) * 896}")
            a(f"buffer_load_dwordx4 v11, s[{SB}:{SB+3}], s{T0} offen lds")
            ops.append(("w", i))
    def issue_h(i):
        for tt in range(2):
            a(f"s_add_u32 s{T0}, s{HB0 + tt}, {i * 1024}")
            a(f"buffer_load_dwordx4 {v(HB[i % 4] + 4*tt, 4)}, v10, s[28:31], s{T0} offen sc1")
            ops.append(("h", i))
    def wait_for(*keys):
        last = max(max(n for n, o in enumerate(ops) if o == k) for k in keys)
        return len(ops) - 1 - last
    def treads(i, base):
        sl = i % RING_D
        for dt in range(2):
            for half in range(2):
                a(f"ds_read_b64_tr_b16 {v(base + 4*dt + 2*half, 2)}, v{12 + dt} offset:{sl*2048 + half*1024}")
    PRE0 = int(E("PRE0", "4"))
    PREPOS = int(E("PREPOS", "0"))
    if EARLY:
        PRE0 = EARLY
        lb = a.new("k_noew")
        a(f"s_cmp_lg_u32 s{TG}, 3")
        a(f"s_cbranch_scc1 {lb}")
        early_w(EARLY)
        a.lab(lb)
    elif PREPOS == 0:
        for i in range(PRE0):
            issue_w(i)
    for tt in range(2):
        mr = 28 + 2 * tt
        a(f"s_lshl_b32 s{T0}, s{RB}, 3")
        a(f"s_lshl_b32 s{T1}, s{TG}, 1")
        a(f"s_add_u32 s{T0}, s{T0}, s{T1}")
        a(f"s_xor_b32 s{T1}, s{CG}, {tt}")
        a(f"s_add_u32 s{T0}, s{T0}, s{T1}")
        a(f"s_mul_i32 s{T0}, s{T0}, 224")
        a(f"s_lshl_b32 s{T1}, s{FB}, 3")
        a(f"s_add_u32 s{T0}, s{T0}, s{T1}")
        a(f"s_lshl_b32 s{T1}, s{CG}, 2")
        a(f"s_add_u32 s{T0}, s{T0}, s{T1}")
        a(f"s_lshl_b32 s{T0}, s{T0}, 9")
        for ct in range(2):
            acc = 64 + 16 * (2 * ct + tt)
            cs = CSR + 16 * ct
            for i in range(0, 16, 2):
                a(f"v_pk_fma_f32 {v(acc+i,2)}, {v(mr,2)}, {v(cs+i,2)}, {v(acc+i,2)} op_sel:[0,0,0] op_sel_hi:[0,1,1]")
            for i in range(8):
                a(f"v_max_f32 v{acc+i}, 0, v{acc+i}")
            for i in range(4):
                a(f"v_pk_mul_f32 {v(acc+2*i,2)}, {v(acc+2*i,2)}, {v(acc+8+2*i,2)}")
            O = 32 + 4 * (2 * tt + ct)
            for i in range(4):
                a(f"v_cvt_pk_bf16_f32 v{O+i}, v{acc+2*i}, v{acc+2*i+1}")
            a(f"buffer_store_dwordx4 {v(O,4)}, v2, s[28:31], s{T0} offen offset:{ct*1024} sc1")
            if E("DBLST", "0") == "1":
                a(f"buffer_store_dwordx4 {v(O,4)}, v2, s[28:31], s{T0} offen offset:{ct*1024}")
    if PREPOS == 1:
        for i in range(PRE0):
            issue_w(i)
    a.stamp(5)
    a("v_lshlrev_b32 v5, 12, v1")
    a(f"s_waitcnt vmcnt({2 * PRE0 if PREPOS == 1 else 0})")
    a.stamp(6)
    arrive_publish(a, CNT_H, 8, HF, 5, 28)
    a("s_setprio 0")
    if E("GATE", "1") == "1":
        lp, dn = a.new("gate"), a.new("gated")
        a(f"v_mov_b32 v3, {CNT_U}")
        a.lab(lp)
        a("ds_read_b32 v2, v3")
        a("s_waitcnt lgkmcnt(0)")
        a(f"v_readfirstlane_b32 s{T0}, v2")
        a("s_nop 3")
        a(f"s_cmp_eq_u32 s{T0}, 4")
        a(f"s_cbranch_scc1 {dn}")
        a("s_sleep 1")
        a(f"s_branch {lp}")
        a.lab(dn)
    ops.clear(); ops.append("flag")
    PACE = int(E("PACE", "6"))
    nw = PRE0
    while nw < PACE:
        issue_w(nw); nw += 1
    if PREPOS == 1:
        a(f"s_waitcnt vmcnt({2 * (PACE - PRE0)})")
    for i in range(13):
        if i >= PRE0:
            a(f"s_waitcnt vmcnt({wait_for(('w', i))})")
        if i < 7:
            treads(i, WR[i])
        if nw <= 12:
            if nw >= RING_D:
                assert nw - RING_D <= i
                a("s_waitcnt lgkmcnt(0)")
            issue_w(nw); nw += 1
    a.stamp(7)
    lp, dn = a.new("hpoll"), a.new("hpolled")
    a(f"s_mul_i32 s{T4}, s32, 7")
    a(f"s_lshr_b32 s{T4}, s{T4}, 1")
    a(f"s_lshl_b32 s{T4}, s{T4}, 2")
    a(f"s_add_u32 s{T4}, s{T4}, s{YF}")
    a("v_and_b32 v3, 3, v1")
    a("v_lshlrev_b32 v3, 2, v3")
    a.lab(lp)
    a(f"buffer_load_dword v2, v3, s[28:31], s{T4} offen sc1")
    a("s_waitcnt vmcnt(0)")
    a("v_cmp_ne_u32 vcc, 1, v2")
    a("s_nop 3")
    a("s_cmp_eq_u64 vcc, 0")
    a(f"s_cbranch_scc1 {dn}")
    a(f"s_sleep {int(E('HSLEEP', '2'))}")
    a(f"s_branch {lp}")
    a.lab(dn)
    a.stamp(8)
    ops.clear(); ops.append("base")
    for i in range(4):
        issue_h(i)
    for i in range(14):
        a(f"s_waitcnt vmcnt({wait_for(('h', i))})" + (" lgkmcnt(0)" if i in (0, 7, 13) else ""))
        base = WR[i % 7]
        for tt in range(2):
            for dt in range(2):
                acc = 64 + 16 * (2 * dt + tt)
                cc = "0" if i == 0 else v(acc, 16)
                a(f"v_mfma_f32_32x32x16_bf16 {v(acc,16)}, {v(base + 4*dt, 4)}, {v(HB[i % 4] + 4*tt, 4)}, {cc}")
        if i + 4 < 14: issue_h(i + 4)
        if i < 6:
            treads(i + 7, WR[i])
        if i == 0:
            a("s_waitcnt lgkmcnt(0)")
            issue_w(13)
        if i == 8:
            a(f"s_waitcnt vmcnt({min(wait_for(('w', 13)), 63)})")
            treads(13, WR[6])
            a("v_mov_b32 v2, 1")
            a(f"v_mov_b32 v3, {CNT_R}")
            a("s_waitcnt lgkmcnt(0)")
            a("s_mov_b64 exec, 1")
            a("ds_add_u32 v3, v2")
            a("s_mov_b64 exec, -1")
        if i == 9:
            a(f"s_lshl_b32 s{T0}, s{TB}, 6")
            a("v_lshrrev_b32 v2, 3, v0")
            a(f"v_add_u32 v3, s{T0}, v2")
            a(f"s_movk_i32 s{T1}, 896")
            a(f"v_mul_lo_u32 v4, v3, s{T1}")
            a("v_and_b32 v5, 7, v0")
            a("v_lshl_add_u32 v4, v5, 4, v4")
            a(f"s_lshl_b32 s{T0}, s{CB}, 7")
            a(f"v_add_u32 v14, s{T0}, v4")
            srd(a, SA, Q, 2048 * 896)
            a(f"buffer_load_dwordx4 v[128:131], v14, s[{SA}:{SA+3}], 0 offen")
            ops.append("x")
        if i == 6: a.stamp(9)
    a.stamp(10)
    lp, dn = a.new("pwait"), a.new("pwaited")
    a(f"v_mov_b32 v4, {CNT_Y}")
    a.lab(lp)
    a("ds_read_b64 v[2:3], v4")
    a("s_waitcnt lgkmcnt(0)")
    a(f"v_readfirstlane_b32 s{T0}, v2")
    a(f"v_readfirstlane_b32 s{T1}, v3")
    a("s_nop 3")
    a(f"s_lshl_b32 s{T0}, s{T0}, 8")
    a(f"s_add_u32 s{T0}, s{T0}, s{T1}")
    a(f"s_cmp_eq_u32 s{T0}, 0x408")
    a(f"s_cbranch_scc1 {dn}")
    a("s_sleep 1")
    a(f"s_branch {lp}")
    a.lab(dn)
    a("v_and_b32 v2, 31, v1")
    a("v_mul_u32_u24 v2, 272, v2")
    a("v_lshrrev_b32 v3, 5, v1")
    a("v_lshl_add_u32 v2, v3, 4, v2")
    a(f"s_mul_i32 s{T0}, s32, {PART}")
    a(f"v_add_u32 v2, s{T0}, v2")
    for tt in range(2):
        for dt in range(2):
            acc = 64 + 16 * (2 * dt + tt)
            for q in range(4):
                a(f"ds_write_b128 v2, {v(acc + 4*q, 4)} offset:{tt*32*272 + dt*128 + q*32}")
    a("s_branch k_final")

    a.lab("k_helper")
    a.role = "c"
    HW, MAT, MX, MW = R0, R1, R2, R3
    a(f"s_sub_u32 s{HW}, s32, 8")
    a(f"s_lshr_b32 s{MAT}, s{HW}, 1")
    a(f"s_lshl_b32 s{MX}, s{HW}, 12")
    a(f"s_lshl_b32 s{MW}, s{HW}, 11")
    a(f"s_add_u32 s{MW}, s{MW}, 16384")
    a(f"s_lshl_b32 s{T0}, s{RB}, 8")
    a(f"s_lshl_b32 s{T1}, s{HW}, 6")
    a(f"s_add_u32 s{T0}, s{T0}, s{T1}")
    a("v_lshrrev_b32 v2, 2, v1")
    a(f"v_add_u32 v2, s{T0}, v2")
    a(f"s_movk_i32 s{T1}, 896")
    a(f"v_mul_lo_u32 v2, v2, s{T1}")
    a("v_and_b32 v3, 3, v1")
    a("v_bfe_u32 v4, v1, 4, 2")
    a("v_xor_b32 v3, v3, v4")
    a("v_lshl_add_u32 v10, v3, 4, v2")
    a(f"s_and_b32 s{T0}, s{HW}, 1")
    a(f"s_lshl_b32 s{T0}, s{T0}, 4")
    a("v_lshrrev_b32 v2, 3, v1")
    a(f"v_add_u32 v2, s{T0}, v2")
    a(f"s_movk_i32 s{T1}, 3584")
    a(f"v_mul_lo_u32 v2, v2, s{T1}")
    a(f"s_lshl_b32 s{T0}, s{FB}, 7")
    a(f"v_add_u32 v2, s{T0}, v2")
    a("v_bfe_u32 v4, v1, 4, 1")
    a("v_lshlrev_b32 v4, 1, v4")
    a(f"s_lshl_b32 s{T0}, s{MAT}, 2")
    a(f"v_or_b32 v4, s{T0}, v4")
    a("v_and_b32 v3, 7, v1")
    a("v_xor_b32 v5, v3, v4")
    a("v_lshl_add_u32 v11, v5, 4, v2")
    a("s_waitcnt lgkmcnt(0)")
    srd(a, SA, Q, 2048 * 896)
    a(f"s_cmp_eq_u32 s{MAT}, 1")
    a(f"s_cselect_b32 s{SB}, s{WU}, s{WG}")
    a(f"s_cselect_b32 s{SB+1}, s{WU+1}, s{WG+1}")
    a(f"s_and_b32 s{SB+1}, s{SB+1}, 0xffff")
    a(f"s_mov_b32 s{SB+2}, {448 * 3584}")
    a(f"s_mov_b32 s{SB+3}, 0x00020000")
    def dma(c):
        st = c % NST
        for i in range(2):
            a(f"s_add_u32 m0, s{MW}, {st * STAGE + 1024 * i}")
            a(f"s_mov_b32 s{T0}, {(c * 32 + 8 * i) * 3584}")
            a(f"buffer_load_dwordx4 v11, s[{SB}:{SB+3}], s{T0} offen lds")
        for i in range(4):
            a(f"s_add_u32 m0, s{MX}, {st * STAGE + 1024 * i}")
            a(f"s_mov_b32 s{T0}, {64 * c + 14336 * i}")
            a(f"buffer_load_dwordx4 v10, s[{SA}:{SA+3}], s{T0} offen lds")
    PRO = int(E("PRO", "3"))
    PRO0 = int(E("PRO0", "2"))
    for c in range(PRO0):
        dma(c)
    srd(a, 28, WS, WS_REC)
    a("v_lshrrev_b32 v2, 3, v1")
    a("v_lshlrev_b32 v2, 7, v2")
    a("v_lshl_add_u32 v2, v5, 4, v2")
    a(f"v_add_u32 v20, s{MW}, v2")
    a(f"v_add_u32 v21, {SPS * STAGE}, v20")
    for r in range(24, 32):
        a(f"v_mov_b32 v{r}, 0")
    a("v_lshlrev_b32 v9, 4, v1")
    CHN, KROW = R4, R5
    a(f"s_lshl_b32 s{CHN}, s2, 1")
    a(f"s_add_u32 s{CHN}, s{CHN}, s{MAT}")
    a(f"s_lshl_b32 s{KROW}, s{CHN}, 12")
    a(f"s_add_u32 s{SC}, s{SSMK}, s{KROW}")
    a(f"s_addc_u32 s{SC+1}, s{SSMK+1}, 0")
    a(f"s_and_b32 s{SC+1}, s{SC+1}, 0xffff")
    a(f"s_movk_i32 s{SC+2}, 4096")
    a(f"s_mov_b32 s{SC+3}, 0x00020000")
    a(f"s_lshl_b32 s{T0}, s2, 2")
    a(f"s_load_dword s{T6}, s[{SSMD}:{SSMD+1}], s{T0}")
    a("v_subrev_u32 v12, 32, v9")
    a("v_subrev_u32 v13, 16, v9")
    a("v_add_u32 v14, 992, v9")
    BUF = [32, 40]
    def hreads(c):
        b = BUF[c & 1]
        stg = c % NST
        o = (stg % SPS) * STAGE
        for i in range(2):
            a(f"ds_read_b128 {v(b + 4*i, 4)}, v{20 + stg//SPS} offset:{o + 1024*i}")
    def hsum(c):
        b = BUF[c & 1]
        for i in range(8):
            t = 48 + 2 * (i & 1)
            unpack(a, t, b + i)
            a(f"v_add_f32 v{24 + 2*(i & 3)}, v{24 + 2*(i & 3)}, v{t}")
            a(f"v_add_f32 v{25 + 2*(i & 3)}, v{25 + 2*(i & 3)}, v{t+1}")
    BD = 104
    roff = [None, 0, 1024, 2048, 2080]
    CBASE, UBASE = T4, T5
    a(f"s_mul_i32 s{CBASE}, s{MAT}, {CONV_CH}")
    a(f"s_add_u32 s{CBASE}, s{CBASE}, {CONV0}")
    a(f"s_add_u32 s{UBASE}, s{CBASE}, {4 * CPITCH}")
    a(f"v_add_u32 v15, s{CBASE}, v9")
    woff = [0, 1024, 2048, 3072, 3104]
    EE = 144
    def build(r):
        D = BD + 8 * r
        E_ = EE + 12 * (r & 1)
        a(f"ds_write_b128 v15, {v(D,4)} offset:{woff[r]}")
        for p in range(4):
            a(f"v_alignbit_b32 v{E_+p}, v{D+p+1}, v{D+p}, 16")
        for p in range(4):
            a(f"v_mov_b32 v{E_+4+p}, v{D+p+1}")
        for p in range(4):
            a(f"v_alignbit_b32 v{E_+8+p}, v{D+p+2}, v{D+p+1}, 16")
        for sidx in range(3):
            a(f"ds_write_b128 v15, {v(E_+4*sidx,4)} offset:{woff[r] + (sidx+1)*CPITCH}")
    hops = []
    for c in range(PRO0): hops += [("d", c)] * 6
    nxt_d = PRO0
    def hwait(key):
        last = max(n for n, o in enumerate(hops) if o == key)
        return len(hops) - 1 - last
    KC = int(E("KC", "11"))
    BC = 99
    a(f"s_waitcnt vmcnt({hwait(('d', 0))})")
    a("s_barrier")
    a.stamp(2)
    for c in range(14):
        hreads(c)
        lim = min(13, c + PRO if c >= int(E("CATCH", "1")) else c + PRO0)
        while nxt_d <= lim:
            dma(nxt_d); hops += [("d", nxt_d)] * 6; nxt_d += 1
        if c == KC:
            a(f"s_lshl_b32 s{T2}, s2, 9")
            a(f"s_add_u32 s{T2}, s{T2}, {PFLAG}")
            a("v_and_b32 v17, 31, v1")
            a("v_lshlrev_b32 v17, 2, v17")
            a(f"buffer_load_dwordx4 {v(BD,4)}, v12, s[{SC}:{SC+3}], 0 offen")
            a(f"buffer_load_dwordx2 {v(BD+4,2)}, v13, s[{SC}:{SC+3}], 0 offen")
            for r in range(1, 5):
                a(f"buffer_load_dwordx4 {v(BD+8*r,4)}, v14, s[{SC}:{SC+3}], 0 offen offset:{roff[r]}")
                a(f"buffer_load_dwordx2 {v(BD+8*r+4,2)}, v14, s[{SC}:{SC+3}], 0 offen offset:{roff[r]+16}")
            hops += ["k"] * 10
            srd(a, SA, WD, 1792 * 896)
            a(f"s_mul_i32 s{T0}, s2, 7168")
            a(f"s_lshl_b32 s{T1}, s{HW}, 11")
            a(f"s_add_u32 s{T0}, s{T0}, s{T1}")
            a(f"buffer_load_dwordx4 v[52:55], v9, s[{SA}:{SA+3}], s{T0} offen")
            a(f"buffer_load_dwordx4 v[52:55], v9, s[{SA}:{SA+3}], s{T0} offen offset:1024")
            hops += ["p"] * 2
        if c == int(E("PMC", "13")):
            a(f"buffer_load_dword v16, v17, s[28:31], s{T2} offen sc1")
            hops += ["pm"]
        if c > 0:
            hsum(c - 1)
        if BC <= c < BC + 5 and not E('NOBUILD'):
            assert BC > KC + PRO
            build(c - BC)
        if c < 13:
            a(f"s_waitcnt vmcnt({hwait(('d', c + 1))}) lgkmcnt(0)")
            a("s_barrier")
        else:
            a("s_waitcnt lgkmcnt(0)")
    def urev_try():
        sk = a.new("k_urs")
        a("v_cmp_ne_u32 vcc, 1, v16")
        a(f"s_mov_b32 s{MX}, 0")
        a("s_nop 2")
        a("s_cmp_lg_u64 vcc, 0")
        a(f"s_cbranch_scc1 {sk}")
        a(f"s_add_u32 s{T0}, s{KROW}, {UREV_OFF}")
        a(f"s_add_u32 s{SC}, s{WS}, s{T0}")
        a(f"s_addc_u32 s{SC+1}, s{WS+1}, 0")
        a(f"s_and_b32 s{SC+1}, s{SC+1}, 0xffff")
        a(f"s_movk_i32 s{SC+2}, 4096")
        a(f"s_mov_b32 s{SC+3}, 0x00020000")
        for r in range(5):
            a(f"s_add_u32 m0, s{UBASE}, {r * 1024}")
            a(f"s_movk_i32 s{T0}, {r * 1024}")
            a(f"buffer_load_dwordx4 v9, s[{SC}:{SC+3}], s{T0} offen sc1 lds")
        a(f"s_mov_b32 s{MX}, 1")
        a("v_mov_b32 v2, 1")
        a(f"v_mov_b32 v3, {CNT_U}")
        a("s_mov_b64 exec, 1")
        a("ds_add_u32 v3, v2")
        a("s_mov_b64 exec, -1")
        a.lab(sk)
    hsum(13)
    a.stamp(3)
    a("s_nop 1")
    for i in range(8):
        a(f"v_add_f32_dpp v{24+i}, v{24+i}, v{24+i} row_ror:8 row_mask:0xf bank_mask:0xf")
    for i in range(8):
        a(f"v_mov_b32 v{32+i}, v{24+i}")
    a("s_nop 1")
    for i in range(8):
        a(f"v_permlane16_swap_b32 v{24+i}, v{32+i}")
    a("s_nop 1")
    for i in range(8):
        a(f"v_add_f32 v{24+i}, v{24+i}, v{32+i}")
    for i in range(8):
        a(f"v_mov_b32 v{32+i}, v{24+i}")
    a("s_nop 1")
    for i in range(8):
        a(f"v_permlane32_swap_b32 v{24+i}, v{32+i}")
    a("s_nop 1")
    for i in range(8):
        a(f"v_add_f32 v{24+i}, v{24+i}, v{32+i}")
    a(f"s_lshl_b32 s{T0}, s{HW}, 8")
    a(f"s_add_u32 s{T0}, s{T0}, {A_CS}")
    a(f"v_lshl_add_u32 v2, v1, 5, s{T0}")
    a("s_mov_b64 exec, 0xff")
    a("ds_write_b128 v2, v[24:27]")
    a("ds_write_b128 v2, v[28:31] offset:16")
    a("s_mov_b64 exec, -1")
    a("s_waitcnt lgkmcnt(0)")
    a("s_barrier")
    a.stamp(4)

    a(f"s_setprio {int(E('CPRIO', '1'))}")
    lb = a.new("k_kw")
    a(f"s_waitcnt vmcnt({hwait('pm')})")
    urev_try()
    a(f"s_cmp_eq_u32 s{MX}, 1")
    a(f"s_cbranch_scc1 {lb}")
    a(f"buffer_load_dword v16, v17, s[28:31], s{T2} offen sc1")
    a("s_waitcnt vmcnt(1)")
    a.lab(lb)
    a("s_waitcnt vmcnt(5)")
    a.stamp(11)
    for r in range(5):
        build(r)
        if r in (1, 3):
            lb = a.new("k_mid")
            a(f"s_cmp_eq_u32 s{MX}, 1")
            a(f"s_cbranch_scc1 {lb}")
            a("s_waitcnt vmcnt(0)")
            urev_try()
            a(f"s_cmp_eq_u32 s{MX}, 1")
            a(f"s_cbranch_scc1 {lb}")
            a(f"buffer_load_dword v16, v17, s[28:31], s{T2} offen sc1")
            a.lab(lb)
            a("s_waitcnt lgkmcnt(0)")
        elif r < 4: a("s_waitcnt lgkmcnt(4)")
    a.stamp(12)
    lp, ok = a.new("k_ppl"), a.new("k_ppk")
    a.lab(lp)
    a(f"s_cmp_eq_u32 s{MX}, 1")
    a(f"s_cbranch_scc1 {ok}")
    a("s_waitcnt vmcnt(0)")
    urev_try()
    a(f"s_cmp_eq_u32 s{MX}, 1")
    a(f"s_cbranch_scc1 {ok}")
    a("s_sleep 4")
    a(f"buffer_load_dword v16, v17, s[28:31], s{T2} offen sc1")
    a(f"s_branch {lp}")
    a.lab(ok)
    a.stamp(5)
    a("v_and_b32 v2, 15, v1")
    a("v_lshrrev_b32 v3, 4, v1")
    a("v_lshl_add_u32 v4, v3, 3, v2")
    a("v_add_u32 v4, 1, v4")
    a("v_and_b32 v5, 3, v4")
    a(f"v_mul_u32_u24 v5, {CPITCH}, v5")
    a("v_lshrrev_b32 v4, 2, v4")
    a("v_lshl_add_u32 v5, v4, 3, v5")
    a(f"v_add_u32 v22, s{CBASE}, v5")
    a("v_lshlrev_b32 v4, 5, v2")
    a("v_sub_u32 v4, 480, v4")
    a("v_lshl_add_u32 v4, v3, 4, v4")
    a(f"v_add_u32 v23, s{UBASE}, v4")
    a("v_lshlrev_b32 v4, 5, v2")
    a("v_lshl_add_u32 v8, v3, 3, v4")
    a("v_sub_u32 v5, 504, v8")
    a(f"v_add_u32 v19, s{UBASE}, v5")
    a(f"s_add_u32 s{KROW}, s{KROW}, {Y2_OFF}")
    a(f"s_cmp_eq_u32 s{MAT}, 0")
    a(f"s_cselect_b32 s{T0}, 16, 0")
    a(f"s_lshl_b32 s{T6}, s{T6}, s{T0}")
    a(f"s_and_b32 s{T6}, s{T6}, 0xffff0000")
    a("s_waitcnt vmcnt(0) lgkmcnt(0)")
    a.stamp(6)
    a(f"s_and_b32 s{T0}, s{HW}, 1")
    a(f"s_cmp_eq_u32 s{T0}, 1")
    a("s_cbranch_scc1 k_conv1")
    def conv_body(tiles):
        amax = max(tiles)
        SET = [(40, 72), (104, 136)]
        def rd(c0i):
            Tb, Hb = SET[c0i & 1]
            L = []
            for k in range(amax + 1):
                L.append(f"ds_read_b64 {v(Tb+4*k,2)}, v22 offset:{64*c0i + 512*k}")
                L.append(f"ds_read_b64 {v(Tb+4*k+2,2)}, v22 offset:{64*c0i + 512*k + 8}")
                L.append(f"ds_read_b128 {v(Hb+4*k,4)}, v23 offset:{64*c0i + 512*(7-k)}")
            return L
        for x in rd(0): a(x)
        for c0i in range(int(E('NC0', '8'))):
            Tb, Hb = SET[c0i & 1]
            a("s_waitcnt lgkmcnt(0)")
            nxt = rd(c0i + 1) if c0i < int(E('NC0', '8')) - 1 else []
            mf = []
            lists = [[(bi, aa, b - aa) for aa in range(b + 1)] for bi, b in enumerate(tiles)]
            while any(lists):
                for l_ in lists:
                    if l_: mf.append(l_.pop(0))
            seen = set()
            for n, (bi, aa, m) in enumerate(mf):
                acc = 24 + 4 * bi
                cc = "0" if (c0i == 0 and bi not in seen) else v(acc, 4)
                seen.add(bi)
                a(f"v_mfma_f32_16x16x32_bf16 {v(acc,4)}, {v(Tb+4*aa,4)}, {v(Hb+4*m,4)}, {cc}")
                for _ in range(2):
                    if nxt: a(nxt.pop(0))
            assert not nxt
        for bi, b in enumerate(tiles):
            a(f"ds_read_b64 {v(40+2*bi,2)}, v19 offset:{512*(7-b)}")
        a("s_waitcnt lgkmcnt(0)")
        a("s_nop 4")
        for bi, b in enumerate(tiles):
            acc = 24 + 4 * bi
            K0, K1 = 40 + 2 * bi, 41 + 2 * bi
            T = 48 + 8 * bi
            a(f"v_and_b32 v{T+0}, 0xffff0000, v{K1}")
            a(f"v_lshlrev_b32 v{T+1}, 16, v{K1}")
            a(f"v_and_b32 v{T+2}, 0xffff0000, v{K0}")
            a(f"v_lshlrev_b32 v{T+3}, 16, v{K0}")
            for e in range(4):
                a(f"v_fma_f32 v{T+e}, s{T6}, v{T+e}, v{acc+e}")
            a(f"v_cvt_pk_bf16_f32 v{T+4}, v{T+0}, v{T+1}")
            a(f"v_cvt_pk_bf16_f32 v{T+5}, v{T+2}, v{T+3}")
            a(f"buffer_store_dwordx2 {v(T+4,2)}, v8, s[28:31], s{KROW} offen offset:{512*b} sc1")
    conv_body([0, 3, 4, 7])
    a("s_branch k_conv_done")
    a.lab("k_conv1")
    conv_body([1, 2, 5, 6])
    a.lab("k_conv_done")
    a.stamp(7)
    a(f"s_lshr_b32 s{T0}, s2, 5")
    a(f"s_lshl_b32 s{T0}, s{T0}, 12")
    a(f"s_and_b32 s{T1}, s2, 31")
    a(f"s_lshl_b32 s{T1}, s{T1}, 2")
    a(f"s_add_u32 s{T0}, s{T0}, s{T1}")
    a(f"s_add_u32 s{T0}, s{T0}, {YFLAG}")
    a("v_lshrrev_b32 v5, 3, v1")
    a(f"v_mul_u32_u24 v5, {56*512}, v5")
    a("v_and_b32 v6, 7, v1")
    a("v_lshl_add_u32 v5, v6, 9, v5")
    a("s_waitcnt vmcnt(0)")
    a.stamp(8)
    arrive_publish(a, CNT_Y, 4, T0, 5, 32)
    a("v_lshrrev_b32 v6, 3, v1")
    a("v_and_b32 v7, 7, v1")
    a("v_lshlrev_b32 v5, 4, v7")
    a("v_lshl_add_u32 v5, v6, 12, v5")
    a(f"s_lshl_b32 s{T1}, s{CB}, 18")
    a(f"s_lshl_b32 s{T2}, s{TB}, 7")
    a(f"s_add_u32 s{T1}, s{T1}, s{T2}")
    a(f"s_lshl_b32 s{T2}, s{HW}, 16")
    a(f"s_add_u32 s{T1}, s{T1}, s{T2}")
    a(f"s_add_u32 s{T1}, s{T1}, {Y2_OFF}")
    a(f"s_add_u32 s{T2}, s{T1}, {8*4096}")
    a(f"s_lshl_b32 s{T0}, s{HW}, 1")
    a(f"v_xor_b32 v8, s{T0}, v7")
    a("v_lshlrev_b32 v8, 4, v8")
    a("v_lshl_add_u32 v8, v7, 10, v8")
    a("v_lshl_add_u32 v8, v6, 1, v8")
    a(f"v_add_u32 v8, {Y2S}, v8")
    a("v_xor_b32 v9, 16, v8")
    a(f"s_lshl_b32 s{T0}, s2, 9")
    a(f"s_lshl_b32 s{T4}, s{HW}, 5")
    a(f"s_add_u32 s{T0}, s{T0}, s{T4}")
    a(f"s_add_u32 s{T0}, s{T0}, {YFLAG}")
    poll(a, T0, 8, sleep=8)
    a.stamp(9)
    a(f"buffer_load_dwordx4 v[24:27], v5, s[28:31], s{T1} offen sc1")
    a(f"buffer_load_dwordx4 v[28:31], v5, s[28:31], s{T2} offen sc1")
    for it in range(2):
        a(f"s_waitcnt vmcnt({1-it})")
        for e in range(8):
            op = "ds_write_b16_d16_hi" if e & 1 else "ds_write_b16"
            a(f"{op} v{8+it}, v{24 + 4*it + e//2} offset:{e*128}")
    lb = a.new("k_nost")
    a("s_cmp_lg_u32 s32, 8")
    a(f"s_cbranch_scc1 {lb}")
    a(f"s_lshl_b32 s{T0}, s2, 9")
    a(f"s_and_b32 s{T1}, s{TB}, 3")
    a(f"s_lshl_b32 s{T1}, s{T1}, 4")
    a(f"s_add_u32 s{T0}, s{T0}, s{T1}")
    a(f"s_add_u32 s{T0}, s{T0}, {HFLAG}")
    poll(a, T0, 4, sleep=8)
    a("v_lshlrev_b32 v7, 3, v1")
    a(f"s_lshl_b32 s{T2}, s{TB}, 9")
    a(f"s_add_u32 s{T2}, s{T2}, {STATS_OFF}")
    a(f"buffer_load_dwordx2 v[24:25], v7, s[28:31], s{T2} offen sc1")
    a(f"v_add_u32 v7, {STS}, v7")
    a("s_waitcnt vmcnt(0)")
    a("ds_write_b64 v7, v[24:25]")
    a.lab(lb)
    a.stamp(10)
    a("s_waitcnt lgkmcnt(0)")
    a("s_barrier")
    a.fin()
    a("s_endpgm")

    a.lab("k_final")
    a.role = "f"
    a.stamp(11)
    a("s_waitcnt vmcnt(0) lgkmcnt(0)")
    a("s_barrier")
    a.stamp(12)
    a("v_lshrrev_b32 v2, 3, v0")
    a("v_and_b32 v3, 7, v0")
    a("v_mul_u32_u24 v4, 272, v2")
    a("v_lshl_add_u32 v4, v3, 5, v4")
    a(f"v_add_u32 v5, {3*PART}, v4")
    a(f"v_add_u32 v8, {6*PART}, v4")
    a("v_lshlrev_b32 v7, 3, v2")
    a(f"v_add_u32 v7, {STS}, v7")
    a("ds_read_b64 v[18:19], v7")
    PR = [24, 32, 40, 48, 96, 104, 112, 120]
    for w in range(8):
        ad = (4, 5, 8)[w // 3]
        for hh in range(2):
            a(f"ds_read_b128 {v(PR[w] + 4*hh, 4)}, v{ad} offset:{(w % 3) * PART + 16*hh}")
        if w == 5: a("s_waitcnt lgkmcnt(8)")
    a("v_lshrrev_b32 v6, 3, v2")
    a("v_xor_b32 v6, v6, v3")
    a("v_lshlrev_b32 v6, 4, v6")
    a("v_lshl_add_u32 v6, v2, 7, v6")
    a(f"v_add_u32 v6, {Y2S}, v6")
    a("ds_read_b128 v[56:59], v6")
    srd(a, SB, OUT, 2048 * 896)
    X, XN, Y = 64, 72, 80
    for i in range(4):
        unpack(a, X + 2 * i, 128 + i)
    a("v_rcp_f32 v21, v19")
    for e in range(8):
        a(f"v_sub_f32 v{XN+e}, v{X+e}, v18")
    a("v_mul_f32 v22, v21, v21")
    for e in range(8):
        a(f"v_mul_f32 v{XN+e}, v{XN+e}, v21")
    a("s_waitcnt lgkmcnt(0)")
    for (d, s_) in ((0, 1), (2, 3), (4, 5), (6, 7), (0, 2), (4, 6), (0, 4)):
        for i in range(0, 8, 2):
            a(f"v_pk_add_f32 {v(PR[d]+i,2)}, {v(PR[d]+i,2)}, {v(PR[s_]+i,2)}")
    for e in range(8):
        a(f"v_mul_f32 v{24+e}, v{24+e}, v22")
    for e in range(8):
        a(f"v_mul_f32 v{32+e}, 0xbfb8aa3b, v{24+e}")
    for e in range(8):
        a(f"v_exp_f32 v{32+e}, v{32+e}")
    for i in range(4):
        unpack(a, Y + 2 * i, 56 + i)
    for e in range(8):
        a(f"v_add_f32 v{32+e}, 1.0, v{32+e}")
    for e in range(8):
        a(f"v_rcp_f32 v{32+e}, v{32+e}")
    for e in range(8):
        a(f"v_mul_f32 v{XN+e}, v{XN+e}, v{Y+e}")
    for e in range(8):
        a(f"v_mul_f32 v{24+e}, v{24+e}, v{32+e}")
    for e in range(8):
        a(f"v_fma_f32 v{24+e}, v{XN+e}, v{24+e}, v{X+e}")
    for i in range(4):
        a(f"v_cvt_pk_bf16_f32 v{88+i}, v{24+2*i}, v{24+2*i+1}")
    for _ in range(int(E("ENDSLEEP", "0"))): a("s_sleep 32")
    if E("TGLOB"):
        a("v_mov_b32 v2, 0")
        a(f"global_load_dword v3, v2, s[{DBG}:{DBG+1}] offset:128 sc1")
        a("s_waitcnt vmcnt(0)")
        a("v_readfirstlane_b32 s96, v3")
        a("s_nop 3")
        a("s_not_b32 s96, s96")
    if E("TFIX"):
        lp = a.new("tfix")
        a.lab(lp)
        a("s_memrealtime s[98:99]")
        a("s_waitcnt lgkmcnt(0)")
        a("s_sub_u32 s98, s98, s96")
        a(f"s_cmp_lt_u32 s98, {int(E('TFIX'))}")
        a(f"s_cbranch_scc1 {lp}")
    a(f"buffer_store_dwordx4 v[88:91], v14, s[{SB}:{SB+3}], 0 offen {E('OST', 'sc1')}")
    a.fin()
    a("s_endpgm")

    a.lab("k_prep")
    a.role = "p"
    P = R0
    a(f"s_sub_u32 s{P}, s2, 224")
    a("s_waitcnt lgkmcnt(0)")
    srd(a, 28, WS, WS_REC)
    a("s_cmp_ge_u32 s32, 8")
    a("s_cbranch_scc1 k_end")
    a("s_cmp_eq_u32 s32, 7")
    a("s_cbranch_scc1 k_prep_flags")
    srd(a, SA, K_, 2048 * 896)
    srd(a, SB, V_, 2048 * 896)
    srd(a, SC, SK, 448 * 8)
    a(f"s_movk_i32 s{T0}, 1171")
    a(f"v_mul_lo_u32 v2, v0, s{T0}")
    a("v_lshrrev_b32 v2, 16, v2")
    a("v_mul_u32_u24 v3, 56, v2")
    a("v_sub_u32 v3, v0, v3")
    a(f"s_lshl_b32 s{T0}, s{P}, 6")
    a(f"v_lshl_add_u32 v4, v2, 3, s{T0}")
    a(f"s_movk_i32 s{T1}, 896")
    a(f"v_mul_lo_u32 v4, v4, s{T1}")
    a("v_lshl_add_u32 v11, v3, 4, v4")
    a("v_subrev_u32 v10, 2688, v11")
    a("v_add_u32 v12, 3584, v11")
    a("v_lshlrev_b32 v13, 6, v3")
    KR, VR, SW = 16, 60, 92
    PD = E("PDELAY", "1") == "1"
    for i in range(4):
        a(f"buffer_load_dwordx4 {v(SW+4*i,4)}, v13, s[{SC}:{SC+3}], 0 offen offset:{16*i}")
    if PD: a("s_waitcnt vmcnt(0)")
    for r in range(11):
        if r < 3: ad, off = 10, r * 896
        elif r < 7: ad, off = 11, (r - 3) * 896
        else: ad, off = 12, (r - 7) * 896
        a(f"buffer_load_dwordx4 {v(KR+4*r,4)}, v{ad}, s[{SA}:{SA+3}], 0 offen offset:{off}")
    for r in range(8):
        ad, off = (11, r * 896) if r < 4 else (12, (r - 4) * 896)
        a(f"buffer_load_dwordx4 {v(VR+4*r,4)}, v{ad}, s[{SB}:{SB+3}], 0 offen offset:{off}")
    a("v_sub_u32 v5, 7, v2")
    a("v_and_b32 v6, 7, v3")
    a("v_xor_b32 v5, v5, v6")
    a("v_lshlrev_b32 v5, 4, v5")
    a("v_lshl_add_u32 v14, v3, 10, v5")
    a.stamp(2)
    a("s_waitcnt vmcnt(0)")
    a.stamp(3)
    WF, KF, RES, OUT_ = 108, 116, 138, 154
    for p in range(4):
        for e in range(2):
            ch = 2 * p + e
            for tap in range(4):
                src = SW + 2 * ch + (tap >> 1)
                if tap & 1: a(f"v_and_b32 v{WF + 2*tap + e}, 0xffff0000, v{src}")
                else: a(f"v_lshlrev_b32 v{WF + 2*tap + e}, 16, v{src}")
        for r in range(11):
            unpack(a, KF + 2 * r, KR + 4 * r + p)
        for i in range(8):
            a(f"v_pk_mul_f32 {v(RES+2*i,2)}, {v(KF+2*i,2)}, {v(WF+6,2)}")
        for tap in (2, 1, 0):
            for i in range(8):
                a(f"v_pk_fma_f32 {v(RES+2*i,2)}, {v(KF+2*(i+3-tap),2)}, {v(WF+2*tap,2)}, {v(RES+2*i,2)}")
        for r in range(8):
            unpack(a, KF + 2 * r, VR + 4 * r + p)
        for i in range(8):
            a(f"v_pk_mul_f32 {v(RES+2*i,2)}, {v(RES+2*i,2)}, {v(KF+2*i,2)}")
        for e in range(2):
            for d in range(4):
                a(f"v_cvt_pk_bf16_f32 v{OUT_+4*e+d}, v{RES+2*(7-2*d)+e}, v{RES+2*(6-2*d)+e}")
        for e in range(2):
            a(f"ds_write_b128 v14, {v(OUT_+4*e,4)} offset:{(2*p+e)*128}")
    a("s_branch k_prep_bar")
    a.lab("k_prep_flags")
    a("v_mov_b32 v4, 0")
    a("v_mov_b32 v5, 0")
    a("v_mov_b32 v6, 0")
    a("v_mov_b32 v7, 0")
    a("v_lshlrev_b32 v2, 4, v1")
    a(f"s_mul_i32 s{T0}, s{P}, 3584")
    a(f"s_add_u32 s{T0}, s{T0}, {FLAG_OFF}")
    for q in range(4):
        if q == 3: a("s_mov_b32 exec_hi, 0")
        a(f"buffer_store_dwordx4 v[4:7], v2, s[28:31], s{T0} offen offset:{1024*q} sc1")
    a("s_mov_b64 exec, 1")
    a("v_mov_b32 v3, 1")
    a("s_waitcnt vmcnt(0) lgkmcnt(0)")
    a(f"global_atomic_add v4, v3, s[{DBG}:{DBG+1}] sc1")
    a("s_mov_b64 exec, -1")
    a.lab("k_prep_bar")
    a.stamp(4)
    a("s_waitcnt lgkmcnt(0)")
    a("s_barrier")
    a.stamp(5)
    a("v_lshrrev_b32 v2, 3, v0")
    a("v_and_b32 v3, 7, v0")
    a("v_xor_b32 v4, s32, v3")
    a("v_lshlrev_b32 v4, 4, v4")
    a("v_lshl_add_u32 v4, v2, 7, v4")
    a("v_lshlrev_b32 v5, 4, v3")
    a("v_lshl_add_u32 v5, v2, 12, v5")
    for it in range(7):
        a(f"ds_read_b128 {v(32+4*it,4)}, v4 offset:{it*8192}")
    a(f"s_lshl_b32 s{T0}, s{P}, 7")
    a(f"s_sub_u32 s{T0}, {UREV_OFF + 1984*2}, s{T0}")
    for it in range(7):
        a(f"s_waitcnt lgkmcnt({6-it})")
        a(f"buffer_store_dwordx4 {v(32+4*it,4)}, v5, s[28:31], s{T0} offen sc1")
        a(f"s_add_u32 s{T0}, s{T0}, {64*4096}")
    lb, lp = a.new("k_prep_icd"), a.new("k_prep_icl")
    a("s_cmp_lg_u32 s32, 7")
    a(f"s_cbranch_scc1 {lb}")
    a("v_mov_b32 v22, 0")
    a.lab(lp)
    a(f"global_load_dword v23, v22, s[{DBG}:{DBG+1}] sc1")
    a("s_waitcnt vmcnt(0)")
    a(f"v_readfirstlane_b32 s{T0}, v23")
    a("s_nop 3")
    a(f"s_cmp_ge_u32 s{T0}, 32")
    a(f"s_cbranch_scc1 {lb}")
    a("s_sleep 12")
    a(f"s_branch {lp}")
    a.lab(lb)
    a("s_waitcnt vmcnt(0)")
    a("s_barrier")
    a.stamp(6)
    lb = a.new("k_prep_np")
    a("s_cmp_lg_u32 s32, 7")
    a(f"s_cbranch_scc1 {lb}")
    a("v_lshlrev_b32 v4, 9, v1")
    a(f"s_lshl_b32 s{T0}, s{P}, 2")
    a(f"s_add_u32 s{T0}, s{T0}, {PFLAG}")
    a("v_mov_b32 v3, 1")
    for q in range(4):
        if q == 3: a("s_mov_b32 exec_hi, 0")
        a(f"buffer_store_dword v3, v4, s[28:31], s{T0} offen sc1")
        a(f"s_add_u32 s{T0}, s{T0}, {64*512}")
    a("s_mov_b64 exec, -1")
    a.lab(lb)
    a.fin()
    a.lab("k_end")
    a.lab("k_last")
    a("s_endpgm")

HDR = open("cdna_kernels/" + NAME + ".s.ref").read().split("; Override launch")[0]

def main():
    out = sys.argv[1] if len(sys.argv) > 1 else f"cdna_kernels/{NAME}.s"
    a = A()
    kernel(a)
    txt = HDR
    txt += f"; @launch grid=(256,1,1) block=(768,1,1) lds={LDS}\n"
    txt += '.amdgcn_target "amdgcn-amd-amdhsa--gfx950"\n.text\n'
    txt += f".globl {KN}\n.p2align 8\n.type {KN},@function\n" + "\n".join(a.L) + "\n"
    txt += f'''.section .rodata,"a"
.p2align 6
.amdhsa_kernel {KN}
  .amdhsa_next_free_vgpr 168
  .amdhsa_next_free_sgpr 102
  .amdhsa_accum_offset 168
  .amdhsa_group_segment_fixed_size 0
  .amdhsa_kernarg_size 104
  .amdhsa_user_sgpr_count 2
  .amdhsa_user_sgpr_kernarg_segment_ptr 1
  .amdhsa_system_sgpr_workgroup_id_x 1
.end_amdhsa_kernel
'''
    open(out, "w").write(txt)

if __name__ == "__main__":
    main()
```

```python
import sys, os
E = os.environ.get

NAME = "recurrent_scan__ssm_conv_h3__glu_gated_reglu__prompt"
KN = NAME + "_kernel"
H_OFF = 0
UREV_OFF = 0x700000
STATS_OFF = 0x8C0000
FLAG_OFF = 0x8D0000
HFLAG = FLAG_OFF
YFLAG = FLAG_OFF + 128
PFLAG = FLAG_OFF + 256
SFLAG = FLAG_OFF + 384
Y2_OFF = 0x900000
WS_REC = 0x1000000
DIAG = int(E("DIAG", "0"))
DIAG_OFF = 0xC00000

class A:
    def __init__(self):
        self.L = []
        self.n = 0
    def __call__(self, s):
        self.L.append("    " + s)
    def lab(self, s):
        self.L.append(s + ":")
    def new(self, p="L"):
        self.n += 1
        return f"{p}_{self.n}"
    def stamp(self, i, real=False):
        if E("LOOPST") and 5 <= i <= 10 and getattr(self, "post", False): return
        if E("TM"):
            role, idx, mode, wv = E("TM").split(":")
            if getattr(self, "role", "") == role and int(idx) == i:
                lb = self.new("tm")
                self(f"s_cmp_lg_u32 s32, {wv}")
                self(f"s_cbranch_scc1 {lb}")
                self("s_memrealtime s[98:99]")
                self("s_waitcnt lgkmcnt(0)")
                self("s_sub_u32 s98, s98, s96")
                if mode == "min": self("s_sub_u32 s98, 0x10000, s98")
                r = 26 if (role == "g" and i <= 4) else 2
                self(f"v_mov_b32 v{r}, 0")
                self(f"v_mov_b32 v{r+1}, s98")
                self("s_mov_b64 exec, 1")
                self(f"global_atomic_umax v{r}, v{r+1}, s[24:25] offset:128 sc1")
                self("s_mov_b64 exec, -1")
                self.lab(lb)
        if E("TP"):
            role, idx, T = E("TP").split(":")
            if getattr(self, "role", "") == role and int(idx) == i:
                lp = self.new("tprobe")
                self.lab(lp)
                self("s_memrealtime s[98:99]")
                self("s_waitcnt lgkmcnt(0)")
                self("s_sub_u32 s98, s98, s96")
                self(f"s_cmp_lt_u32 s98, {T}")
                self(f"s_cbranch_scc1 {lp}")
        if E("LOOPST") and 5 <= i <= 10 and getattr(self, "post", False): return
        if DIAG:
            self(f"s_memrealtime s[{60+2*i}:{61+2*i}]" if (real or DIAG == 2) else f"s_memtime s[{60+2*i}:{61+2*i}]")
    def fin(self, vt=160):
        if DIAG:
            self.stamp(13)
            self("s_waitcnt vmcnt(0)")
            self.stamp(14)
            self.stamp(15, True)
            self("s_waitcnt lgkmcnt(0)")
            self("s_lshl_b32 s33, s2, 4")
            self("s_add_u32 s33, s33, s32")
            self("s_lshl_b32 s33, s33, 7")
            self(f"s_add_u32 s33, s33, {DIAG_OFF}")
            self(f"v_mov_b32 v{vt}, 0")
            for i in range(16):
                self(f"v_mov_b32 v{vt+1}, s{60+2*i}")
                self(f"buffer_store_dword v{vt+1}, v{vt}, s[28:31], s33 offen offset:{4*i}")

def v(a, n=1):
    return f"v{a}" if n == 1 else f"v[{a}:{a+n-1}]"

def srd(a, dst, lo, nrec):
    a(f"s_mov_b32 s{dst}, s{lo}")
    a(f"s_and_b32 s{dst+1}, s{lo+1}, 0xffff")
    a(f"s_mov_b32 s{dst+2}, {nrec}")
    a(f"s_mov_b32 s{dst+3}, 0x00020000")

def bf16r(a, dst, src):
    a(f"v_cvt_pk_bf16_f32 v{dst}, v{src}, v{src}")
    a(f"v_lshlrev_b32 v{dst}, 16, v{dst}")

def unpack(a, dst, src):
    a(f"v_lshlrev_b32 v{dst}, 16, v{src}")
    a(f"v_and_b32 v{dst+1}, 0xffff0000, v{src}")

STAGE = 24576
NST = 4
SPS = 2
RING_D = 6
RING = RING_D * 2048
PART = 64 * 272
CONV0 = 8 * RING
CPITCH = 4160
CONV_CH = 4 * CPITCH + 5120
A_STATS = CONV0 + 2 * CONV_CH
A_CS = A_STATS + 1024
Y2S = A_CS + 1024
STS = Y2S + 8192
SYNC = STS + 512
CNT_H, CNT_U, CNT_Y, CNT_R = SYNC, SYNC + 4, SYNC + 8, SYNC + 12
LDS = SYNC + 64

Q, K_, V_, SK, SSMK, SSMD, WG, WU, WD, OUT, DBG, WS = 4, 6, 8, 10, 12, 14, 16, 18, 20, 22, 24, 26
SA, SB, SC = 36, 40, 44
RB, FB, XCD, J, TB, CB = 48, 49, 50, 51, 52, 53
R0, R1, R2, R3, R4, R5 = 54, 55, 56, 57, 58, 59
T0, T1, T2 = 33, 34, 35
T3, T4, T5, T6 = 92, 93, 94, 95

def lds_spin(a, word, vt=2, sleep=1, mask=None):
    lp, dn = a.new("spin"), a.new("spun")
    a(f"v_mov_b32 v{vt+1}, {word}")
    a.lab(lp)
    a(f"ds_read_b32 v{vt}, v{vt+1}")
    a("s_waitcnt lgkmcnt(0)")
    a(f"v_readfirstlane_b32 s{T3}, v{vt}")
    a("s_nop 3")
    if mask is None:
        a(f"s_cmp_lg_u32 s{T3}, 0")
    else:
        a(f"s_and_b32 s{T3}, s{T3}, s{mask}")
        a(f"s_cmp_eq_u32 s{T3}, s{mask}")
    a(f"s_cbranch_scc1 {dn}")
    a(f"s_sleep {sleep}")
    a(f"s_branch {lp}")
    a.lab(dn)

def lds_set(a, word, vt=2):
    a(f"v_mov_b32 v{vt}, 1")
    a(f"v_mov_b32 v{vt+1}, {word}")
    a(f"ds_write_b32 v{vt+1}, v{vt}")

def poll(a, soff, nwords, vt=2, sleep=12):
    lp, dn = a.new("poll"), a.new("polled")
    a(f"v_min_u32 v{vt+1}, {nwords-1}, v1")
    a(f"v_lshlrev_b32 v{vt+1}, 2, v{vt+1}")
    a.lab(lp)
    a(f"buffer_load_dword v{vt}, v{vt+1}, s[28:31], s{soff} offen sc1")
    a("s_waitcnt vmcnt(0)")
    a(f"v_cmp_ne_u32 vcc, 1, v{vt}")
    a("s_nop 3")
    a("s_cmp_eq_u64 vcc, 0")
    a(f"s_cbranch_scc1 {dn}")
    a(f"s_sleep {sleep}")
    a(f"s_branch {lp}")
    a.lab(dn)

def arrive_publish(a, cnt, n, soff, voff, lanes, vt=2):
    sk = a.new("nopub")
    a(f"v_mov_b32 v{vt}, 1")
    a(f"v_mov_b32 v{vt+1}, {cnt}")
    a("s_mov_b64 exec, 1")
    a(f"ds_add_rtn_u32 v{vt+2}, v{vt+1}, v{vt}")
    a("s_mov_b64 exec, -1")
    a("s_waitcnt lgkmcnt(0)")
    a(f"v_readfirstlane_b32 s{T3}, v{vt+2}")
    a("s_nop 3")
    a(f"s_cmp_lg_u32 s{T3}, {n-1}")
    a(f"s_cbranch_scc1 {sk}")
    a(f"s_mov_b32 exec_lo, {hex((1 << lanes) - 1)}")
    a("s_mov_b32 exec_hi, 0")
    a(f"buffer_store_dword v{vt}, v{voff}, s[28:31], s{soff} offen sc1")
    a("s_mov_b64 exec, -1")
    a.lab(sk)

def kernel(a):
    a.lab(KN)
    a("s_cmp_ge_u32 s2, 256")
    a("s_cbranch_scc1 k_end")
    a.stamp(0, True)
    a.stamp(1)
    for _ in range(int(E("BEGSLEEP", "0"))): a("s_sleep 32")
    if E("TFIX") or E("TB0") or E("TE1") or E("TP"): a("s_memrealtime s[96:97]")
    a("s_load_dwordx8 s[4:11], s[0:1], 0")
    a("s_load_dwordx4 s[12:15], s[0:1], 32")
    a("s_load_dwordx8 s[16:23], s[0:1], 56")
    a("s_load_dwordx4 s[24:27], s[0:1], 88")
    a("v_and_b32 v1, 63, v0")
    a("v_lshrrev_b32 v2, 6, v0")
    a("s_nop 0")
    a("v_readfirstlane_b32 s32, v2")
    a("s_cmp_ge_u32 s2, 224")
    a("s_cbranch_scc1 k_prep")
    a(f"s_and_b32 s{XCD}, s2, 7")
    a(f"s_lshr_b32 s{J}, s2, 3")
    a(f"s_mul_i32 s{T0}, s{J}, 37")
    a(f"s_lshr_b32 s{T0}, s{T0}, 8")
    a(f"s_mul_i32 s{T1}, s{T0}, 7")
    a(f"s_sub_u32 s{CB}, s{J}, s{T1}")
    a(f"s_and_b32 s{T1}, s{XCD}, 4")
    a(f"s_add_u32 s{RB}, s{T1}, s{T0}")
    a(f"s_and_b32 s{T1}, s{XCD}, 3")
    a(f"s_mul_i32 s{T1}, s{T1}, 7")
    a(f"s_add_u32 s{FB}, s{T1}, s{CB}")
    a(f"s_lshl_b32 s{T1}, s{XCD}, 2")
    a(f"s_add_u32 s{TB}, s{T1}, s{T0}")
    ROWMAP = E("ROWMAP", "0") == "1"
    if ROWMAP:
        a(f"s_mov_b32 s{RB}, s{XCD}")
        a(f"s_mov_b32 s{FB}, s{J}")
    a("s_cmp_ge_u32 s32, 8")
    a("s_cbranch_scc1 k_helper")

    a.role = "g"
    TG, CG = R0, R1
    a(f"s_lshr_b32 s{TG}, s32, 1")
    a(f"s_and_b32 s{CG}, s32, 1")
    AR = 10
    a("v_and_b32 v2, 31, v1")
    a("v_lshrrev_b32 v3, 5, v1")
    a("v_bfe_u32 v4, v1, 2, 2")
    a("v_xor_b32 v4, v3, v4")
    a(f"s_lshl_b32 s{T0}, s32, 5")
    a(f"v_add_u32 v5, s{T0}, v2")
    a("v_lshlrev_b32 v5, 6, v5")
    a(f"v_lshl_add_u32 v{AR+0}, v4, 4, v5")
    a(f"v_xor_b32 v{AR+1}, 0x800, v{AR+0}")
    a(f"v_xor_b32 v{AR+2}, 32, v{AR+0}")
    a(f"v_xor_b32 v{AR+3}, 32, v{AR+1}")
    a("v_bfe_u32 v4, v1, 4, 1")
    a("v_bfe_u32 v5, v1, 2, 2")
    a("v_bfe_u32 v6, v1, 3, 1")
    a("v_lshl_or_b32 v6, v4, 1, v6")
    a(f"s_lshl_b32 s{T0}, s{CG}, 1")
    a(f"v_xor_b32 v6, s{T0}, v6")
    a("v_lshl_add_u32 v7, v3, 3, v5")
    a("v_lshlrev_b32 v7, 7, v7")
    a("v_lshl_add_u32 v7, v4, 12, v7")
    a("v_lshl_add_u32 v7, v6, 5, v7")
    a("v_and_b32 v8, 3, v1")
    a("v_lshl_add_u32 v7, v8, 3, v7")
    a(f"v_add_u32 v{AR+4}, 0x4000, v7")
    a(f"v_xor_b32 v{AR+5}, 32, v{AR+4}")
    for i in range(6):
        a(f"v_add_u32 v{AR+6+i}, {SPS * STAGE}, v{AR+i}")
    a("v_mov_b32 v28, 0")
    a("v_mov_b32 v29, 0")
    a("v_mov_b32 v22, 0")
    a("v_and_b32 v24, 15, v1")
    a("v_lshlrev_b32 v24, 2, v24")
    a(f"s_mov_b32 s{T5}, 0")
    a("s_waitcnt lgkmcnt(0)")
    srd(a, 28, WS, WS_REC)
    HF, YF = R2, R3
    a(f"s_lshl_b32 s{HF}, s{RB}, 9")
    a(f"s_lshl_b32 s{T0}, s{FB}, 2")
    a(f"s_add_u32 s{HF}, s{HF}, s{T0}")
    a(f"s_add_u32 s{HF}, s{HF}, {HFLAG}")
    a(f"s_lshl_b32 s{YF}, s2, 9")
    a(f"s_add_u32 s{YF}, s{YF}, {FLAG_OFF}")
    if E("TGLOB"):
        lb = a.new("tg")
        a("s_cmp_lg_u32 s32, 0")
        a(f"s_cbranch_scc1 {lb}")
        a("s_not_b32 s98, s96")
        a("v_mov_b32 v2, s98")
        a("s_mov_b64 exec, 1")
        a(f"global_atomic_umax v22, v2, s[{DBG}:{DBG+1}] offset:128 sc1")
        a("s_mov_b64 exec, -1")
        a.lab(lb)
    a("s_cmp_eq_u32 s32, 7")
    a("s_cbranch_scc1 k_init")
    if E("GTOUCH", "1") == "1":
        srd(a, SA, Q, 2048 * 896)
        srd(a, SB, WG, 448 * 3584)
        srd(a, SC, WU, 448 * 3584)
        if ROWMAP:
            a(f"s_lshl_b32 s{T0}, s{XCD}, 8")
            a(f"s_mul_i32 s{T1}, s{J}, 10")
            a(f"s_add_u32 s{T0}, s{T0}, s{T1}")
            a(f"s_mul_i32 s{T0}, s{T0}, 896")
            a(f"s_lshl_b32 s{T1}, s32, 7")
            a(f"s_add_u32 s{T0}, s{T0}, s{T1}")
            a("v_mul_u32_u24 v2, 896, v1")
            a("v_mul_u32_u24 v4, 3584, v1")
            a(f"s_lshl_b32 s{T1}, s{J}, 7")
            a(f"s_mul_i32 s{T2}, s32, {64 * 3584}")
            a(f"s_add_u32 s{T1}, s{T1}, s{T2}")
            a(f"buffer_load_dword v7, v4, s[{SB}:{SB+3}], s{T1} offen")
            a(f"buffer_load_dword v8, v4, s[{SC}:{SC+3}], s{T1} offen")
            a("s_mov_b64 exec, 0x3ff")
            a(f"buffer_load_dword v6, v2, s[{SA}:{SA+3}], s{T0} offen")
            a("s_mov_b64 exec, -1")
        else:
            a(f"s_lshr_b32 s{T0}, s{XCD}, 2")
            a(f"s_lshl_b32 s{T0}, s{T0}, 10")
            a(f"s_mul_i32 s{T1}, s{J}, 37")
            a(f"s_add_u32 s{T0}, s{T0}, s{T1}")
            a(f"s_mul_i32 s{T0}, s{T0}, 896")
            a(f"s_lshl_b32 s{T1}, s32, 7")
            a(f"s_add_u32 s{T0}, s{T0}, s{T1}")
            a("v_mul_u32_u24 v2, 896, v1")
            a(f"s_lshl_b32 s{T1}, s{J}, 4")
            a(f"v_add_u32 v3, s{T1}, v1")
            a("v_mul_u32_u24 v4, 0x2493, v3")
            a("v_lshrrev_b32 v4, 16, v4")
            a("v_mul_u32_u24 v5, 7, v4")
            a("v_sub_u32 v5, v3, v5")
            a("v_mul_u32_u24 v4, 3584, v4")
            a("v_lshl_add_u32 v4, v5, 7, v4")
            a(f"s_and_b32 s{T1}, s{XCD}, 3")
            a(f"s_mul_i32 s{T1}, s{T1}, 896")
            a(f"s_mul_i32 s{T2}, s32, {64 * 3584}")
            a(f"s_add_u32 s{T1}, s{T1}, s{T2}")
            TD = int(E("TD", "0"))
            if TD:
                lb = a.new("k_td")
                a(f"s_cmp_lt_u32 s32, {int(E('TS0', '2'))}")
                a(f"s_cbranch_scc1 {lb}")
                a(f"s_sleep {TD}")
                a.lab(lb)
            a("s_mov_b32 exec_hi, 31")
            a(f"buffer_load_dword v6, v2, s[{SA}:{SA+3}], s{T0} offen")
            a("s_mov_b64 exec, 0xffff")
            a(f"buffer_load_dword v7, v4, s[{SB}:{SB+3}], s{T1} offen")
            a(f"buffer_load_dword v8, v4, s[{SC}:{SC+3}], s{T1} offen")
            a("s_mov_b64 exec, -1")
    a("s_branch k_main")
    a.lab("k_init")
    a("v_mov_b32 v2, 0")
    a(f"v_lshl_add_u32 v3, v1, 2, 0")
    a(f"v_add_u32 v3, {SYNC}, v3")
    a("s_mov_b64 exec, 0xff")
    a("ds_write_b32 v3, v2")
    a("s_waitcnt lgkmcnt(0)")
    a("s_mov_b64 exec, -1")
    a(f"global_load_dword v23, v22, s[{DBG}:{DBG+1}] sc1")
    if E("CTOUCH", "0") == "1":
        a("s_getpc_b64 s[98:99]")
        a.lab("k_pc")
        a(f"s_sub_u32 s98, s98, k_pc-{KN}")
        a("s_subb_u32 s99, s99, 0")
        a(f"s_lshl_b32 s{T0}, s{J}, 11")
        a("v_lshlrev_b32 v2, 7, v1")
        a(f"v_add_u32 v2, s{T0}, v2")
        a(f"v_min_u32 v2, k_last-{KN}, v2")
        a("s_mov_b64 exec, 0xffff")
        a("global_load_dword v9, v2, s[98:99]")
        a("s_mov_b64 exec, -1")
    a.lab("k_main")
    a(f"s_cmp_ge_u32 s{FB}, 16")
    a("s_cbranch_scc1 k_nostat")
    srd(a, SA, Q, 2048 * 896)
    a(f"s_lshl_b32 s{T0}, s{RB}, 8")
    a(f"s_lshl_b32 s{T1}, s{FB}, 4")
    a(f"s_add_u32 s{T0}, s{T0}, s{T1}")
    a(f"s_lshl_b32 s{T1}, s32, 1")
    a(f"s_add_u32 s{T0}, s{T0}, s{T1}")
    a("v_lshrrev_b32 v2, 5, v1")
    a(f"v_add_u32 v2, s{T0}, v2")
    a(f"s_movk_i32 s{T1}, 896")
    a(f"v_mul_lo_u32 v3, v2, s{T1}")
    a("v_and_b32 v4, 31, v1")
    a("v_lshl_add_u32 v3, v4, 4, v3")
    for r in range(144, 148): a(f"v_mov_b32 v{r}, 0")
    a(f"buffer_load_dwordx4 v[140:143], v3, s[{SA}:{SA+3}], 0 offen")
    a("s_mov_b32 exec_lo, 0xffffff")
    a("s_mov_b32 exec_hi, 0xffffff")
    a(f"buffer_load_dwordx4 v[144:147], v3, s[{SA}:{SA+3}], 0 offen offset:512")
    a("s_mov_b64 exec, -1")
    for r in range(148, 152): a(f"v_mov_b32 v{r}, 0")
    a("v_lshlrev_b32 v156, 3, v2")
    a.lab("k_nostat")

    SETS = {0: 32, 1: 48}
    def reads(c, st_):
        base = SETS[st_]
        stg = c % NST
        R, o = AR + 6 * (stg // SPS), (stg % SPS) * STAGE
        a(f"ds_read_b128 {v(base,4)}, v{R + 2*st_} offset:{o}")
        for ct in range(2):
            for half in range(2):
                a(f"ds_read_b64_tr_b16 {v(base + 8 + 4*ct + 2*half, 2)}, v{R + 4 + ct} offset:{o + st_*2048 + half*512}")
        a(f"ds_read_b128 {v(base+4,4)}, v{R + 2*st_ + 1} offset:{o}")
    def mfmas(c, st_):
        base = SETS[st_]
        first = (2 * c + st_ == 0)
        k = 0
        for tt in range(2):
            for ct in range(2):
                acc = 64 + 16 * (2 * ct + tt)
                cc = "0" if first else v(acc, 16)
                a(f"v_mfma_f32_32x32x16_bf16 {v(acc,16)}, {v(base + 8 + 4*ct, 4)}, {v(base + 4*tt, 4)}, {cc}")
                k += 1
    EARLY = int(E("EARLY", "6"))
    RBASE, WROW = T6, J
    srd(a, SB, WD, 1792 * 896)
    a("v_lshrrev_b32 v2, 3, v1")
    a("v_mul_u32_u24 v2, 896, v2")
    a("v_bfe_u32 v3, v1, 4, 1")
    a("v_lshlrev_b32 v3, 2, v3")
    a("v_and_b32 v4, 7, v1")
    a("v_xor_b32 v3, v3, v4")
    a("v_lshl_add_u32 v2, v3, 4, v2")
    a(f"s_lshl_b32 s{T0}, s{CB}, 7")
    a(f"v_add_u32 v9, s{T0}, v2")
    a(f"s_xor_b32 s{RBASE}, s32, 4")
    a(f"s_mul_i32 s{RBASE}, s{RBASE}, {RING}")
    a(f"s_mul_i32 s{WROW}, s32, {14 * 16 * 896}")
    def early_w(n):
        for i in range(n):
            for hh in range(2):
                a(f"s_add_u32 m0, s{RBASE}, {i * 2048 + hh * 1024}")
                a(f"s_add_u32 s{T0}, s{WROW}, {(16 * i + 8 * hh) * 896}")
                a(f"buffer_load_dwordx4 v9, s[{SB}:{SB+3}], s{T0} offen lds")
    PC = int(E("PC", "11"))
    SC0 = int(E("SC0", "8"))
    SPC = int(E("SPC", "4"))
    SCD = int(E("SCD", "3"))
    def stats_ok(fail):
        a("v_cmp_ne_u32 vcc, 1, v25")
        a("s_nop 3")
        a("s_cmp_lg_u64 vcc, 0")
        a(f"s_cbranch_scc1 {fail}")
    def stats_load():
        a("v_lshlrev_b32 v26, 5, v1")
        a(f"s_lshl_b32 s{T0}, s{RB}, 11")
        a(f"s_add_u32 s{T0}, s{T0}, {STATS_OFF}")
        a(f"buffer_load_dwordx4 v[128:131], v26, s[28:31], s{T0} offen sc1")
        a(f"buffer_load_dwordx4 v[132:135], v26, s[28:31], s{T0} offen offset:16 sc1")
    if E("TB0"):
        lp = a.new("tprobe")
        a.lab(lp)
        a("s_memrealtime s[98:99]")
        a("s_waitcnt lgkmcnt(0)")
        a("s_sub_u32 s98, s98, s96")
        a(f"s_cmp_lt_u32 s98, {int(E('TB0'))}")
        a(f"s_cbranch_scc1 {lp}")
    a("s_barrier")
    a.stamp(2)
    reads(0, 0)
    for c in range(14):
        reads(c, 1)
        a("s_waitcnt lgkmcnt(6)")
        mfmas(c, 0)
        a("s_waitcnt lgkmcnt(0)")
        if c < 13:
            a("s_barrier")
            if E("LOOPST") and c in (1, 3, 5, 7, 9, 11): a.stamp(5 + c // 2)
            reads(c + 1, 0)
        if c == SPC - 1:
            a("s_waitcnt vmcnt(0)")
        if c == SPC:
            lb, lp, ok = a.new("k_sp"), a.new("k_spl"), a.new("k_spk")
            a("s_cmp_lg_u32 s32, 7")
            a(f"s_cbranch_scc1 {lb}")
            a.lab(lp)
            a(f"v_readfirstlane_b32 s{T0}, v23")
            a("s_nop 3")
            a(f"s_cmp_ge_u32 s{T0}, 32")
            a(f"s_cbranch_scc1 {ok}")
            a("s_sleep 8")
            a(f"global_load_dword v23, v22, s[{DBG}:{DBG+1}] sc1")
            a("s_waitcnt vmcnt(0)")
            a(f"s_branch {lp}")
            a.lab(ok)
            a(f"s_cmp_ge_u32 s{FB}, 16")
            a(f"s_cbranch_scc1 {lb}")
            if ROWMAP:
                a(f"s_add_u32 s{T0}, s{HF}, {SFLAG - HFLAG}")
                a("v_lshlrev_b32 v26, 12, v1")
            else:
                a(f"s_and_b32 s{T1}, s{RB}, 3")
                a(f"s_mul_i32 s{T1}, s{T1}, 56")
                a(f"s_and_b32 s{T0}, s{RB}, 4")
                a(f"s_add_u32 s{T0}, s{T0}, s{T1}")
                a(f"s_lshl_b32 s{T0}, s{T0}, 9")
                a(f"s_lshl_b32 s{T1}, s{FB}, 2")
                a(f"s_add_u32 s{T0}, s{T0}, s{T1}")
                a(f"s_add_u32 s{T0}, s{T0}, {SFLAG}")
                a("v_lshrrev_b32 v26, 2, v1")
                a("v_lshlrev_b32 v26, 12, v26")
                a("v_and_b32 v27, 3, v1")
                a("v_lshl_add_u32 v26, v27, 9, v26")
            a("v_mov_b32 v27, 1")
            a("s_mov_b32 exec_lo, 0xfffffff")
            a("s_mov_b32 exec_hi, 0")
            a(f"buffer_store_dword v27, v26, s[28:31], s{T0} offen sc1")
            a("s_mov_b64 exec, -1")
            a.lab(lb)
        if c == SC0:
            lb = a.new("k_s0")
            a("s_cmp_lg_u32 s32, 7")
            a(f"s_cbranch_scc1 {lb}")
            a("s_waitcnt vmcnt(0)")
            a(f"buffer_load_dword v25, v24, s[28:31], s{YF} offen offset:384 sc1")
            a.lab(lb)
        if c in (SC0 + 2, SC0 + 4):
            lb, rt = a.new("k_s1"), a.new("k_s1r")
            a("s_cmp_lg_u32 s32, 7")
            a(f"s_cbranch_scc1 {lb}")
            a(f"s_cmp_eq_u32 s{T5}, 1")
            a(f"s_cbranch_scc1 {lb}")
            a("s_waitcnt vmcnt(0)")
            stats_ok(rt)
            stats_load()
            a(f"s_mov_b32 s{T5}, 1")
            a(f"s_branch {lb}")
            a.lab(rt)
            a(f"buffer_load_dword v25, v24, s[28:31], s{YF} offen offset:384 sc1")
            a.lab(lb)
        if c == int(E('TKC', '-1')):
            lb = a.new("k_notk")
            a("s_cmp_lg_u32 s32, 6")
            a(f"s_cbranch_scc1 {lb}")
            srd(a, SA, SSMK, 448 * 4096)
            a("v_lshlrev_b32 v31, 7, v1")
            a(f"s_lshl_b32 s{T0}, s2, 13")
            a(f"buffer_load_dword v31, v31, s[{SA}:{SA+3}], s{T0} offen")
            a.lab(lb)
        if EARLY and c in (10, 11, 12):
            pair = {10: 0, 11: 1, 12: 2}[c]
            lb = a.new("k_noew")
            a(f"s_cmp_lg_u32 s{TG}, {pair}")
            a(f"s_cbranch_scc1 {lb}")
            early_w(EARLY)
            a.lab(lb)
        WT0 = int(E("WT0", "-99"))
        if WT0 <= c < WT0 + 7:
            lb = a.new("k_nowt")
            a(f"s_cmp_lg_u32 s32, {c - WT0}")
            a(f"s_cbranch_scc1 {lb}")
            srd(a, SA, WD, 1792 * 896)
            a("v_lshlrev_b32 v31, 7, v1")
            a(f"s_mul_i32 s{T0}, s{J}, {448 * 128}")
            a(f"s_add_u32 s{T0}, s{T0}, {(c - WT0) * 8192}")
            a(f"buffer_load_dword v31, v31, s[{SA}:{SA+3}], s{T0} offen")
            a.lab(lb)
        if c == int(E("KVT", "-1")):
            lb = a.new("k_nokv")
            a("s_cmp_lg_u32 s32, 5")
            a(f"s_cbranch_scc1 {lb}")
            srd(a, SA, K_, 2048 * 896)
            srd(a, SB, V_, 2048 * 896)
            a("v_lshlrev_b32 v31, 7, v1")
            a(f"s_lshl_b32 s{T0}, s2, 13")
            a(f"buffer_load_dword v30, v31, s[{SA}:{SA+3}], s{T0} offen")
            a(f"buffer_load_dword v31, v31, s[{SB}:{SB+3}], s{T0} offen")
            a.lab(lb)
        mfmas(c, 1)
        if c == int(E("STC", "0")):
            lbs = a.new("k_nostat2")
            a(f"s_cmp_ge_u32 s{FB}, 16")
            a(f"s_cbranch_scc1 {lbs}")
            a("s_waitcnt vmcnt(0)")
            for i in range(8):
                t = 152 + 2 * (i & 1)
                unpack(a, t, 140 + i)
                a(f"v_add_f32 v148, v148, v{t}")
                a(f"v_add_f32 v149, v149, v{t+1}")
                a(f"v_fmac_f32 v150, v{t}, v{t}")
                a(f"v_fmac_f32 v151, v{t+1}, v{t+1}")
            a("v_add_f32 v148, v148, v149")
            a("v_add_f32 v150, v150, v151")
            for dpp in ("quad_perm:[1,0,3,2]", "quad_perm:[2,3,0,1]", "row_ror:4", "row_ror:8"):
                a("s_nop 1")
                a(f"v_add_f32_dpp v148, v148, v148 {dpp} row_mask:0xf bank_mask:0xf")
                a(f"v_add_f32_dpp v150, v150, v150 {dpp} row_mask:0xf bank_mask:0xf")
            a("v_mov_b32 v149, v148")
            a("v_mov_b32 v151, v150")
            a("s_nop 1")
            a("v_permlane16_swap_b32 v148, v149")
            a("v_permlane16_swap_b32 v150, v151")
            a("s_nop 1")
            a("v_add_f32 v148, v148, v149")
            a("v_add_f32 v150, v150, v151")
            a("v_mul_f32 v148, 0x3b124925, v148")
            a("v_mul_f32 v150, 0x3b124925, v150")
            a("v_fma_f32 v150, -v148, v148, v150")
            a("v_max_f32 v150, 0, v150")
            bf16r(a, 152, 148)
            bf16r(a, 150, 150)
            a("v_add_f32 v150, 0x3727c5ac, v150")
            bf16r(a, 150, 150)
            a("v_sqrt_f32 v150, v150")
            a("s_nop 0")
            bf16r(a, 153, 150)
            a(f"s_mov_b32 s{T0}, {STATS_OFF}")
            a("s_mov_b32 exec_lo, 1")
            a("s_mov_b32 exec_hi, 1")
            a(f"buffer_store_dwordx2 v[152:153], v156, s[28:31], s{T0} offen sc1")
            a("s_mov_b64 exec, -1")
            a.lab(lbs)
    a.stamp(3)
    a.post = True
    if E("EPRIO", "1") == "1": a("s_setprio 2")
    srd(a, SB, WD, 1792 * 896)
    a("v_lshlrev_b32 v10, 4, v1")
    a("v_lshrrev_b32 v2, 3, v1")
    a("v_mul_u32_u24 v2, 896, v2")
    a("v_bfe_u32 v3, v1, 4, 1")
    a("v_lshlrev_b32 v3, 2, v3")
    a("v_and_b32 v4, 7, v1")
    a("v_xor_b32 v3, v3, v4")
    a("v_lshl_add_u32 v2, v3, 4, v2")
    a(f"s_lshl_b32 s{T0}, s{CB}, 7")
    a(f"v_add_u32 v11, s{T0}, v2")
    RBASE, WROW, HB0, HB1 = T6, J, R4, R5
    a(f"s_xor_b32 s{RBASE}, s32, 4")
    a(f"s_mul_i32 s{RBASE}, s{RBASE}, {RING}")
    a(f"s_mul_i32 s{WROW}, s32, {14 * 16 * 896}")
    a(f"s_mul_i32 s{HB0}, s{TB}, 448")
    a(f"s_mul_i32 s{T0}, s32, 28")
    a(f"s_add_u32 s{HB0}, s{HB0}, s{T0}")
    a(f"s_lshl_b32 s{HB0}, s{HB0}, 9")
    a(f"s_add_u32 s{HB1}, s{HB0}, {224 * 512}")
    a("v_bfe_u32 v2, v1, 5, 1")
    a("v_bfe_u32 v3, v1, 2, 2")
    a("v_lshl_add_u32 v2, v2, 2, v3")
    a("v_lshlrev_b32 v2, 7, v2")
    a("v_bfe_u32 v3, v1, 4, 1")
    a("v_and_b32 v4, 3, v1")
    a("v_lshlrev_b32 v4, 3, v4")
    a("v_lshl_or_b32 v4, v3, 5, v4")
    a("v_bfe_u32 v3, v1, 3, 1")
    a("v_lshl_or_b32 v4, v3, 6, v4")
    a(f"v_add3_u32 v12, v2, v4, s{RBASE}")
    a("v_xor_b32 v13, 64, v12")
    a("v_and_b32 v2, 31, v1")
    a(f"s_lshl_b32 s{T0}, s32, 5")
    a(f"v_add_u32 v2, s{T0}, v2")
    a("v_lshlrev_b32 v3, 2, v2")
    a(f"v_add_u32 v4, {A_STATS}, v3")
    a("v_mov_b32 v3, v4")
    a("v_lshrrev_b32 v5, 5, v1")
    a("v_lshlrev_b32 v5, 4, v5")
    a(f"s_lshl_b32 s{T0}, s{CG}, 7")
    a(f"s_add_u32 s{T0}, s{T0}, {A_CS}")
    a(f"v_add_u32 v6, s{T0}, v5")
    a("v_lshlrev_b32 v2, 4, v1")
    a("v_xor_b32 v3, 128, v3")
    lb, lp, rt, ok = a.new("k_icd"), a.new("k_icl"), a.new("k_icr"), a.new("k_ick")
    a("s_cmp_lg_u32 s32, 7")
    a(f"s_cbranch_scc1 {lb}")
    a(f"s_cmp_eq_u32 s{T5}, 1")
    a(f"s_cbranch_scc1 {ok}")
    a.lab(lp)
    a("s_waitcnt vmcnt(0)")
    stats_ok(rt)
    stats_load()
    a(f"s_branch {ok}")
    a.lab(rt)
    a("s_sleep 2")
    a(f"buffer_load_dword v25, v24, s[28:31], s{YF} offen offset:384 sc1")
    a(f"s_branch {lp}")
    a.lab(ok)
    a("s_waitcnt vmcnt(0)")
    for i in range(4):
        a(f"v_xor_b32 v{136+i}, 0x80000000, v{128+2*i}")
    a("v_lshlrev_b32 v26, 4, v1")
    a(f"v_add_u32 v26, {A_STATS}, v26")
    a("ds_write_b128 v26, v[136:139]")
    a.lab(lb)
    if E("TE1"):
        lp = a.new("tprobe")
        a.lab(lp)
        a("s_memrealtime s[98:99]")
        a("s_waitcnt lgkmcnt(0)")
        a("s_sub_u32 s98, s98, s96")
        a(f"s_cmp_lt_u32 s98, {int(E('TE1'))}")
        a(f"s_cbranch_scc1 {lp}")
    a("s_waitcnt lgkmcnt(0)")
    a("s_barrier")
    a.stamp(4)
    a("ds_read_b32 v28, v4")
    a("ds_read_b32 v30, v3")
    CSR, CS2 = 128, 32
    for half, base in ((0, CSR), (1, CS2)):
        for ct in range(2):
            for mat in range(2):
                for q in range(2):
                    a(f"ds_read_b128 {v(base + 16*ct + 8*mat + 4*q, 4)}, v6 offset:{mat*512 + half*256 + ct*64 + q*32}")
    a("s_waitcnt lgkmcnt(0)")
    for i in range(0, 32, 2):
        a(f"v_pk_add_f32 {v(CSR+i,2)}, {v(CSR+i,2)}, {v(CS2+i,2)}")
    ops = ["start"]
    WR = [128, 136, 144, 152, 160, 48, 56]
    HB = [16, 24, 32, 40]
    def issue_w(i):
        sl = i % RING_D
        for hh in range(2):
            a(f"s_add_u32 m0, s{RBASE}, {sl * 2048 + hh * 1024}")
            a(f"s_add_u32 s{T0}, s{WROW}, {(16 * i + 8 * hh) * 896}")
            a(f"buffer_load_dwordx4 v11, s[{SB}:{SB+3}], s{T0} offen lds")
            ops.append(("w", i))
    def issue_h(i):
        for tt in range(2):
            a(f"s_add_u32 s{T0}, s{HB0 + tt}, {i * 1024}")
            a(f"buffer_load_dwordx4 {v(HB[i % 4] + 4*tt, 4)}, v10, s[28:31], s{T0} offen sc1")
            ops.append(("h", i))
    def wait_for(*keys):
        last = max(max(n for n, o in enumerate(ops) if o == k) for k in keys)
        return len(ops) - 1 - last
    def treads(i, base):
        sl = i % RING_D
        for dt in range(2):
            for half in range(2):
                a(f"ds_read_b64_tr_b16 {v(base + 4*dt + 2*half, 2)}, v{12 + dt} offset:{sl*2048 + half*1024}")
    PRE0 = int(E("PRE0", "4"))
    PREPOS = int(E("PREPOS", "0"))
    if EARLY:
        PRE0 = EARLY
        lb = a.new("k_noew")
        a(f"s_cmp_lg_u32 s{TG}, 3")
        a(f"s_cbranch_scc1 {lb}")
        early_w(EARLY)
        a.lab(lb)
    elif PREPOS == 0:
        for i in range(PRE0):
            issue_w(i)
    for tt in range(2):
        mr = 28 + 2 * tt
        a(f"s_lshl_b32 s{T0}, s{RB}, 3")
        a(f"s_lshl_b32 s{T1}, s{TG}, 1")
        a(f"s_add_u32 s{T0}, s{T0}, s{T1}")
        a(f"s_xor_b32 s{T1}, s{CG}, {tt}")
        a(f"s_add_u32 s{T0}, s{T0}, s{T1}")
        a(f"s_mul_i32 s{T0}, s{T0}, 224")
        a(f"s_lshl_b32 s{T1}, s{FB}, 3")
        a(f"s_add_u32 s{T0}, s{T0}, s{T1}")
        a(f"s_lshl_b32 s{T1}, s{CG}, 2")
        a(f"s_add_u32 s{T0}, s{T0}, s{T1}")
        a(f"s_lshl_b32 s{T0}, s{T0}, 9")
        for ct in range(2):
            acc = 64 + 16 * (2 * ct + tt)
            cs = CSR + 16 * ct
            for i in range(0, 16, 2):
                a(f"v_pk_fma_f32 {v(acc+i,2)}, {v(mr,2)}, {v(cs+i,2)}, {v(acc+i,2)} op_sel:[0,0,0] op_sel_hi:[0,1,1]")
            for i in range(8):
                a(f"v_max_f32 v{acc+i}, 0, v{acc+i}")
            for i in range(4):
                a(f"v_pk_mul_f32 {v(acc+2*i,2)}, {v(acc+2*i,2)}, {v(acc+8+2*i,2)}")
            O = 32 + 4 * (2 * tt + ct)
            for i in range(4):
                a(f"v_cvt_pk_bf16_f32 v{O+i}, v{acc+2*i}, v{acc+2*i+1}")
            a(f"buffer_store_dwordx4 {v(O,4)}, v2, s[28:31], s{T0} offen offset:{ct*1024} sc1")
            if E("DBLST", "0") == "1":
                a(f"buffer_store_dwordx4 {v(O,4)}, v2, s[28:31], s{T0} offen offset:{ct*1024}")
    if PREPOS == 1:
        for i in range(PRE0):
            issue_w(i)
    a.stamp(5)
    a("v_lshlrev_b32 v5, 12, v1")
    a(f"s_waitcnt vmcnt({2 * PRE0 if PREPOS == 1 else 0})")
    a.stamp(6)
    arrive_publish(a, CNT_H, 8, HF, 5, 28)
    a("s_setprio 0")
    if E("GATE", "1") == "1":
        lp, dn = a.new("gate"), a.new("gated")
        a(f"v_mov_b32 v3, {CNT_U}")
        a.lab(lp)
        a("ds_read_b32 v2, v3")
        a("s_waitcnt lgkmcnt(0)")
        a(f"v_readfirstlane_b32 s{T0}, v2")
        a("s_nop 3")
        a(f"s_cmp_eq_u32 s{T0}, 4")
        a(f"s_cbranch_scc1 {dn}")
        a("s_sleep 1")
        a(f"s_branch {lp}")
        a.lab(dn)
    ops.clear(); ops.append("flag")
    PACE = int(E("PACE", "6"))
    nw = PRE0
    while nw < PACE:
        issue_w(nw); nw += 1
    if PREPOS == 1:
        a(f"s_waitcnt vmcnt({2 * (PACE - PRE0)})")
    for i in range(13):
        if i >= PRE0:
            a(f"s_waitcnt vmcnt({wait_for(('w', i))})")
        if i < 7:
            treads(i, WR[i])
        if nw <= 12:
            if nw >= RING_D:
                assert nw - RING_D <= i
                a("s_waitcnt lgkmcnt(0)")
            issue_w(nw); nw += 1
    a.stamp(7)
    lp, dn = a.new("hpoll"), a.new("hpolled")
    a(f"s_mul_i32 s{T4}, s32, 7")
    a(f"s_lshr_b32 s{T4}, s{T4}, 1")
    a(f"s_lshl_b32 s{T4}, s{T4}, 2")
    a(f"s_add_u32 s{T4}, s{T4}, s{YF}")
    a("v_and_b32 v3, 3, v1")
    a("v_lshlrev_b32 v3, 2, v3")
    a.lab(lp)
    a(f"buffer_load_dword v2, v3, s[28:31], s{T4} offen sc1")
    a("s_waitcnt vmcnt(0)")
    a("v_cmp_ne_u32 vcc, 1, v2")
    a("s_nop 3")
    a("s_cmp_eq_u64 vcc, 0")
    a(f"s_cbranch_scc1 {dn}")
    a(f"s_sleep {int(E('HSLEEP', '2'))}")
    a(f"s_branch {lp}")
    a.lab(dn)
    a.stamp(8)
    ops.clear(); ops.append("base")
    for i in range(4):
        issue_h(i)
    for i in range(14):
        a(f"s_waitcnt vmcnt({wait_for(('h', i))})" + (" lgkmcnt(0)" if i in (0, 7, 13) else ""))
        base = WR[i % 7]
        for tt in range(2):
            for dt in range(2):
                acc = 64 + 16 * (2 * dt + tt)
                cc = "0" if i == 0 else v(acc, 16)
                a(f"v_mfma_f32_32x32x16_bf16 {v(acc,16)}, {v(base + 4*dt, 4)}, {v(HB[i % 4] + 4*tt, 4)}, {cc}")
        if i + 4 < 14: issue_h(i + 4)
        if i < 6:
            treads(i + 7, WR[i])
        if i == 0:
            a("s_waitcnt lgkmcnt(0)")
            issue_w(13)
        if i == 8:
            a(f"s_waitcnt vmcnt({min(wait_for(('w', 13)), 63)})")
            treads(13, WR[6])
            a("v_mov_b32 v2, 1")
            a(f"v_mov_b32 v3, {CNT_R}")
            a("s_waitcnt lgkmcnt(0)")
            a("s_mov_b64 exec, 1")
            a("ds_add_u32 v3, v2")
            a("s_mov_b64 exec, -1")
        if i == 9:
            a(f"s_lshl_b32 s{T0}, s{TB}, 6")
            a("v_lshrrev_b32 v2, 3, v0")
            a(f"v_add_u32 v3, s{T0}, v2")
            a(f"s_movk_i32 s{T1}, 896")
            a(f"v_mul_lo_u32 v4, v3, s{T1}")
            a("v_and_b32 v5, 7, v0")
            a("v_lshl_add_u32 v4, v5, 4, v4")
            a(f"s_lshl_b32 s{T0}, s{CB}, 7")
            a(f"v_add_u32 v14, s{T0}, v4")
            srd(a, SA, Q, 2048 * 896)
            a(f"buffer_load_dwordx4 v[128:131], v14, s[{SA}:{SA+3}], 0 offen")
            ops.append("x")
        if i == 6: a.stamp(9)
    a.stamp(10)
    lp, dn = a.new("pwait"), a.new("pwaited")
    a(f"v_mov_b32 v4, {CNT_Y}")
    a.lab(lp)
    a("ds_read_b64 v[2:3], v4")
    a("s_waitcnt lgkmcnt(0)")
    a(f"v_readfirstlane_b32 s{T0}, v2")
    a(f"v_readfirstlane_b32 s{T1}, v3")
    a("s_nop 3")
    a(f"s_lshl_b32 s{T0}, s{T0}, 8")
    a(f"s_add_u32 s{T0}, s{T0}, s{T1}")
    a(f"s_cmp_eq_u32 s{T0}, 0x408")
    a(f"s_cbranch_scc1 {dn}")
    a("s_sleep 1")
    a(f"s_branch {lp}")
    a.lab(dn)
    a("v_and_b32 v2, 31, v1")
    a("v_mul_u32_u24 v2, 272, v2")
    a("v_lshrrev_b32 v3, 5, v1")
    a("v_lshl_add_u32 v2, v3, 4, v2")
    a(f"s_mul_i32 s{T0}, s32, {PART}")
    a(f"v_add_u32 v2, s{T0}, v2")
    for tt in range(2):
        for dt in range(2):
            acc = 64 + 16 * (2 * dt + tt)
            for q in range(4):
                a(f"ds_write_b128 v2, {v(acc + 4*q, 4)} offset:{tt*32*272 + dt*128 + q*32}")
    a("s_branch k_final")

    a.lab("k_helper")
    a.role = "c"
    HW, MAT, MX, MW = R0, R1, R2, R3
    a(f"s_sub_u32 s{HW}, s32, 8")
    a(f"s_lshr_b32 s{MAT}, s{HW}, 1")
    a(f"s_lshl_b32 s{MX}, s{HW}, 12")
    a(f"s_lshl_b32 s{MW}, s{HW}, 11")
    a(f"s_add_u32 s{MW}, s{MW}, 16384")
    a(f"s_lshl_b32 s{T0}, s{RB}, 8")
    a(f"s_lshl_b32 s{T1}, s{HW}, 6")
    a(f"s_add_u32 s{T0}, s{T0}, s{T1}")
    a("v_lshrrev_b32 v2, 2, v1")
    a(f"v_add_u32 v2, s{T0}, v2")
    a(f"s_movk_i32 s{T1}, 896")
    a(f"v_mul_lo_u32 v2, v2, s{T1}")
    a("v_and_b32 v3, 3, v1")
    a("v_bfe_u32 v4, v1, 4, 2")
    a("v_xor_b32 v3, v3, v4")
    a("v_lshl_add_u32 v10, v3, 4, v2")
    a(f"s_and_b32 s{T0}, s{HW}, 1")
    a(f"s_lshl_b32 s{T0}, s{T0}, 4")
    a("v_lshrrev_b32 v2, 3, v1")
    a(f"v_add_u32 v2, s{T0}, v2")
    a(f"s_movk_i32 s{T1}, 3584")
    a(f"v_mul_lo_u32 v2, v2, s{T1}")
    a(f"s_lshl_b32 s{T0}, s{FB}, 7")
    a(f"v_add_u32 v2, s{T0}, v2")
    a("v_bfe_u32 v4, v1, 4, 1")
    a("v_lshlrev_b32 v4, 1, v4")
    a(f"s_lshl_b32 s{T0}, s{MAT}, 2")
    a(f"v_or_b32 v4, s{T0}, v4")
    a("v_and_b32 v3, 7, v1")
    a("v_xor_b32 v5, v3, v4")
    a("v_lshl_add_u32 v11, v5, 4, v2")
    a("s_waitcnt lgkmcnt(0)")
    srd(a, SA, Q, 2048 * 896)
    a(f"s_cmp_eq_u32 s{MAT}, 1")
    a(f"s_cselect_b32 s{SB}, s{WU}, s{WG}")
    a(f"s_cselect_b32 s{SB+1}, s{WU+1}, s{WG+1}")
    a(f"s_and_b32 s{SB+1}, s{SB+1}, 0xffff")
    a(f"s_mov_b32 s{SB+2}, {448 * 3584}")
    a(f"s_mov_b32 s{SB+3}, 0x00020000")
    def dma(c):
        st = c % NST
        for i in range(2):
            a(f"s_add_u32 m0, s{MW}, {st * STAGE + 1024 * i}")
            a(f"s_mov_b32 s{T0}, {(c * 32 + 8 * i) * 3584}")
            a(f"buffer_load_dwordx4 v11, s[{SB}:{SB+3}], s{T0} offen lds")
        for i in range(4):
            a(f"s_add_u32 m0, s{MX}, {st * STAGE + 1024 * i}")
            a(f"s_mov_b32 s{T0}, {64 * c + 14336 * i}")
            a(f"buffer_load_dwordx4 v10, s[{SA}:{SA+3}], s{T0} offen lds")
    PRO = int(E("PRO", "3"))
    PRO0 = int(E("PRO0", "2"))
    for c in range(PRO0):
        dma(c)
    srd(a, 28, WS, WS_REC)
    a("v_lshrrev_b32 v2, 3, v1")
    a("v_lshlrev_b32 v2, 7, v2")
    a("v_lshl_add_u32 v2, v5, 4, v2")
    a(f"v_add_u32 v20, s{MW}, v2")
    a(f"v_add_u32 v21, {SPS * STAGE}, v20")
    for r in range(24, 32):
        a(f"v_mov_b32 v{r}, 0")
    a("v_lshlrev_b32 v9, 4, v1")
    CHN, KROW = R4, R5
    a(f"s_lshl_b32 s{CHN}, s2, 1")
    a(f"s_add_u32 s{CHN}, s{CHN}, s{MAT}")
    a(f"s_lshl_b32 s{KROW}, s{CHN}, 12")
    a(f"s_add_u32 s{SC}, s{SSMK}, s{KROW}")
    a(f"s_addc_u32 s{SC+1}, s{SSMK+1}, 0")
    a(f"s_and_b32 s{SC+1}, s{SC+1}, 0xffff")
    a(f"s_movk_i32 s{SC+2}, 4096")
    a(f"s_mov_b32 s{SC+3}, 0x00020000")
    a(f"s_lshl_b32 s{T0}, s2, 2")
    a(f"s_load_dword s{T6}, s[{SSMD}:{SSMD+1}], s{T0}")
    a("v_subrev_u32 v12, 32, v9")
    a("v_subrev_u32 v13, 16, v9")
    a("v_add_u32 v14, 992, v9")
    BUF = [32, 40]
    def hreads(c):
        b = BUF[c & 1]
        stg = c % NST
        o = (stg % SPS) * STAGE
        for i in range(2):
            a(f"ds_read_b128 {v(b + 4*i, 4)}, v{20 + stg//SPS} offset:{o + 1024*i}")
    def hsum(c):
        b = BUF[c & 1]
        for i in range(8):
            t = 48 + 2 * (i & 1)
            unpack(a, t, b + i)
            a(f"v_add_f32 v{24 + 2*(i & 3)}, v{24 + 2*(i & 3)}, v{t}")
            a(f"v_add_f32 v{25 + 2*(i & 3)}, v{25 + 2*(i & 3)}, v{t+1}")
    BD = 104
    roff = [None, 0, 1024, 2048, 2080]
    CBASE, UBASE = T4, T5
    a(f"s_mul_i32 s{CBASE}, s{MAT}, {CONV_CH}")
    a(f"s_add_u32 s{CBASE}, s{CBASE}, {CONV0}")
    a(f"s_add_u32 s{UBASE}, s{CBASE}, {4 * CPITCH}")
    a(f"v_add_u32 v15, s{CBASE}, v9")
    woff = [0, 1024, 2048, 3072, 3104]
    EE = 144
    def build(r):
        D = BD + 8 * r
        E_ = EE + 12 * (r & 1)
        a(f"ds_write_b128 v15, {v(D,4)} offset:{woff[r]}")
        for p in range(4):
            a(f"v_alignbit_b32 v{E_+p}, v{D+p+1}, v{D+p}, 16")
        for p in range(4):
            a(f"v_mov_b32 v{E_+4+p}, v{D+p+1}")
        for p in range(4):
            a(f"v_alignbit_b32 v{E_+8+p}, v{D+p+2}, v{D+p+1}, 16")
        for sidx in range(3):
            a(f"ds_write_b128 v15, {v(E_+4*sidx,4)} offset:{woff[r] + (sidx+1)*CPITCH}")
    hops = []
    for c in range(PRO0): hops += [("d", c)] * 6
    nxt_d = PRO0
    def hwait(key):
        last = max(n for n, o in enumerate(hops) if o == key)
        return len(hops) - 1 - last
    KC = int(E("KC", "11"))
    BC = 99
    a(f"s_waitcnt vmcnt({hwait(('d', 0))})")
    a("s_barrier")
    a.stamp(2)
    for c in range(14):
        hreads(c)
        lim = min(13, c + PRO if c >= int(E("CATCH", "1")) else c + PRO0)
        while nxt_d <= lim:
            dma(nxt_d); hops += [("d", nxt_d)] * 6; nxt_d += 1
        if c == KC:
            a(f"s_lshl_b32 s{T2}, s2, 9")
            a(f"s_add_u32 s{T2}, s{T2}, {PFLAG}")
            a("v_and_b32 v17, 31, v1")
            a("v_lshlrev_b32 v17, 2, v17")
            a(f"buffer_load_dwordx4 {v(BD,4)}, v12, s[{SC}:{SC+3}], 0 offen")
            a(f"buffer_load_dwordx2 {v(BD+4,2)}, v13, s[{SC}:{SC+3}], 0 offen")
            for r in range(1, 5):
                a(f"buffer_load_dwordx4 {v(BD+8*r,4)}, v14, s[{SC}:{SC+3}], 0 offen offset:{roff[r]}")
                a(f"buffer_load_dwordx2 {v(BD+8*r+4,2)}, v14, s[{SC}:{SC+3}], 0 offen offset:{roff[r]+16}")
            hops += ["k"] * 10
            srd(a, SA, WD, 1792 * 896)
            a(f"s_mul_i32 s{T0}, s2, 7168")
            a(f"s_lshl_b32 s{T1}, s{HW}, 11")
            a(f"s_add_u32 s{T0}, s{T0}, s{T1}")
            a(f"buffer_load_dwordx4 v[52:55], v9, s[{SA}:{SA+3}], s{T0} offen")
            a(f"buffer_load_dwordx4 v[52:55], v9, s[{SA}:{SA+3}], s{T0} offen offset:1024")
            hops += ["p"] * 2
        if c == int(E("PMC", "13")):
            a(f"buffer_load_dword v16, v17, s[28:31], s{T2} offen sc1")
            hops += ["pm"]
        if c > 0:
            hsum(c - 1)
        if BC <= c < BC + 5 and not E('NOBUILD'):
            assert BC > KC + PRO
            build(c - BC)
        if c < 13:
            a(f"s_waitcnt vmcnt({hwait(('d', c + 1))}) lgkmcnt(0)")
            a("s_barrier")
        else:
            a("s_waitcnt lgkmcnt(0)")
    def urev_try():
        sk = a.new("k_urs")
        a("v_cmp_ne_u32 vcc, 1, v16")
        a(f"s_mov_b32 s{MX}, 0")
        a("s_nop 2")
        a("s_cmp_lg_u64 vcc, 0")
        a(f"s_cbranch_scc1 {sk}")
        a(f"s_add_u32 s{T0}, s{KROW}, {UREV_OFF}")
        a(f"s_add_u32 s{SC}, s{WS}, s{T0}")
        a(f"s_addc_u32 s{SC+1}, s{WS+1}, 0")
        a(f"s_and_b32 s{SC+1}, s{SC+1}, 0xffff")
        a(f"s_movk_i32 s{SC+2}, 4096")
        a(f"s_mov_b32 s{SC+3}, 0x00020000")
        for r in range(5):
            a(f"s_add_u32 m0, s{UBASE}, {r * 1024}")
            a(f"s_movk_i32 s{T0}, {r * 1024}")
            a(f"buffer_load_dwordx4 v9, s[{SC}:{SC+3}], s{T0} offen sc1 lds")
        a(f"s_mov_b32 s{MX}, 1")
        a("v_mov_b32 v2, 1")
        a(f"v_mov_b32 v3, {CNT_U}")
        a("s_mov_b64 exec, 1")
        a("ds_add_u32 v3, v2")
        a("s_mov_b64 exec, -1")
        a.lab(sk)
    hsum(13)
    a.stamp(3)
    a("s_nop 1")
    for i in range(8):
        a(f"v_add_f32_dpp v{24+i}, v{24+i}, v{24+i} row_ror:8 row_mask:0xf bank_mask:0xf")
    for i in range(8):
        a(f"v_mov_b32 v{32+i}, v{24+i}")
    a("s_nop 1")
    for i in range(8):
        a(f"v_permlane16_swap_b32 v{24+i}, v{32+i}")
    a("s_nop 1")
    for i in range(8):
        a(f"v_add_f32 v{24+i}, v{24+i}, v{32+i}")
    for i in range(8):
        a(f"v_mov_b32 v{32+i}, v{24+i}")
    a("s_nop 1")
    for i in range(8):
        a(f"v_permlane32_swap_b32 v{24+i}, v{32+i}")
    a("s_nop 1")
    for i in range(8):
        a(f"v_add_f32 v{24+i}, v{24+i}, v{32+i}")
    a(f"s_lshl_b32 s{T0}, s{HW}, 8")
    a(f"s_add_u32 s{T0}, s{T0}, {A_CS}")
    a(f"v_lshl_add_u32 v2, v1, 5, s{T0}")
    a("s_mov_b64 exec, 0xff")
    a("ds_write_b128 v2, v[24:27]")
    a("ds_write_b128 v2, v[28:31] offset:16")
    a("s_mov_b64 exec, -1")
    a("s_waitcnt lgkmcnt(0)")
    a("s_barrier")
    a.stamp(4)

    a(f"s_setprio {int(E('CPRIO', '1'))}")
    lb = a.new("k_kw")
    a(f"s_waitcnt vmcnt({hwait('pm')})")
    urev_try()
    a(f"s_cmp_eq_u32 s{MX}, 1")
    a(f"s_cbranch_scc1 {lb}")
    a(f"buffer_load_dword v16, v17, s[28:31], s{T2} offen sc1")
    a("s_waitcnt vmcnt(1)")
    a.lab(lb)
    a("s_waitcnt vmcnt(5)")
    a.stamp(11)
    for r in range(5):
        build(r)
        if r in (1, 3):
            lb = a.new("k_mid")
            a(f"s_cmp_eq_u32 s{MX}, 1")
            a(f"s_cbranch_scc1 {lb}")
            a("s_waitcnt vmcnt(0)")
            urev_try()
            a(f"s_cmp_eq_u32 s{MX}, 1")
            a(f"s_cbranch_scc1 {lb}")
            a(f"buffer_load_dword v16, v17, s[28:31], s{T2} offen sc1")
            a.lab(lb)
            a("s_waitcnt lgkmcnt(0)")
        elif r < 4: a("s_waitcnt lgkmcnt(4)")
    a.stamp(12)
    lp, ok = a.new("k_ppl"), a.new("k_ppk")
    a.lab(lp)
    a(f"s_cmp_eq_u32 s{MX}, 1")
    a(f"s_cbranch_scc1 {ok}")
    a("s_waitcnt vmcnt(0)")
    urev_try()
    a(f"s_cmp_eq_u32 s{MX}, 1")
    a(f"s_cbranch_scc1 {ok}")
    a("s_sleep 4")
    a(f"buffer_load_dword v16, v17, s[28:31], s{T2} offen sc1")
    a(f"s_branch {lp}")
    a.lab(ok)
    a.stamp(5)
    a("v_and_b32 v2, 15, v1")
    a("v_lshrrev_b32 v3, 4, v1")
    a("v_lshl_add_u32 v4, v3, 3, v2")
    a("v_add_u32 v4, 1, v4")
    a("v_and_b32 v5, 3, v4")
    a(f"v_mul_u32_u24 v5, {CPITCH}, v5")
    a("v_lshrrev_b32 v4, 2, v4")
    a("v_lshl_add_u32 v5, v4, 3, v5")
    a(f"v_add_u32 v22, s{CBASE}, v5")
    a("v_lshlrev_b32 v4, 5, v2")
    a("v_sub_u32 v4, 480, v4")
    a("v_lshl_add_u32 v4, v3, 4, v4")
    a(f"v_add_u32 v23, s{UBASE}, v4")
    a("v_lshlrev_b32 v4, 5, v2")
    a("v_lshl_add_u32 v8, v3, 3, v4")
    a("v_sub_u32 v5, 504, v8")
    a(f"v_add_u32 v19, s{UBASE}, v5")
    a(f"s_add_u32 s{KROW}, s{KROW}, {Y2_OFF}")
    a(f"s_cmp_eq_u32 s{MAT}, 0")
    a(f"s_cselect_b32 s{T0}, 16, 0")
    a(f"s_lshl_b32 s{T6}, s{T6}, s{T0}")
    a(f"s_and_b32 s{T6}, s{T6}, 0xffff0000")
    a("s_waitcnt vmcnt(0) lgkmcnt(0)")
    a.stamp(6)
    a(f"s_and_b32 s{T0}, s{HW}, 1")
    a(f"s_cmp_eq_u32 s{T0}, 1")
    a("s_cbranch_scc1 k_conv1")
    def conv_body(tiles):
        amax = max(tiles)
        SET = [(40, 72), (104, 136)]
        def rd(c0i):
            Tb, Hb = SET[c0i & 1]
            L = []
            for k in range(amax + 1):
                L.append(f"ds_read_b64 {v(Tb+4*k,2)}, v22 offset:{64*c0i + 512*k}")
                L.append(f"ds_read_b64 {v(Tb+4*k+2,2)}, v22 offset:{64*c0i + 512*k + 8}")
                L.append(f"ds_read_b128 {v(Hb+4*k,4)}, v23 offset:{64*c0i + 512*(7-k)}")
            return L
        for x in rd(0): a(x)
        for c0i in range(int(E('NC0', '8'))):
            Tb, Hb = SET[c0i & 1]
            a("s_waitcnt lgkmcnt(0)")
            nxt = rd(c0i + 1) if c0i < int(E('NC0', '8')) - 1 else []
            mf = []
            lists = [[(bi, aa, b - aa) for aa in range(b + 1)] for bi, b in enumerate(tiles)]
            while any(lists):
                for l_ in lists:
                    if l_: mf.append(l_.pop(0))
            seen = set()
            for n, (bi, aa, m) in enumerate(mf):
                acc = 24 + 4 * bi
                cc = "0" if (c0i == 0 and bi not in seen) else v(acc, 4)
                seen.add(bi)
                a(f"v_mfma_f32_16x16x32_bf16 {v(acc,4)}, {v(Tb+4*aa,4)}, {v(Hb+4*m,4)}, {cc}")
                for _ in range(2):
                    if nxt: a(nxt.pop(0))
            assert not nxt
        for bi, b in enumerate(tiles):
            a(f"ds_read_b64 {v(40+2*bi,2)}, v19 offset:{512*(7-b)}")
        a("s_waitcnt lgkmcnt(0)")
        a("s_nop 4")
        for bi, b in enumerate(tiles):
            acc = 24 + 4 * bi
            K0, K1 = 40 + 2 * bi, 41 + 2 * bi
            T = 48 + 8 * bi
            a(f"v_and_b32 v{T+0}, 0xffff0000, v{K1}")
            a(f"v_lshlrev_b32 v{T+1}, 16, v{K1}")
            a(f"v_and_b32 v{T+2}, 0xffff0000, v{K0}")
            a(f"v_lshlrev_b32 v{T+3}, 16, v{K0}")
            for e in range(4):
                a(f"v_fma_f32 v{T+e}, s{T6}, v{T+e}, v{acc+e}")
            a(f"v_cvt_pk_bf16_f32 v{T+4}, v{T+0}, v{T+1}")
            a(f"v_cvt_pk_bf16_f32 v{T+5}, v{T+2}, v{T+3}")
            a(f"buffer_store_dwordx2 {v(T+4,2)}, v8, s[28:31], s{KROW} offen offset:{512*b} sc1")
    conv_body([0, 3, 4, 7])
    a("s_branch k_conv_done")
    a.lab("k_conv1")
    conv_body([1, 2, 5, 6])
    a.lab("k_conv_done")
    a.stamp(7)
    a(f"s_lshr_b32 s{T0}, s2, 5")
    a(f"s_lshl_b32 s{T0}, s{T0}, 12")
    a(f"s_and_b32 s{T1}, s2, 31")
    a(f"s_lshl_b32 s{T1}, s{T1}, 2")
    a(f"s_add_u32 s{T0}, s{T0}, s{T1}")
    a(f"s_add_u32 s{T0}, s{T0}, {YFLAG}")
    a("v_lshrrev_b32 v5, 3, v1")
    a(f"v_mul_u32_u24 v5, {56*512}, v5")
    a("v_and_b32 v6, 7, v1")
    a("v_lshl_add_u32 v5, v6, 9, v5")
    a("s_waitcnt vmcnt(0)")
    a.stamp(8)
    arrive_publish(a, CNT_Y, 4, T0, 5, 32)
    a("v_lshrrev_b32 v6, 3, v1")
    a("v_and_b32 v7, 7, v1")
    a("v_lshlrev_b32 v5, 4, v7")
    a("v_lshl_add_u32 v5, v6, 12, v5")
    a(f"s_lshl_b32 s{T1}, s{CB}, 18")
    a(f"s_lshl_b32 s{T2}, s{TB}, 7")
    a(f"s_add_u32 s{T1}, s{T1}, s{T2}")
    a(f"s_lshl_b32 s{T2}, s{HW}, 16")
    a(f"s_add_u32 s{T1}, s{T1}, s{T2}")
    a(f"s_add_u32 s{T1}, s{T1}, {Y2_OFF}")
    a(f"s_add_u32 s{T2}, s{T1}, {8*4096}")
    a(f"s_lshl_b32 s{T0}, s{HW}, 1")
    a(f"v_xor_b32 v8, s{T0}, v7")
    a("v_lshlrev_b32 v8, 4, v8")
    a("v_lshl_add_u32 v8, v7, 10, v8")
    a("v_lshl_add_u32 v8, v6, 1, v8")
    a(f"v_add_u32 v8, {Y2S}, v8")
    a("v_xor_b32 v9, 16, v8")
    a(f"s_lshl_b32 s{T0}, s2, 9")
    a(f"s_lshl_b32 s{T4}, s{HW}, 5")
    a(f"s_add_u32 s{T0}, s{T0}, s{T4}")
    a(f"s_add_u32 s{T0}, s{T0}, {YFLAG}")
    poll(a, T0, 8, sleep=8)
    a.stamp(9)
    a(f"buffer_load_dwordx4 v[24:27], v5, s[28:31], s{T1} offen sc1")
    a(f"buffer_load_dwordx4 v[28:31], v5, s[28:31], s{T2} offen sc1")
    for it in range(2):
        a(f"s_waitcnt vmcnt({1-it})")
        for e in range(8):
            op = "ds_write_b16_d16_hi" if e & 1 else "ds_write_b16"
            a(f"{op} v{8+it}, v{24 + 4*it + e//2} offset:{e*128}")
    lb = a.new("k_nost")
    a("s_cmp_lg_u32 s32, 8")
    a(f"s_cbranch_scc1 {lb}")
    a(f"s_lshl_b32 s{T0}, s2, 9")
    a(f"s_and_b32 s{T1}, s{TB}, 3")
    a(f"s_lshl_b32 s{T1}, s{T1}, 4")
    a(f"s_add_u32 s{T0}, s{T0}, s{T1}")
    a(f"s_add_u32 s{T0}, s{T0}, {HFLAG}")
    poll(a, T0, 4, sleep=8)
    a("v_lshlrev_b32 v7, 3, v1")
    a(f"s_lshl_b32 s{T2}, s{TB}, 9")
    a(f"s_add_u32 s{T2}, s{T2}, {STATS_OFF}")
    a(f"buffer_load_dwordx2 v[24:25], v7, s[28:31], s{T2} offen sc1")
    a(f"v_add_u32 v7, {STS}, v7")
    a("s_waitcnt vmcnt(0)")
    a("ds_write_b64 v7, v[24:25]")
    a.lab(lb)
    a.stamp(10)
    a("s_waitcnt lgkmcnt(0)")
    a("s_barrier")
    a.fin()
    a("s_endpgm")

    a.lab("k_final")
    a.role = "f"
    a.stamp(11)
    a("s_waitcnt vmcnt(0) lgkmcnt(0)")
    a("s_barrier")
    a.stamp(12)
    a("v_lshrrev_b32 v2, 3, v0")
    a("v_and_b32 v3, 7, v0")
    a("v_mul_u32_u24 v4, 272, v2")
    a("v_lshl_add_u32 v4, v3, 5, v4")
    a(f"v_add_u32 v5, {3*PART}, v4")
    a(f"v_add_u32 v8, {6*PART}, v4")
    a("v_lshlrev_b32 v7, 3, v2")
    a(f"v_add_u32 v7, {STS}, v7")
    a("ds_read_b64 v[18:19], v7")
    PR = [24, 32, 40, 48, 96, 104, 112, 120]
    for w in range(8):
        ad = (4, 5, 8)[w // 3]
        for hh in range(2):
            a(f"ds_read_b128 {v(PR[w] + 4*hh, 4)}, v{ad} offset:{(w % 3) * PART + 16*hh}")
        if w == 5: a("s_waitcnt lgkmcnt(8)")
    a("v_lshrrev_b32 v6, 3, v2")
    a("v_xor_b32 v6, v6, v3")
    a("v_lshlrev_b32 v6, 4, v6")
    a("v_lshl_add_u32 v6, v2, 7, v6")
    a(f"v_add_u32 v6, {Y2S}, v6")
    a("ds_read_b128 v[56:59], v6")
    srd(a, SB, OUT, 2048 * 896)
    X, XN, Y = 64, 72, 80
    for i in range(4):
        unpack(a, X + 2 * i, 128 + i)
    a("v_rcp_f32 v21, v19")
    for e in range(8):
        a(f"v_sub_f32 v{XN+e}, v{X+e}, v18")
    a("v_mul_f32 v22, v21, v21")
    for e in range(8):
        a(f"v_mul_f32 v{XN+e}, v{XN+e}, v21")
    a("s_waitcnt lgkmcnt(0)")
    for (d, s_) in ((0, 1), (2, 3), (4, 5), (6, 7), (0, 2), (4, 6), (0, 4)):
        for i in range(0, 8, 2):
            a(f"v_pk_add_f32 {v(PR[d]+i,2)}, {v(PR[d]+i,2)}, {v(PR[s_]+i,2)}")
    for e in range(8):
        a(f"v_mul_f32 v{24+e}, v{24+e}, v22")
    for e in range(8):
        a(f"v_mul_f32 v{32+e}, 0xbfb8aa3b, v{24+e}")
    for e in range(8):
        a(f"v_exp_f32 v{32+e}, v{32+e}")
    for i in range(4):
        unpack(a, Y + 2 * i, 56 + i)
    for e in range(8):
        a(f"v_add_f32 v{32+e}, 1.0, v{32+e}")
    for e in range(8):
        a(f"v_rcp_f32 v{32+e}, v{32+e}")
    for e in range(8):
        a(f"v_mul_f32 v{XN+e}, v{XN+e}, v{Y+e}")
    for e in range(8):
        a(f"v_mul_f32 v{24+e}, v{24+e}, v{32+e}")
    for e in range(8):
        a(f"v_fma_f32 v{24+e}, v{XN+e}, v{24+e}, v{X+e}")
    for i in range(4):
        a(f"v_cvt_pk_bf16_f32 v{88+i}, v{24+2*i}, v{24+2*i+1}")
    for _ in range(int(E("ENDSLEEP", "0"))): a("s_sleep 32")
    if E("TGLOB"):
        a("v_mov_b32 v2, 0")
        a(f"global_load_dword v3, v2, s[{DBG}:{DBG+1}] offset:128 sc1")
        a("s_waitcnt vmcnt(0)")
        a("v_readfirstlane_b32 s96, v3")
        a("s_nop 3")
        a("s_not_b32 s96, s96")
    if E("TFIX"):
        lp = a.new("tfix")
        a.lab(lp)
        a("s_memrealtime s[98:99]")
        a("s_waitcnt lgkmcnt(0)")
        a("s_sub_u32 s98, s98, s96")
        a(f"s_cmp_lt_u32 s98, {int(E('TFIX'))}")
        a(f"s_cbranch_scc1 {lp}")
    a(f"buffer_store_dwordx4 v[88:91], v14, s[{SB}:{SB+3}], 0 offen {E('OST', 'sc1')}")
    a.fin()
    a("s_endpgm")

    a.lab("k_prep")
    a.role = "p"
    P = R0
    a(f"s_sub_u32 s{P}, s2, 224")
    a("s_waitcnt lgkmcnt(0)")
    srd(a, 28, WS, WS_REC)
    a("s_cmp_ge_u32 s32, 8")
    a("s_cbranch_scc1 k_end")
    a("s_cmp_eq_u32 s32, 7")
    a("s_cbranch_scc1 k_prep_flags")
    srd(a, SA, K_, 2048 * 896)
    srd(a, SB, V_, 2048 * 896)
    srd(a, SC, SK, 448 * 8)
    a(f"s_movk_i32 s{T0}, 1171")
    a(f"v_mul_lo_u32 v2, v0, s{T0}")
    a("v_lshrrev_b32 v2, 16, v2")
    a("v_mul_u32_u24 v3, 56, v2")
    a("v_sub_u32 v3, v0, v3")
    a(f"s_lshl_b32 s{T0}, s{P}, 6")
    a(f"v_lshl_add_u32 v4, v2, 3, s{T0}")
    a(f"s_movk_i32 s{T1}, 896")
    a(f"v_mul_lo_u32 v4, v4, s{T1}")
    a("v_lshl_add_u32 v11, v3, 4, v4")
    a("v_subrev_u32 v10, 2688, v11")
    a("v_add_u32 v12, 3584, v11")
    a("v_lshlrev_b32 v13, 6, v3")
    KR, VR, SW = 16, 60, 92
    PD = E("PDELAY", "1") == "1"
    for i in range(4):
        a(f"buffer_load_dwordx4 {v(SW+4*i,4)}, v13, s[{SC}:{SC+3}], 0 offen offset:{16*i}")
    if PD: a("s_waitcnt vmcnt(0)")
    for r in range(11):
        if r < 3: ad, off = 10, r * 896
        elif r < 7: ad, off = 11, (r - 3) * 896
        else: ad, off = 12, (r - 7) * 896
        a(f"buffer_load_dwordx4 {v(KR+4*r,4)}, v{ad}, s[{SA}:{SA+3}], 0 offen offset:{off}")
    for r in range(8):
        ad, off = (11, r * 896) if r < 4 else (12, (r - 4) * 896)
        a(f"buffer_load_dwordx4 {v(VR+4*r,4)}, v{ad}, s[{SB}:{SB+3}], 0 offen offset:{off}")
    a("v_sub_u32 v5, 7, v2")
    a("v_and_b32 v6, 7, v3")
    a("v_xor_b32 v5, v5, v6")
    a("v_lshlrev_b32 v5, 4, v5")
    a("v_lshl_add_u32 v14, v3, 10, v5")
    a.stamp(2)
    a("s_waitcnt vmcnt(0)")
    a.stamp(3)
    WF, KF, RES, OUT_ = 108, 116, 138, 154
    for p in range(4):
        for e in range(2):
            ch = 2 * p + e
            for tap in range(4):
                src = SW + 2 * ch + (tap >> 1)
                if tap & 1: a(f"v_and_b32 v{WF + 2*tap + e}, 0xffff0000, v{src}")
                else: a(f"v_lshlrev_b32 v{WF + 2*tap + e}, 16, v{src}")
        for r in range(11):
            unpack(a, KF + 2 * r, KR + 4 * r + p)
        for i in range(8):
            a(f"v_pk_mul_f32 {v(RES+2*i,2)}, {v(KF+2*i,2)}, {v(WF+6,2)}")
        for tap in (2, 1, 0):
            for i in range(8):
                a(f"v_pk_fma_f32 {v(RES+2*i,2)}, {v(KF+2*(i+3-tap),2)}, {v(WF+2*tap,2)}, {v(RES+2*i,2)}")
        for r in range(8):
            unpack(a, KF + 2 * r, VR + 4 * r + p)
        for i in range(8):
            a(f"v_pk_mul_f32 {v(RES+2*i,2)}, {v(RES+2*i,2)}, {v(KF+2*i,2)}")
        for e in range(2):
            for d in range(4):
                a(f"v_cvt_pk_bf16_f32 v{OUT_+4*e+d}, v{RES+2*(7-2*d)+e}, v{RES+2*(6-2*d)+e}")
        for e in range(2):
            a(f"ds_write_b128 v14, {v(OUT_+4*e,4)} offset:{(2*p+e)*128}")
    a("s_branch k_prep_bar")
    a.lab("k_prep_flags")
    a("v_mov_b32 v4, 0")
    a("v_mov_b32 v5, 0")
    a("v_mov_b32 v6, 0")
    a("v_mov_b32 v7, 0")
    a("v_lshlrev_b32 v2, 4, v1")
    a(f"s_mul_i32 s{T0}, s{P}, 3584")
    a(f"s_add_u32 s{T0}, s{T0}, {FLAG_OFF}")
    for q in range(4):
        if q == 3: a("s_mov_b32 exec_hi, 0")
        a(f"buffer_store_dwordx4 v[4:7], v2, s[28:31], s{T0} offen offset:{1024*q} sc1")
    a("s_mov_b64 exec, 1")
    a("v_mov_b32 v3, 1")
    a("s_waitcnt vmcnt(0) lgkmcnt(0)")
    a(f"global_atomic_add v4, v3, s[{DBG}:{DBG+1}] sc1")
    a("s_mov_b64 exec, -1")
    a.lab("k_prep_bar")
    a.stamp(4)
    a("s_waitcnt lgkmcnt(0)")
    a("s_barrier")
    a.stamp(5)
    a("v_lshrrev_b32 v2, 3, v0")
    a("v_and_b32 v3, 7, v0")
    a("v_xor_b32 v4, s32, v3")
    a("v_lshlrev_b32 v4, 4, v4")
    a("v_lshl_add_u32 v4, v2, 7, v4")
    a("v_lshlrev_b32 v5, 4, v3")
    a("v_lshl_add_u32 v5, v2, 12, v5")
    for it in range(7):
        a(f"ds_read_b128 {v(32+4*it,4)}, v4 offset:{it*8192}")
    a(f"s_lshl_b32 s{T0}, s{P}, 7")
    a(f"s_sub_u32 s{T0}, {UREV_OFF + 1984*2}, s{T0}")
    for it in range(7):
        a(f"s_waitcnt lgkmcnt({6-it})")
        a(f"buffer_store_dwordx4 {v(32+4*it,4)}, v5, s[28:31], s{T0} offen sc1")
        a(f"s_add_u32 s{T0}, s{T0}, {64*4096}")
    lb, lp = a.new("k_prep_icd"), a.new("k_prep_icl")
    a("s_cmp_lg_u32 s32, 7")
    a(f"s_cbranch_scc1 {lb}")
    a("v_mov_b32 v22, 0")
    a.lab(lp)
    a(f"global_load_dword v23, v22, s[{DBG}:{DBG+1}] sc1")
    a("s_waitcnt vmcnt(0)")
    a(f"v_readfirstlane_b32 s{T0}, v23")
    a("s_nop 3")
    a(f"s_cmp_ge_u32 s{T0}, 32")
    a(f"s_cbranch_scc1 {lb}")
    a("s_sleep 12")
    a(f"s_branch {lp}")
    a.lab(lb)
    a("s_waitcnt vmcnt(0)")
    a("s_barrier")
    a.stamp(6)
    lb = a.new("k_prep_np")
    a("s_cmp_lg_u32 s32, 7")
    a(f"s_cbranch_scc1 {lb}")
    a("v_lshlrev_b32 v4, 9, v1")
    a(f"s_lshl_b32 s{T0}, s{P}, 2")
    a(f"s_add_u32 s{T0}, s{T0}, {PFLAG}")
    a("v_mov_b32 v3, 1")
    for q in range(4):
        if q == 3: a("s_mov_b32 exec_hi, 0")
        a(f"buffer_store_dword v3, v4, s[28:31], s{T0} offen sc1")
        a(f"s_add_u32 s{T0}, s{T0}, {64*512}")
    a("s_mov_b64 exec, -1")
    a.lab(lb)
    a.fin()
    a.lab("k_end")
    a.lab("k_last")
    a("s_endpgm")

HDR = open("cdna_kernels/" + NAME + ".s.ref").read().split("; Override launch")[0]

def main():
    out = sys.argv[1] if len(sys.argv) > 1 else f"cdna_kernels/{NAME}.s"
    a = A()
    kernel(a)
    txt = HDR
    txt += f"; @launch grid=(256,1,1) block=(768,1,1) lds={LDS}\n"
    txt += '.amdgcn_target "amdgcn-amd-amdhsa--gfx950"\n.text\n'
    txt += f".globl {KN}\n.p2align 8\n.type {KN},@function\n" + "\n".join(a.L) + "\n"
    txt += f'''.section .rodata,"a"
.p2align 6
.amdhsa_kernel {KN}
  .amdhsa_next_free_vgpr 168
  .amdhsa_next_free_sgpr 102
  .amdhsa_accum_offset 168
  .amdhsa_group_segment_fixed_size 0
  .amdhsa_kernarg_size 104
  .amdhsa_user_sgpr_count 2
  .amdhsa_user_sgpr_kernarg_segment_ptr 1
  .amdhsa_system_sgpr_workgroup_id_x 1
.end_amdhsa_kernel
'''
    open(out, "w").write(txt)

if __name__ == "__main__":
    main()
```

```python
import sys, os
E = os.environ.get

NAME = "recurrent_scan__ssm_conv_h3__glu_gated_reglu__prompt"
KN = NAME + "_kernel"
H_OFF = 0
UREV_OFF = 0x700000
STATS_OFF = 0x8C0000
FLAG_OFF = 0x8D0000
HFLAG = FLAG_OFF
YFLAG = FLAG_OFF + 128
PFLAG = FLAG_OFF + 256
SFLAG = FLAG_OFF + 384
Y2_OFF = 0x900000
WS_REC = 0x1000000
DIAG = int(E("DIAG", "0"))
DIAG_OFF = 0xC00000

class A:
    def __init__(self):
        self.L = []
        self.n = 0
    def __call__(self, s):
        self.L.append("    " + s)
    def lab(self, s):
        self.L.append(s + ":")
    def new(self, p="L"):
        self.n += 1
        return f"{p}_{self.n}"
    def stamp(self, i, real=False):
        if E("LOOPST") and 5 <= i <= 10 and getattr(self, "post", False): return
        if E("TM"):
            role, idx, mode, wv = E("TM").split(":")
            if getattr(self, "role", "") == role and int(idx) == i:
                lb = self.new("tm")
                self(f"s_cmp_lg_u32 s32, {wv}")
                self(f"s_cbranch_scc1 {lb}")
                self("s_memrealtime s[98:99]")
                self("s_waitcnt lgkmcnt(0)")
                self("s_sub_u32 s98, s98, s96")
                if mode == "min": self("s_sub_u32 s98, 0x10000, s98")
                r = 26 if (role == "g" and i <= 4) else 2
                self(f"v_mov_b32 v{r}, 0")
                self(f"v_mov_b32 v{r+1}, s98")
                self("s_mov_b64 exec, 1")
                self(f"global_atomic_umax v{r}, v{r+1}, s[24:25] offset:128 sc1")
                self("s_mov_b64 exec, -1")
                self.lab(lb)
        if E("TP"):
            role, idx, T = E("TP").split(":")
            if getattr(self, "role", "") == role and int(idx) == i:
                lp = self.new("tprobe")
                self.lab(lp)
                self("s_memrealtime s[98:99]")
                self("s_waitcnt lgkmcnt(0)")
                self("s_sub_u32 s98, s98, s96")
                self(f"s_cmp_lt_u32 s98, {T}")
                self(f"s_cbranch_scc1 {lp}")
        if E("LOOPST") and 5 <= i <= 10 and getattr(self, "post", False): return
        if DIAG:
            self(f"s_memrealtime s[{60+2*i}:{61+2*i}]" if (real or DIAG == 2) else f"s_memtime s[{60+2*i}:{61+2*i}]")
    def fin(self, vt=160):
        if DIAG:
            self.stamp(13)
            self("s_waitcnt vmcnt(0)")
            self.stamp(14)
            self.stamp(15, True)
            self("s_waitcnt lgkmcnt(0)")
            self("s_lshl_b32 s33, s2, 4")
            self("s_add_u32 s33, s33, s32")
            self("s_lshl_b32 s33, s33, 7")
            self(f"s_add_u32 s33, s33, {DIAG_OFF}")
            self(f"v_mov_b32 v{vt}, 0")
            for i in range(16):
                self(f"v_mov_b32 v{vt+1}, s{60+2*i}")
                self(f"buffer_store_dword v{vt+1}, v{vt}, s[28:31], s33 offen offset:{4*i}")

def v(a, n=1):
    return f"v{a}" if n == 1 else f"v[{a}:{a+n-1}]"

def srd(a, dst, lo, nrec):
    a(f"s_mov_b32 s{dst}, s{lo}")
    a(f"s_and_b32 s{dst+1}, s{lo+1}, 0xffff")
    a(f"s_mov_b32 s{dst+2}, {nrec}")
    a(f"s_mov_b32 s{dst+3}, 0x00020000")

def bf16r(a, dst, src):
    a(f"v_cvt_pk_bf16_f32 v{dst}, v{src}, v{src}")
    a(f"v_lshlrev_b32 v{dst}, 16, v{dst}")

def unpack(a, dst, src):
    a(f"v_lshlrev_b32 v{dst}, 16, v{src}")
    a(f"v_and_b32 v{dst+1}, 0xffff0000, v{src}")

STAGE = 24576
NST = 4
SPS = 2
RING_D = 6
RING = RING_D * 2048
PART = 64 * 272
CONV0 = 8 * RING
CPITCH = 4160
CONV_CH = 4 * CPITCH + 5120
A_STATS = CONV0 + 2 * CONV_CH
A_CS = A_STATS + 1024
Y2S = A_CS + 1024
STS = Y2S + 8192
SYNC = STS + 512
CNT_H, CNT_U, CNT_Y, CNT_R = SYNC, SYNC + 4, SYNC + 8, SYNC + 12
LDS = SYNC + 64

Q, K_, V_, SK, SSMK, SSMD, WG, WU, WD, OUT, DBG, WS = 4, 6, 8, 10, 12, 14, 16, 18, 20, 22, 24, 26
SA, SB, SC = 36, 40, 44
RB, FB, XCD, J, TB, CB = 48, 49, 50, 51, 52, 53
R0, R1, R2, R3, R4, R5 = 54, 55, 56, 57, 58, 59
T0, T1, T2 = 33, 34, 35
T3, T4, T5, T6 = 92, 93, 94, 95

def lds_spin(a, word, vt=2, sleep=1, mask=None):
    lp, dn = a.new("spin"), a.new("spun")
    a(f"v_mov_b32 v{vt+1}, {word}")
    a.lab(lp)
    a(f"ds_read_b32 v{vt}, v{vt+1}")
    a("s_waitcnt lgkmcnt(0)")
    a(f"v_readfirstlane_b32 s{T3}, v{vt}")
    a("s_nop 3")
    if mask is None:
        a(f"s_cmp_lg_u32 s{T3}, 0")
    else:
        a(f"s_and_b32 s{T3}, s{T3}, s{mask}")
        a(f"s_cmp_eq_u32 s{T3}, s{mask}")
    a(f"s_cbranch_scc1 {dn}")
    a(f"s_sleep {sleep}")
    a(f"s_branch {lp}")
    a.lab(dn)

def lds_set(a, word, vt=2):
    a(f"v_mov_b32 v{vt}, 1")
    a(f"v_mov_b32 v{vt+1}, {word}")
    a(f"ds_write_b32 v{vt+1}, v{vt}")

def poll(a, soff, nwords, vt=2, sleep=12):
    lp, dn = a.new("poll"), a.new("polled")
    a(f"v_min_u32 v{vt+1}, {nwords-1}, v1")
    a(f"v_lshlrev_b32 v{vt+1}, 2, v{vt+1}")
    a.lab(lp)
    a(f"buffer_load_dword v{vt}, v{vt+1}, s[28:31], s{soff} offen sc1")
    a("s_waitcnt vmcnt(0)")
    a(f"v_cmp_ne_u32 vcc, 1, v{vt}")
    a("s_nop 3")
    a("s_cmp_eq_u64 vcc, 0")
    a(f"s_cbranch_scc1 {dn}")
    a(f"s_sleep {sleep}")
    a(f"s_branch {lp}")
    a.lab(dn)

def arrive_publish(a, cnt, n, soff, voff, lanes, vt=2):
    sk = a.new("nopub")
    a(f"v_mov_b32 v{vt}, 1")
    a(f"v_mov_b32 v{vt+1}, {cnt}")
    a("s_mov_b64 exec, 1")
    a(f"ds_add_rtn_u32 v{vt+2}, v{vt+1}, v{vt}")
    a("s_mov_b64 exec, -1")
    a("s_waitcnt lgkmcnt(0)")
    a(f"v_readfirstlane_b32 s{T3}, v{vt+2}")
    a("s_nop 3")
    a(f"s_cmp_lg_u32 s{T3}, {n-1}")
    a(f"s_cbranch_scc1 {sk}")
    a(f"s_mov_b32 exec_lo, {hex((1 << lanes) - 1)}")
    a("s_mov_b32 exec_hi, 0")
    a(f"buffer_store_dword v{vt}, v{voff}, s[28:31], s{soff} offen sc1")
    a("s_mov_b64 exec, -1")
    a.lab(sk)

def kernel(a):
    a.lab(KN)
    a("s_cmp_ge_u32 s2, 256")
    a("s_cbranch_scc1 k_end")
    a.stamp(0, True)
    a.stamp(1)
    for _ in range(int(E("BEGSLEEP", "0"))): a("s_sleep 32")
    if E("TFIX") or E("TB0") or E("TE1") or E("TP"): a("s_memrealtime s[96:97]")
    a("s_load_dwordx8 s[4:11], s[0:1], 0")
    a("s_load_dwordx4 s[12:15], s[0:1], 32")
    a("s_load_dwordx8 s[16:23], s[0:1], 56")
    a("s_load_dwordx4 s[24:27], s[0:1], 88")
    a("v_and_b32 v1, 63, v0")
    a("v_lshrrev_b32 v2, 6, v0")
    a("s_nop 0")
    a("v_readfirstlane_b32 s32, v2")
    a("s_cmp_ge_u32 s2, 224")
    a("s_cbranch_scc1 k_prep")
    a(f"s_and_b32 s{XCD}, s2, 7")
    a(f"s_lshr_b32 s{J}, s2, 3")
    a(f"s_mul_i32 s{T0}, s{J}, 37")
    a(f"s_lshr_b32 s{T0}, s{T0}, 8")
    a(f"s_mul_i32 s{T1}, s{T0}, 7")
    a(f"s_sub_u32 s{CB}, s{J}, s{T1}")
    a(f"s_and_b32 s{T1}, s{XCD}, 4")
    a(f"s_add_u32 s{RB}, s{T1}, s{T0}")
    a(f"s_and_b32 s{T1}, s{XCD}, 3")
    a(f"s_mul_i32 s{T1}, s{T1}, 7")
    a(f"s_add_u32 s{FB}, s{T1}, s{CB}")
    a(f"s_lshl_b32 s{T1}, s{XCD}, 2")
    a(f"s_add_u32 s{TB}, s{T1}, s{T0}")
    ROWMAP = E("ROWMAP", "0") == "1"
    if ROWMAP:
        a(f"s_mov_b32 s{RB}, s{XCD}")
        a(f"s_mov_b32 s{FB}, s{J}")
    a("s_cmp_ge_u32 s32, 8")
    a("s_cbranch_scc1 k_helper")

    a.role = "g"
    TG, CG = R0, R1
    a(f"s_lshr_b32 s{TG}, s32, 1")
    a(f"s_and_b32 s{CG}, s32, 1")
    AR = 10
    a("v_and_b32 v2, 31, v1")
    a("v_lshrrev_b32 v3, 5, v1")
    a("v_bfe_u32 v4, v1, 2, 2")
    a("v_xor_b32 v4, v3, v4")
    a(f"s_lshl_b32 s{T0}, s32, 5")
    a(f"v_add_u32 v5, s{T0}, v2")
    a("v_lshlrev_b32 v5, 6, v5")
    a(f"v_lshl_add_u32 v{AR+0}, v4, 4, v5")
    a(f"v_xor_b32 v{AR+1}, 0x800, v{AR+0}")
    a(f"v_xor_b32 v{AR+2}, 32, v{AR+0}")
    a(f"v_xor_b32 v{AR+3}, 32, v{AR+1}")
    a("v_bfe_u32 v4, v1, 4, 1")
    a("v_bfe_u32 v5, v1, 2, 2")
    a("v_bfe_u32 v6, v1, 3, 1")
    a("v_lshl_or_b32 v6, v4, 1, v6")
    a(f"s_lshl_b32 s{T0}, s{CG}, 1")
    a(f"v_xor_b32 v6, s{T0}, v6")
    a("v_lshl_add_u32 v7, v3, 3, v5")
    a("v_lshlrev_b32 v7, 7, v7")
    a("v_lshl_add_u32 v7, v4, 12, v7")
    a("v_lshl_add_u32 v7, v6, 5, v7")
    a("v_and_b32 v8, 3, v1")
    a("v_lshl_add_u32 v7, v8, 3, v7")
    a(f"v_add_u32 v{AR+4}, 0x4000, v7")
    a(f"v_xor_b32 v{AR+5}, 32, v{AR+4}")
    for i in range(6):
        a(f"v_add_u32 v{AR+6+i}, {SPS * STAGE}, v{AR+i}")
    a("v_mov_b32 v28, 0")
    a("v_mov_b32 v29, 0")
    a("v_mov_b32 v22, 0")
    a("v_and_b32 v24, 15, v1")
    a("v_lshlrev_b32 v24, 2, v24")
    a(f"s_mov_b32 s{T5}, 0")
    a("s_waitcnt lgkmcnt(0)")
    srd(a, 28, WS, WS_REC)
    HF, YF = R2, R3
    a(f"s_lshl_b32 s{HF}, s{RB}, 9")
    a(f"s_lshl_b32 s{T0}, s{FB}, 2")
    a(f"s_add_u32 s{HF}, s{HF}, s{T0}")
    a(f"s_add_u32 s{HF}, s{HF}, {HFLAG}")
    a(f"s_lshl_b32 s{YF}, s2, 9")
    a(f"s_add_u32 s{YF}, s{YF}, {FLAG_OFF}")
    if E("TGLOB"):
        lb = a.new("tg")
        a("s_cmp_lg_u32 s32, 0")
        a(f"s_cbranch_scc1 {lb}")
        a("s_not_b32 s98, s96")
        a("v_mov_b32 v2, s98")
        a("s_mov_b64 exec, 1")
        a(f"global_atomic_umax v22, v2, s[{DBG}:{DBG+1}] offset:128 sc1")
        a("s_mov_b64 exec, -1")
        a.lab(lb)
    a("s_cmp_eq_u32 s32, 7")
    a("s_cbranch_scc1 k_init")
    if E("GTOUCH", "1") == "1":
        srd(a, SA, Q, 2048 * 896)
        srd(a, SB, WG, 448 * 3584)
        srd(a, SC, WU, 448 * 3584)
        if ROWMAP:
            a(f"s_lshl_b32 s{T0}, s{XCD}, 8")
            a(f"s_mul_i32 s{T1}, s{J}, 10")
            a(f"s_add_u32 s{T0}, s{T0}, s{T1}")
            a(f"s_mul_i32 s{T0}, s{T0}, 896")
            a(f"s_lshl_b32 s{T1}, s32, 7")
            a(f"s_add_u32 s{T0}, s{T0}, s{T1}")
            a("v_mul_u32_u24 v2, 896, v1")
            a("v_mul_u32_u24 v4, 3584, v1")
            a(f"s_lshl_b32 s{T1}, s{J}, 7")
            a(f"s_mul_i32 s{T2}, s32, {64 * 3584}")
            a(f"s_add_u32 s{T1}, s{T1}, s{T2}")
            a(f"buffer_load_dword v7, v4, s[{SB}:{SB+3}], s{T1} offen")
            a(f"buffer_load_dword v8, v4, s[{SC}:{SC+3}], s{T1} offen")
            a("s_mov_b64 exec, 0x3ff")
            a(f"buffer_load_dword v6, v2, s[{SA}:{SA+3}], s{T0} offen")
            a("s_mov_b64 exec, -1")
        else:
            a(f"s_lshr_b32 s{T0}, s{XCD}, 2")
            a(f"s_lshl_b32 s{T0}, s{T0}, 10")
            a(f"s_mul_i32 s{T1}, s{J}, 37")
            a(f"s_add_u32 s{T0}, s{T0}, s{T1}")
            a(f"s_mul_i32 s{T0}, s{T0}, 896")
            a(f"s_lshl_b32 s{T1}, s32, 7")
            a(f"s_add_u32 s{T0}, s{T0}, s{T1}")
            a("v_mul_u32_u24 v2, 896, v1")
            a(f"s_lshl_b32 s{T1}, s{J}, 4")
            a(f"v_add_u32 v3, s{T1}, v1")
            a("v_mul_u32_u24 v4, 0x2493, v3")
            a("v_lshrrev_b32 v4, 16, v4")
            a("v_mul_u32_u24 v5, 7, v4")
            a("v_sub_u32 v5, v3, v5")
            a("v_mul_u32_u24 v4, 3584, v4")
            a("v_lshl_add_u32 v4, v5, 7, v4")
            a(f"s_and_b32 s{T1}, s{XCD}, 3")
            a(f"s_mul_i32 s{T1}, s{T1}, 896")
            a(f"s_mul_i32 s{T2}, s32, {64 * 3584}")
            a(f"s_add_u32 s{T1}, s{T1}, s{T2}")
            TD = int(E("TD", "0"))
            if TD:
                lb = a.new("k_td")
                a(f"s_cmp_lt_u32 s32, {int(E('TS0', '2'))}")
                a(f"s_cbranch_scc1 {lb}")
                a(f"s_sleep {TD}")
                a.lab(lb)
            a("s_mov_b32 exec_hi, 31")
            a(f"buffer_load_dword v6, v2, s[{SA}:{SA+3}], s{T0} offen")
            a("s_mov_b64 exec, 0xffff")
            a(f"buffer_load_dword v7, v4, s[{SB}:{SB+3}], s{T1} offen")
            a(f"buffer_load_dword v8, v4, s[{SC}:{SC+3}], s{T1} offen")
            a("s_mov_b64 exec, -1")
    a("s_branch k_main")
    a.lab("k_init")
    a("v_mov_b32 v2, 0")
    a(f"v_lshl_add_u32 v3, v1, 2, 0")
    a(f"v_add_u32 v3, {SYNC}, v3")
    a("s_mov_b64 exec, 0xff")
    a("ds_write_b32 v3, v2")
    a("s_waitcnt lgkmcnt(0)")
    a("s_mov_b64 exec, -1")
    a(f"global_load_dword v23, v22, s[{DBG}:{DBG+1}] sc1")
    if E("CTOUCH", "0") == "1":
        a("s_getpc_b64 s[98:99]")
        a.lab("k_pc")
        a(f"s_sub_u32 s98, s98, k_pc-{KN}")
        a("s_subb_u32 s99, s99, 0")
        a(f"s_lshl_b32 s{T0}, s{J}, 11")
        a("v_lshlrev_b32 v2, 7, v1")
        a(f"v_add_u32 v2, s{T0}, v2")
        a(f"v_min_u32 v2, k_last-{KN}, v2")
        a("s_mov_b64 exec, 0xffff")
        a("global_load_dword v9, v2, s[98:99]")
        a("s_mov_b64 exec, -1")
    a.lab("k_main")
    a(f"s_cmp_ge_u32 s{FB}, 16")
    a("s_cbranch_scc1 k_nostat")
    srd(a, SA, Q, 2048 * 896)
    a(f"s_lshl_b32 s{T0}, s{RB}, 8")
    a(f"s_lshl_b32 s{T1}, s{FB}, 4")
    a(f"s_add_u32 s{T0}, s{T0}, s{T1}")
    a(f"s_lshl_b32 s{T1}, s32, 1")
    a(f"s_add_u32 s{T0}, s{T0}, s{T1}")
    a("v_lshrrev_b32 v2, 5, v1")
    a(f"v_add_u32 v2, s{T0}, v2")
    a(f"s_movk_i32 s{T1}, 896")
    a(f"v_mul_lo_u32 v3, v2, s{T1}")
    a("v_and_b32 v4, 31, v1")
    a("v_lshl_add_u32 v3, v4, 4, v3")
    for r in range(36, 40): a(f"v_mov_b32 v{r}, 0")
    a(f"buffer_load_dwordx4 v[32:35], v3, s[{SA}:{SA+3}], 0 offen")
    a("s_mov_b32 exec_lo, 0xffffff")
    a("s_mov_b32 exec_hi, 0xffffff")
    a(f"buffer_load_dwordx4 v[36:39], v3, s[{SA}:{SA+3}], 0 offen offset:512")
    a("s_mov_b64 exec, -1")
    for r in range(40, 44): a(f"v_mov_b32 v{r}, 0")
    a("v_lshlrev_b32 v2, 3, v2")
    a("s_waitcnt vmcnt(0)")
    for i in range(8):
        t = 44 + 2 * (i & 1)
        unpack(a, t, 32 + i)
        a(f"v_add_f32 v40, v40, v{t}")
        a(f"v_add_f32 v41, v41, v{t+1}")
        a(f"v_fmac_f32 v42, v{t}, v{t}")
        a(f"v_fmac_f32 v43, v{t+1}, v{t+1}")
    a("v_add_f32 v40, v40, v41")
    a("v_add_f32 v42, v42, v43")
    for dpp in ("quad_perm:[1,0,3,2]", "quad_perm:[2,3,0,1]", "row_ror:4", "row_ror:8"):
        a("s_nop 1")
        a(f"v_add_f32_dpp v40, v40, v40 {dpp} row_mask:0xf bank_mask:0xf")
        a(f"v_add_f32_dpp v42, v42, v42 {dpp} row_mask:0xf bank_mask:0xf")
    a("v_mov_b32 v41, v40")
    a("v_mov_b32 v43, v42")
    a("s_nop 1")
    a("v_permlane16_swap_b32 v40, v41")
    a("v_permlane16_swap_b32 v42, v43")
    a("s_nop 1")
    a("v_add_f32 v40, v40, v41")
    a("v_add_f32 v42, v42, v43")
    a("v_mul_f32 v40, 0x3b124925, v40")
    a("v_mul_f32 v42, 0x3b124925, v42")
    a("v_fma_f32 v42, -v40, v40, v42")
    a("v_max_f32 v42, 0, v42")
    bf16r(a, 44, 40)
    bf16r(a, 42, 42)
    a("v_add_f32 v42, 0x3727c5ac, v42")
    bf16r(a, 42, 42)
    a("v_sqrt_f32 v42, v42")
    a("s_nop 0")
    bf16r(a, 45, 42)
    a(f"s_mov_b32 s{T0}, {STATS_OFF}")
    a("s_mov_b32 exec_lo, 1")
    a("s_mov_b32 exec_hi, 1")
    a(f"buffer_store_dwordx2 v[44:45], v2, s[28:31], s{T0} offen sc1")
    a("s_mov_b64 exec, -1")
    a.lab("k_nostat")

    SETS = {0: 32, 1: 48}
    def reads(c, st_):
        base = SETS[st_]
        stg = c % NST
        R, o = AR + 6 * (stg // SPS), (stg % SPS) * STAGE
        a(f"ds_read_b128 {v(base,4)}, v{R + 2*st_} offset:{o}")
        for ct in range(2):
            for half in range(2):
                a(f"ds_read_b64_tr_b16 {v(base + 8 + 4*ct + 2*half, 2)}, v{R + 4 + ct} offset:{o + st_*2048 + half*512}")
        a(f"ds_read_b128 {v(base+4,4)}, v{R + 2*st_ + 1} offset:{o}")
    def mfmas(c, st_):
        base = SETS[st_]
        first = (2 * c + st_ == 0)
        k = 0
        for tt in range(2):
            for ct in range(2):
                acc = 64 + 16 * (2 * ct + tt)
                cc = "0" if first else v(acc, 16)
                a(f"v_mfma_f32_32x32x16_bf16 {v(acc,16)}, {v(base + 8 + 4*ct, 4)}, {v(base + 4*tt, 4)}, {cc}")
                k += 1
    EARLY = int(E("EARLY", "6"))
    RBASE, WROW = T6, J
    srd(a, SB, WD, 1792 * 896)
    a("v_lshrrev_b32 v2, 3, v1")
    a("v_mul_u32_u24 v2, 896, v2")
    a("v_bfe_u32 v3, v1, 4, 1")
    a("v_lshlrev_b32 v3, 2, v3")
    a("v_and_b32 v4, 7, v1")
    a("v_xor_b32 v3, v3, v4")
    a("v_lshl_add_u32 v2, v3, 4, v2")
    a(f"s_lshl_b32 s{T0}, s{CB}, 7")
    a(f"v_add_u32 v9, s{T0}, v2")
    a(f"s_xor_b32 s{RBASE}, s32, 4")
    a(f"s_mul_i32 s{RBASE}, s{RBASE}, {RING}")
    a(f"s_mul_i32 s{WROW}, s32, {14 * 16 * 896}")
    def early_w(n):
        for i in range(n):
            for hh in range(2):
                a(f"s_add_u32 m0, s{RBASE}, {i * 2048 + hh * 1024}")
                a(f"s_add_u32 s{T0}, s{WROW}, {(16 * i + 8 * hh) * 896}")
                a(f"buffer_load_dwordx4 v9, s[{SB}:{SB+3}], s{T0} offen lds")
    PC = int(E("PC", "11"))
    SC0 = int(E("SC0", "8"))
    SPC = int(E("SPC", "4"))
    SCD = int(E("SCD", "3"))
    def stats_ok(fail):
        a("v_cmp_ne_u32 vcc, 1, v25")
        a("s_nop 3")
        a("s_cmp_lg_u64 vcc, 0")
        a(f"s_cbranch_scc1 {fail}")
    def stats_load():
        a("v_lshlrev_b32 v26, 5, v1")
        a(f"s_lshl_b32 s{T0}, s{RB}, 11")
        a(f"s_add_u32 s{T0}, s{T0}, {STATS_OFF}")
        a(f"buffer_load_dwordx4 v[128:131], v26, s[28:31], s{T0} offen sc1")
        a(f"buffer_load_dwordx4 v[132:135], v26, s[28:31], s{T0} offen offset:16 sc1")
    if E("TB0"):
        lp = a.new("tprobe")
        a.lab(lp)
        a("s_memrealtime s[98:99]")
        a("s_waitcnt lgkmcnt(0)")
        a("s_sub_u32 s98, s98, s96")
        a(f"s_cmp_lt_u32 s98, {int(E('TB0'))}")
        a(f"s_cbranch_scc1 {lp}")
    a("s_barrier")
    a.stamp(2)
    reads(0, 0)
    for c in range(14):
        reads(c, 1)
        a("s_waitcnt lgkmcnt(6)")
        mfmas(c, 0)
        a("s_waitcnt lgkmcnt(0)")
        if c < 13:
            a("s_barrier")
            if E("LOOPST") and c in (1, 3, 5, 7, 9, 11): a.stamp(5 + c // 2)
            reads(c + 1, 0)
        if c == SPC - 1:
            a("s_waitcnt vmcnt(0)")
        if c == SPC:
            lb, lp, ok = a.new("k_sp"), a.new("k_spl"), a.new("k_spk")
            a("s_cmp_lg_u32 s32, 7")
            a(f"s_cbranch_scc1 {lb}")
            a.lab(lp)
            a(f"v_readfirstlane_b32 s{T0}, v23")
            a("s_nop 3")
            a(f"s_cmp_ge_u32 s{T0}, 32")
            a(f"s_cbranch_scc1 {ok}")
            a("s_sleep 8")
            a(f"global_load_dword v23, v22, s[{DBG}:{DBG+1}] sc1")
            a("s_waitcnt vmcnt(0)")
            a(f"s_branch {lp}")
            a.lab(ok)
            a(f"s_cmp_ge_u32 s{FB}, 16")
            a(f"s_cbranch_scc1 {lb}")
            if ROWMAP:
                a(f"s_add_u32 s{T0}, s{HF}, {SFLAG - HFLAG}")
                a("v_lshlrev_b32 v26, 12, v1")
            else:
                a(f"s_and_b32 s{T1}, s{RB}, 3")
                a(f"s_mul_i32 s{T1}, s{T1}, 56")
                a(f"s_and_b32 s{T0}, s{RB}, 4")
                a(f"s_add_u32 s{T0}, s{T0}, s{T1}")
                a(f"s_lshl_b32 s{T0}, s{T0}, 9")
                a(f"s_lshl_b32 s{T1}, s{FB}, 2")
                a(f"s_add_u32 s{T0}, s{T0}, s{T1}")
                a(f"s_add_u32 s{T0}, s{T0}, {SFLAG}")
                a("v_lshrrev_b32 v26, 2, v1")
                a("v_lshlrev_b32 v26, 12, v26")
                a("v_and_b32 v27, 3, v1")
                a("v_lshl_add_u32 v26, v27, 9, v26")
            a("v_mov_b32 v27, 1")
            a("s_mov_b32 exec_lo, 0xfffffff")
            a("s_mov_b32 exec_hi, 0")
            a(f"buffer_store_dword v27, v26, s[28:31], s{T0} offen sc1")
            a("s_mov_b64 exec, -1")
            a.lab(lb)
        if c == SC0:
            lb = a.new("k_s0")
            a("s_cmp_lg_u32 s32, 7")
            a(f"s_cbranch_scc1 {lb}")
            a("s_waitcnt vmcnt(0)")
            a(f"buffer_load_dword v25, v24, s[28:31], s{YF} offen offset:384 sc1")
            a.lab(lb)
        if c in (SC0 + 2, SC0 + 4):
            lb, rt = a.new("k_s1"), a.new("k_s1r")
            a("s_cmp_lg_u32 s32, 7")
            a(f"s_cbranch_scc1 {lb}")
            a(f"s_cmp_eq_u32 s{T5}, 1")
            a(f"s_cbranch_scc1 {lb}")
            a("s_waitcnt vmcnt(0)")
            stats_ok(rt)
            stats_load()
            a(f"s_mov_b32 s{T5}, 1")
            a(f"s_branch {lb}")
            a.lab(rt)
            a(f"buffer_load_dword v25, v24, s[28:31], s{YF} offen offset:384 sc1")
            a.lab(lb)
        if c == int(E('TKC', '-1')):
            lb = a.new("k_notk")
            a("s_cmp_lg_u32 s32, 6")
            a(f"s_cbranch_scc1 {lb}")
            srd(a, SA, SSMK, 448 * 4096)
            a("v_lshlrev_b32 v31, 7, v1")
            a(f"s_lshl_b32 s{T0}, s2, 13")
            a(f"buffer_load_dword v31, v31, s[{SA}:{SA+3}], s{T0} offen")
            a.lab(lb)
        if EARLY and c in (10, 11, 12):
            pair = {10: 0, 11: 1, 12: 2}[c]
            lb = a.new("k_noew")
            a(f"s_cmp_lg_u32 s{TG}, {pair}")
            a(f"s_cbranch_scc1 {lb}")
            early_w(EARLY)
            a.lab(lb)
        WT0 = int(E("WT0", "-99"))
        if WT0 <= c < WT0 + 7:
            lb = a.new("k_nowt")
            a(f"s_cmp_lg_u32 s32, {c - WT0}")
            a(f"s_cbranch_scc1 {lb}")
            srd(a, SA, WD, 1792 * 896)
            a("v_lshlrev_b32 v31, 7, v1")
            a(f"s_mul_i32 s{T0}, s{J}, {448 * 128}")
            a(f"s_add_u32 s{T0}, s{T0}, {(c - WT0) * 8192}")
            a(f"buffer_load_dword v31, v31, s[{SA}:{SA+3}], s{T0} offen")
            a.lab(lb)
        if c == int(E("KVT", "-1")):
            lb = a.new("k_nokv")
            a("s_cmp_lg_u32 s32, 5")
            a(f"s_cbranch_scc1 {lb}")
            srd(a, SA, K_, 2048 * 896)
            srd(a, SB, V_, 2048 * 896)
            a("v_lshlrev_b32 v31, 7, v1")
            a(f"s_lshl_b32 s{T0}, s2, 13")
            a(f"buffer_load_dword v30, v31, s[{SA}:{SA+3}], s{T0} offen")
            a(f"buffer_load_dword v31, v31, s[{SB}:{SB+3}], s{T0} offen")
            a.lab(lb)
        mfmas(c, 1)
    a.stamp(3)
    a.post = True
    if E("EPRIO", "1") == "1": a("s_setprio 2")
    srd(a, SB, WD, 1792 * 896)
    a("v_lshlrev_b32 v10, 4, v1")
    a("v_lshrrev_b32 v2, 3, v1")
    a("v_mul_u32_u24 v2, 896, v2")
    a("v_bfe_u32 v3, v1, 4, 1")
    a("v_lshlrev_b32 v3, 2, v3")
    a("v_and_b32 v4, 7, v1")
    a("v_xor_b32 v3, v3, v4")
    a("v_lshl_add_u32 v2, v3, 4, v2")
    a(f"s_lshl_b32 s{T0}, s{CB}, 7")
    a(f"v_add_u32 v11, s{T0}, v2")
    RBASE, WROW, HB0, HB1 = T6, J, R4, R5
    a(f"s_xor_b32 s{RBASE}, s32, 4")
    a(f"s_mul_i32 s{RBASE}, s{RBASE}, {RING}")
    a(f"s_mul_i32 s{WROW}, s32, {14 * 16 * 896}")
    a(f"s_mul_i32 s{HB0}, s{TB}, 448")
    a(f"s_mul_i32 s{T0}, s32, 28")
    a(f"s_add_u32 s{HB0}, s{HB0}, s{T0}")
    a(f"s_lshl_b32 s{HB0}, s{HB0}, 9")
    a(f"s_add_u32 s{HB1}, s{HB0}, {224 * 512}")
    a("v_bfe_u32 v2, v1, 5, 1")
    a("v_bfe_u32 v3, v1, 2, 2")
    a("v_lshl_add_u32 v2, v2, 2, v3")
    a("v_lshlrev_b32 v2, 7, v2")
    a("v_bfe_u32 v3, v1, 4, 1")
    a("v_and_b32 v4, 3, v1")
    a("v_lshlrev_b32 v4, 3, v4")
    a("v_lshl_or_b32 v4, v3, 5, v4")
    a("v_bfe_u32 v3, v1, 3, 1")
    a("v_lshl_or_b32 v4, v3, 6, v4")
    a(f"v_add3_u32 v12, v2, v4, s{RBASE}")
    a("v_xor_b32 v13, 64, v12")
    a("v_and_b32 v2, 31, v1")
    a(f"s_lshl_b32 s{T0}, s32, 5")
    a(f"v_add_u32 v2, s{T0}, v2")
    a("v_lshlrev_b32 v3, 2, v2")
    a(f"v_add_u32 v4, {A_STATS}, v3")
    a("v_mov_b32 v3, v4")
    a("v_lshrrev_b32 v5, 5, v1")
    a("v_lshlrev_b32 v5, 4, v5")
    a(f"s_lshl_b32 s{T0}, s{CG}, 7")
    a(f"s_add_u32 s{T0}, s{T0}, {A_CS}")
    a(f"v_add_u32 v6, s{T0}, v5")
    a("v_lshlrev_b32 v2, 4, v1")
    a("v_xor_b32 v3, 128, v3")
    lb, lp, rt, ok = a.new("k_icd"), a.new("k_icl"), a.new("k_icr"), a.new("k_ick")
    a("s_cmp_lg_u32 s32, 7")
    a(f"s_cbranch_scc1 {lb}")
    a(f"s_cmp_eq_u32 s{T5}, 1")
    a(f"s_cbranch_scc1 {ok}")
    a.lab(lp)
    a("s_waitcnt vmcnt(0)")
    stats_ok(rt)
    stats_load()
    a(f"s_branch {ok}")
    a.lab(rt)
    a("s_sleep 2")
    a(f"buffer_load_dword v25, v24, s[28:31], s{YF} offen offset:384 sc1")
    a(f"s_branch {lp}")
    a.lab(ok)
    a("s_waitcnt vmcnt(0)")
    for i in range(4):
        a(f"v_xor_b32 v{136+i}, 0x80000000, v{128+2*i}")
    a("v_lshlrev_b32 v26, 4, v1")
    a(f"v_add_u32 v26, {A_STATS}, v26")
    a("ds_write_b128 v26, v[136:139]")
    a.lab(lb)
    if E("TE1"):
        lp = a.new("tprobe")
        a.lab(lp)
        a("s_memrealtime s[98:99]")
        a("s_waitcnt lgkmcnt(0)")
        a("s_sub_u32 s98, s98, s96")
        a(f"s_cmp_lt_u32 s98, {int(E('TE1'))}")
        a(f"s_cbranch_scc1 {lp}")
    a("s_waitcnt lgkmcnt(0)")
    a("s_barrier")
    a.stamp(4)
    a("ds_read_b32 v28, v4")
    a("ds_read_b32 v30, v3")
    CSR, CS2 = 128, 32
    for half, base in ((0, CSR), (1, CS2)):
        for ct in range(2):
            for mat in range(2):
                for q in range(2):
                    a(f"ds_read_b128 {v(base + 16*ct + 8*mat + 4*q, 4)}, v6 offset:{mat*512 + half*256 + ct*64 + q*32}")
    a("s_waitcnt lgkmcnt(0)")
    for i in range(0, 32, 2):
        a(f"v_pk_add_f32 {v(CSR+i,2)}, {v(CSR+i,2)}, {v(CS2+i,2)}")
    ops = ["start"]
    WR = [128, 136, 144, 152, 160, 48, 56]
    HB = [16, 24, 32, 40]
    def issue_w(i):
        sl = i % RING_D
        for hh in range(2):
            a(f"s_add_u32 m0, s{RBASE}, {sl * 2048 + hh * 1024}")
            a(f"s_add_u32 s{T0}, s{WROW}, {(16 * i + 8 * hh) * 896}")
            a(f"buffer_load_dwordx4 v11, s[{SB}:{SB+3}], s{T0} offen lds")
            ops.append(("w", i))
    def issue_h(i):
        for tt in range(2):
            a(f"s_add_u32 s{T0}, s{HB0 + tt}, {i * 1024}")
            a(f"buffer_load_dwordx4 {v(HB[i % 4] + 4*tt, 4)}, v10, s[28:31], s{T0} offen sc1")
            ops.append(("h", i))
    def wait_for(*keys):
        last = max(max(n for n, o in enumerate(ops) if o == k) for k in keys)
        return len(ops) - 1 - last
    def treads(i, base):
        sl = i % RING_D
        for dt in range(2):
            for half in range(2):
                a(f"ds_read_b64_tr_b16 {v(base + 4*dt + 2*half, 2)}, v{12 + dt} offset:{sl*2048 + half*1024}")
    PRE0 = int(E("PRE0", "4"))
    PREPOS = int(E("PREPOS", "0"))
    if EARLY:
        PRE0 = EARLY
        lb = a.new("k_noew")
        a(f"s_cmp_lg_u32 s{TG}, 3")
        a(f"s_cbranch_scc1 {lb}")
        early_w(EARLY)
        a.lab(lb)
    elif PREPOS == 0:
        for i in range(PRE0):
            issue_w(i)
    for tt in range(2):
        mr = 28 + 2 * tt
        a(f"s_lshl_b32 s{T0}, s{RB}, 3")
        a(f"s_lshl_b32 s{T1}, s{TG}, 1")
        a(f"s_add_u32 s{T0}, s{T0}, s{T1}")
        a(f"s_xor_b32 s{T1}, s{CG}, {tt}")
        a(f"s_add_u32 s{T0}, s{T0}, s{T1}")
        a(f"s_mul_i32 s{T0}, s{T0}, 224")
        a(f"s_lshl_b32 s{T1}, s{FB}, 3")
        a(f"s_add_u32 s{T0}, s{T0}, s{T1}")
        a(f"s_lshl_b32 s{T1}, s{CG}, 2")
        a(f"s_add_u32 s{T0}, s{T0}, s{T1}")
        a(f"s_lshl_b32 s{T0}, s{T0}, 9")
        for ct in range(2):
            acc = 64 + 16 * (2 * ct + tt)
            cs = CSR + 16 * ct
            for i in range(0, 16, 2):
                a(f"v_pk_fma_f32 {v(acc+i,2)}, {v(mr,2)}, {v(cs+i,2)}, {v(acc+i,2)} op_sel:[0,0,0] op_sel_hi:[0,1,1]")
            for i in range(8):
                a(f"v_max_f32 v{acc+i}, 0, v{acc+i}")
            for i in range(4):
                a(f"v_pk_mul_f32 {v(acc+2*i,2)}, {v(acc+2*i,2)}, {v(acc+8+2*i,2)}")
            O = 32 + 4 * (2 * tt + ct)
            for i in range(4):
                a(f"v_cvt_pk_bf16_f32 v{O+i}, v{acc+2*i}, v{acc+2*i+1}")
            a(f"buffer_store_dwordx4 {v(O,4)}, v2, s[28:31], s{T0} offen offset:{ct*1024} sc1")
            if E("DBLST", "0") == "1":
                a(f"buffer_store_dwordx4 {v(O,4)}, v2, s[28:31], s{T0} offen offset:{ct*1024}")
    if PREPOS == 1:
        for i in range(PRE0):
            issue_w(i)
    a.stamp(5)
    a("v_lshlrev_b32 v5, 12, v1")
    a(f"s_waitcnt vmcnt({2 * PRE0 if PREPOS == 1 else 0})")
    a.stamp(6)
    arrive_publish(a, CNT_H, 8, HF, 5, 28)
    a("s_setprio 0")
    if E("GATE", "1") == "1":
        lp, dn = a.new("gate"), a.new("gated")
        a(f"v_mov_b32 v3, {CNT_U}")
        a.lab(lp)
        a("ds_read_b32 v2, v3")
        a("s_waitcnt lgkmcnt(0)")
        a(f"v_readfirstlane_b32 s{T0}, v2")
        a("s_nop 3")
        a(f"s_cmp_eq_u32 s{T0}, 4")
        a(f"s_cbranch_scc1 {dn}")
        a("s_sleep 1")
        a(f"s_branch {lp}")
        a.lab(dn)
    ops.clear(); ops.append("flag")
    PACE = int(E("PACE", "6"))
    nw = PRE0
    while nw < PACE:
        issue_w(nw); nw += 1
    if PREPOS == 1:
        a(f"s_waitcnt vmcnt({2 * (PACE - PRE0)})")
    for i in range(13):
        if i >= PRE0:
            a(f"s_waitcnt vmcnt({wait_for(('w', i))})")
        if i < 7:
            treads(i, WR[i])
        if nw <= 12:
            if nw >= RING_D:
                assert nw - RING_D <= i
                a("s_waitcnt lgkmcnt(0)")
            issue_w(nw); nw += 1
    a.stamp(7)
    lp, dn = a.new("hpoll"), a.new("hpolled")
    a(f"s_mul_i32 s{T4}, s32, 7")
    a(f"s_lshr_b32 s{T4}, s{T4}, 1")
    a(f"s_lshl_b32 s{T4}, s{T4}, 2")
    a(f"s_add_u32 s{T4}, s{T4}, s{YF}")
    a("v_and_b32 v3, 3, v1")
    a("v_lshlrev_b32 v3, 2, v3")
    a.lab(lp)
    a(f"buffer_load_dword v2, v3, s[28:31], s{T4} offen sc1")
    a("s_waitcnt vmcnt(0)")
    a("v_cmp_ne_u32 vcc, 1, v2")
    a("s_nop 3")
    a("s_cmp_eq_u64 vcc, 0")
    a(f"s_cbranch_scc1 {dn}")
    a(f"s_sleep {int(E('HSLEEP', '2'))}")
    a(f"s_branch {lp}")
    a.lab(dn)
    a.stamp(8)
    ops.clear(); ops.append("base")
    for i in range(4):
        issue_h(i)
    for i in range(14):
        a(f"s_waitcnt vmcnt({wait_for(('h', i))})" + (" lgkmcnt(0)" if i in (0, 7, 13) else ""))
        base = WR[i % 7]
        for tt in range(2):
            for dt in range(2):
                acc = 64 + 16 * (2 * dt + tt)
                cc = "0" if i == 0 else v(acc, 16)
                a(f"v_mfma_f32_32x32x16_bf16 {v(acc,16)}, {v(base + 4*dt, 4)}, {v(HB[i % 4] + 4*tt, 4)}, {cc}")
        if i + 4 < 14: issue_h(i + 4)
        if i < 6:
            treads(i + 7, WR[i])
        if i == 0:
            a("s_waitcnt lgkmcnt(0)")
            issue_w(13)
        if i == 8:
            a(f"s_waitcnt vmcnt({min(wait_for(('w', 13)), 63)})")
            treads(13, WR[6])
            a("v_mov_b32 v2, 1")
            a(f"v_mov_b32 v3, {CNT_R}")
            a("s_waitcnt lgkmcnt(0)")
            a("s_mov_b64 exec, 1")
            a("ds_add_u32 v3, v2")
            a("s_mov_b64 exec, -1")
        if i == 9:
            a(f"s_lshl_b32 s{T0}, s{TB}, 6")
            a("v_lshrrev_b32 v2, 3, v0")
            a(f"v_add_u32 v3, s{T0}, v2")
            a(f"s_movk_i32 s{T1}, 896")
            a(f"v_mul_lo_u32 v4, v3, s{T1}")
            a("v_and_b32 v5, 7, v0")
            a("v_lshl_add_u32 v4, v5, 4, v4")
            a(f"s_lshl_b32 s{T0}, s{CB}, 7")
            a(f"v_add_u32 v14, s{T0}, v4")
            srd(a, SA, Q, 2048 * 896)
            a(f"buffer_load_dwordx4 v[128:131], v14, s[{SA}:{SA+3}], 0 offen")
            ops.append("x")
        if i == 6: a.stamp(9)
    a.stamp(10)
    lp, dn = a.new("pwait"), a.new("pwaited")
    a(f"v_mov_b32 v4, {CNT_Y}")
    a.lab(lp)
    a("ds_read_b64 v[2:3], v4")
    a("s_waitcnt lgkmcnt(0)")
    a(f"v_readfirstlane_b32 s{T0}, v2")
    a(f"v_readfirstlane_b32 s{T1}, v3")
    a("s_nop 3")
    a(f"s_lshl_b32 s{T0}, s{T0}, 8")
    a(f"s_add_u32 s{T0}, s{T0}, s{T1}")
    a(f"s_cmp_eq_u32 s{T0}, 0x408")
    a(f"s_cbranch_scc1 {dn}")
    a("s_sleep 1")
    a(f"s_branch {lp}")
    a.lab(dn)
    a("v_and_b32 v2, 31, v1")
    a("v_mul_u32_u24 v2, 272, v2")
    a("v_lshrrev_b32 v3, 5, v1")
    a("v_lshl_add_u32 v2, v3, 4, v2")
    a(f"s_mul_i32 s{T0}, s32, {PART}")
    a(f"v_add_u32 v2, s{T0}, v2")
    for tt in range(2):
        for dt in range(2):
            acc = 64 + 16 * (2 * dt + tt)
            for q in range(4):
                a(f"ds_write_b128 v2, {v(acc + 4*q, 4)} offset:{tt*32*272 + dt*128 + q*32}")
    a("s_branch k_final")

    a.lab("k_helper")
    a.role = "c"
    HW, MAT, MX, MW = R0, R1, R2, R3
    a(f"s_sub_u32 s{HW}, s32, 8")
    a(f"s_lshr_b32 s{MAT}, s{HW}, 1")
    a(f"s_lshl_b32 s{MX}, s{HW}, 12")
    a(f"s_lshl_b32 s{MW}, s{HW}, 11")
    a(f"s_add_u32 s{MW}, s{MW}, 16384")
    a(f"s_lshl_b32 s{T0}, s{RB}, 8")
    a(f"s_lshl_b32 s{T1}, s{HW}, 6")
    a(f"s_add_u32 s{T0}, s{T0}, s{T1}")
    a("v_lshrrev_b32 v2, 2, v1")
    a(f"v_add_u32 v2, s{T0}, v2")
    a(f"s_movk_i32 s{T1}, 896")
    a(f"v_mul_lo_u32 v2, v2, s{T1}")
    a("v_and_b32 v3, 3, v1")
    a("v_bfe_u32 v4, v1, 4, 2")
    a("v_xor_b32 v3, v3, v4")
    a("v_lshl_add_u32 v10, v3, 4, v2")
    a(f"s_and_b32 s{T0}, s{HW}, 1")
    a(f"s_lshl_b32 s{T0}, s{T0}, 4")
    a("v_lshrrev_b32 v2, 3, v1")
    a(f"v_add_u32 v2, s{T0}, v2")
    a(f"s_movk_i32 s{T1}, 3584")
    a(f"v_mul_lo_u32 v2, v2, s{T1}")
    a(f"s_lshl_b32 s{T0}, s{FB}, 7")
    a(f"v_add_u32 v2, s{T0}, v2")
    a("v_bfe_u32 v4, v1, 4, 1")
    a("v_lshlrev_b32 v4, 1, v4")
    a(f"s_lshl_b32 s{T0}, s{MAT}, 2")
    a(f"v_or_b32 v4, s{T0}, v4")
    a("v_and_b32 v3, 7, v1")
    a("v_xor_b32 v5, v3, v4")
    a("v_lshl_add_u32 v11, v5, 4, v2")
    a("s_waitcnt lgkmcnt(0)")
    srd(a, SA, Q, 2048 * 896)
    a(f"s_cmp_eq_u32 s{MAT}, 1")
    a(f"s_cselect_b32 s{SB}, s{WU}, s{WG}")
    a(f"s_cselect_b32 s{SB+1}, s{WU+1}, s{WG+1}")
    a(f"s_and_b32 s{SB+1}, s{SB+1}, 0xffff")
    a(f"s_mov_b32 s{SB+2}, {448 * 3584}")
    a(f"s_mov_b32 s{SB+3}, 0x00020000")
    def dma(c):
        st = c % NST
        for i in range(2):
            a(f"s_add_u32 m0, s{MW}, {st * STAGE + 1024 * i}")
            a(f"s_mov_b32 s{T0}, {(c * 32 + 8 * i) * 3584}")
            a(f"buffer_load_dwordx4 v11, s[{SB}:{SB+3}], s{T0} offen lds")
        for i in range(4):
            a(f"s_add_u32 m0, s{MX}, {st * STAGE + 1024 * i}")
            a(f"s_mov_b32 s{T0}, {64 * c + 14336 * i}")
            a(f"buffer_load_dwordx4 v10, s[{SA}:{SA+3}], s{T0} offen lds")
    PRO = int(E("PRO", "3"))
    PRO0 = int(E("PRO0", "2"))
    for c in range(PRO0):
        dma(c)
    srd(a, 28, WS, WS_REC)
    a("v_lshrrev_b32 v2, 3, v1")
    a("v_lshlrev_b32 v2, 7, v2")
    a("v_lshl_add_u32 v2, v5, 4, v2")
    a(f"v_add_u32 v20, s{MW}, v2")
    a(f"v_add_u32 v21, {SPS * STAGE}, v20")
    for r in range(24, 32):
        a(f"v_mov_b32 v{r}, 0")
    a("v_lshlrev_b32 v9, 4, v1")
    CHN, KROW = R4, R5
    a(f"s_lshl_b32 s{CHN}, s2, 1")
    a(f"s_add_u32 s{CHN}, s{CHN}, s{MAT}")
    a(f"s_lshl_b32 s{KROW}, s{CHN}, 12")
    a(f"s_add_u32 s{SC}, s{SSMK}, s{KROW}")
    a(f"s_addc_u32 s{SC+1}, s{SSMK+1}, 0")
    a(f"s_and_b32 s{SC+1}, s{SC+1}, 0xffff")
    a(f"s_movk_i32 s{SC+2}, 4096")
    a(f"s_mov_b32 s{SC+3}, 0x00020000")
    a(f"s_lshl_b32 s{T0}, s2, 2")
    a(f"s_load_dword s{T6}, s[{SSMD}:{SSMD+1}], s{T0}")
    a("v_subrev_u32 v12, 32, v9")
    a("v_subrev_u32 v13, 16, v9")
    a("v_add_u32 v14, 992, v9")
    BUF = [32, 40]
    def hreads(c):
        b = BUF[c & 1]
        stg = c % NST
        o = (stg % SPS) * STAGE
        for i in range(2):
            a(f"ds_read_b128 {v(b + 4*i, 4)}, v{20 + stg//SPS} offset:{o + 1024*i}")
    def hsum(c):
        b = BUF[c & 1]
        for i in range(8):
            t = 48 + 2 * (i & 1)
            unpack(a, t, b + i)
            a(f"v_add_f32 v{24 + 2*(i & 3)}, v{24 + 2*(i & 3)}, v{t}")
            a(f"v_add_f32 v{25 + 2*(i & 3)}, v{25 + 2*(i & 3)}, v{t+1}")
    BD = 104
    roff = [None, 0, 1024, 2048, 2080]
    CBASE, UBASE = T4, T5
    a(f"s_mul_i32 s{CBASE}, s{MAT}, {CONV_CH}")
    a(f"s_add_u32 s{CBASE}, s{CBASE}, {CONV0}")
    a(f"s_add_u32 s{UBASE}, s{CBASE}, {4 * CPITCH}")
    a(f"v_add_u32 v15, s{CBASE}, v9")
    woff = [0, 1024, 2048, 3072, 3104]
    EE = 144
    def build(r):
        D = BD + 8 * r
        E_ = EE + 12 * (r & 1)
        a(f"ds_write_b128 v15, {v(D,4)} offset:{woff[r]}")
        for p in range(4):
            a(f"v_alignbit_b32 v{E_+p}, v{D+p+1}, v{D+p}, 16")
        for p in range(4):
            a(f"v_mov_b32 v{E_+4+p}, v{D+p+1}")
        for p in range(4):
            a(f"v_alignbit_b32 v{E_+8+p}, v{D+p+2}, v{D+p+1}, 16")
        for sidx in range(3):
            a(f"ds_write_b128 v15, {v(E_+4*sidx,4)} offset:{woff[r] + (sidx+1)*CPITCH}")
    hops = []
    for c in range(PRO0): hops += [("d", c)] * 6
    nxt_d = PRO0
    def hwait(key):
        last = max(n for n, o in enumerate(hops) if o == key)
        return len(hops) - 1 - last
    KC = int(E("KC", "11"))
    BC = 99
    a(f"s_waitcnt vmcnt({hwait(('d', 0))})")
    a("s_barrier")
    a.stamp(2)
    for c in range(14):
        hreads(c)
        lim = min(13, c + PRO if c >= int(E("CATCH", "1")) else c + PRO0)
        while nxt_d <= lim:
            dma(nxt_d); hops += [("d", nxt_d)] * 6; nxt_d += 1
        if c == KC:
            a(f"s_lshl_b32 s{T2}, s2, 9")
            a(f"s_add_u32 s{T2}, s{T2}, {PFLAG}")
            a("v_and_b32 v17, 31, v1")
            a("v_lshlrev_b32 v17, 2, v17")
            a(f"buffer_load_dwordx4 {v(BD,4)}, v12, s[{SC}:{SC+3}], 0 offen")
            a(f"buffer_load_dwordx2 {v(BD+4,2)}, v13, s[{SC}:{SC+3}], 0 offen")
            for r in range(1, 5):
                a(f"buffer_load_dwordx4 {v(BD+8*r,4)}, v14, s[{SC}:{SC+3}], 0 offen offset:{roff[r]}")
                a(f"buffer_load_dwordx2 {v(BD+8*r+4,2)}, v14, s[{SC}:{SC+3}], 0 offen offset:{roff[r]+16}")
            hops += ["k"] * 10
            srd(a, SA, WD, 1792 * 896)
            a(f"s_mul_i32 s{T0}, s2, 7168")
            a(f"s_lshl_b32 s{T1}, s{HW}, 11")
            a(f"s_add_u32 s{T0}, s{T0}, s{T1}")
            a(f"buffer_load_dwordx4 v[52:55], v9, s[{SA}:{SA+3}], s{T0} offen")
            a(f"buffer_load_dwordx4 v[52:55], v9, s[{SA}:{SA+3}], s{T0} offen offset:1024")
            hops += ["p"] * 2
        if c == int(E("PMC", "13")):
            a(f"buffer_load_dword v16, v17, s[28:31], s{T2} offen sc1")
            hops += ["pm"]
        if c > 0:
            hsum(c - 1)
        if BC <= c < BC + 5 and not E('NOBUILD'):
            assert BC > KC + PRO
            build(c - BC)
        if c < 13:
            a(f"s_waitcnt vmcnt({hwait(('d', c + 1))}) lgkmcnt(0)")
            a("s_barrier")
        else:
            a("s_waitcnt lgkmcnt(0)")
    def urev_try():
        sk = a.new("k_urs")
        a("v_cmp_ne_u32 vcc, 1, v16")
        a(f"s_mov_b32 s{MX}, 0")
        a("s_nop 2")
        a("s_cmp_lg_u64 vcc, 0")
        a(f"s_cbranch_scc1 {sk}")
        a(f"s_add_u32 s{T0}, s{KROW}, {UREV_OFF}")
        a(f"s_add_u32 s{SC}, s{WS}, s{T0}")
        a(f"s_addc_u32 s{SC+1}, s{WS+1}, 0")
        a(f"s_and_b32 s{SC+1}, s{SC+1}, 0xffff")
        a(f"s_movk_i32 s{SC+2}, 4096")
        a(f"s_mov_b32 s{SC+3}, 0x00020000")
        for r in range(5):
            a(f"s_add_u32 m0, s{UBASE}, {r * 1024}")
            a(f"s_movk_i32 s{T0}, {r * 1024}")
            a(f"buffer_load_dwordx4 v9, s[{SC}:{SC+3}], s{T0} offen sc1 lds")
        a(f"s_mov_b32 s{MX}, 1")
        a("v_mov_b32 v2, 1")
        a(f"v_mov_b32 v3, {CNT_U}")
        a("s_mov_b64 exec, 1")
        a("ds_add_u32 v3, v2")
        a("s_mov_b64 exec, -1")
        a.lab(sk)
    hsum(13)
    a.stamp(3)
    a("s_nop 1")
    for i in range(8):
        a(f"v_add_f32_dpp v{24+i}, v{24+i}, v{24+i} row_ror:8 row_mask:0xf bank_mask:0xf")
    for i in range(8):
        a(f"v_mov_b32 v{32+i}, v{24+i}")
    a("s_nop 1")
    for i in range(8):
        a(f"v_permlane16_swap_b32 v{24+i}, v{32+i}")
    a("s_nop 1")
    for i in range(8):
        a(f"v_add_f32 v{24+i}, v{24+i}, v{32+i}")
    for i in range(8):
        a(f"v_mov_b32 v{32+i}, v{24+i}")
    a("s_nop 1")
    for i in range(8):
        a(f"v_permlane32_swap_b32 v{24+i}, v{32+i}")
    a("s_nop 1")
    for i in range(8):
        a(f"v_add_f32 v{24+i}, v{24+i}, v{32+i}")
    a(f"s_lshl_b32 s{T0}, s{HW}, 8")
    a(f"s_add_u32 s{T0}, s{T0}, {A_CS}")
    a(f"v_lshl_add_u32 v2, v1, 5, s{T0}")
    a("s_mov_b64 exec, 0xff")
    a("ds_write_b128 v2, v[24:27]")
    a("ds_write_b128 v2, v[28:31] offset:16")
    a("s_mov_b64 exec, -1")
    a("s_waitcnt lgkmcnt(0)")
    a("s_barrier")
    a.stamp(4)

    a(f"s_setprio {int(E('CPRIO', '1'))}")
    lb = a.new("k_kw")
    a(f"s_waitcnt vmcnt({hwait('pm')})")
    urev_try()
    a(f"s_cmp_eq_u32 s{MX}, 1")
    a(f"s_cbranch_scc1 {lb}")
    a(f"buffer_load_dword v16, v17, s[28:31], s{T2} offen sc1")
    a("s_waitcnt vmcnt(1)")
    a.lab(lb)
    a("s_waitcnt vmcnt(5)")
    a.stamp(11)
    for r in range(5):
        build(r)
        if r in (1, 3):
            lb = a.new("k_mid")
            a(f"s_cmp_eq_u32 s{MX}, 1")
            a(f"s_cbranch_scc1 {lb}")
            a("s_waitcnt vmcnt(0)")
            urev_try()
            a(f"s_cmp_eq_u32 s{MX}, 1")
            a(f"s_cbranch_scc1 {lb}")
            a(f"buffer_load_dword v16, v17, s[28:31], s{T2} offen sc1")
            a.lab(lb)
            a("s_waitcnt lgkmcnt(0)")
        elif r < 4: a("s_waitcnt lgkmcnt(4)")
    a.stamp(12)
    lp, ok = a.new("k_ppl"), a.new("k_ppk")
    a.lab(lp)
    a(f"s_cmp_eq_u32 s{MX}, 1")
    a(f"s_cbranch_scc1 {ok}")
    a("s_waitcnt vmcnt(0)")
    urev_try()
    a(f"s_cmp_eq_u32 s{MX}, 1")
    a(f"s_cbranch_scc1 {ok}")
    a("s_sleep 4")
    a(f"buffer_load_dword v16, v17, s[28:31], s{T2} offen sc1")
    a(f"s_branch {lp}")
    a.lab(ok)
    a.stamp(5)
    a("v_and_b32 v2, 15, v1")
    a("v_lshrrev_b32 v3, 4, v1")
    a("v_lshl_add_u32 v4, v3, 3, v2")
    a("v_add_u32 v4, 1, v4")
    a("v_and_b32 v5, 3, v4")
    a(f"v_mul_u32_u24 v5, {CPITCH}, v5")
    a("v_lshrrev_b32 v4, 2, v4")
    a("v_lshl_add_u32 v5, v4, 3, v5")
    a(f"v_add_u32 v22, s{CBASE}, v5")
    a("v_lshlrev_b32 v4, 5, v2")
    a("v_sub_u32 v4, 480, v4")
    a("v_lshl_add_u32 v4, v3, 4, v4")
    a(f"v_add_u32 v23, s{UBASE}, v4")
    a("v_lshlrev_b32 v4, 5, v2")
    a("v_lshl_add_u32 v8, v3, 3, v4")
    a("v_sub_u32 v5, 504, v8")
    a(f"v_add_u32 v19, s{UBASE}, v5")
    a(f"s_add_u32 s{KROW}, s{KROW}, {Y2_OFF}")
    a(f"s_cmp_eq_u32 s{MAT}, 0")
    a(f"s_cselect_b32 s{T0}, 16, 0")
    a(f"s_lshl_b32 s{T6}, s{T6}, s{T0}")
    a(f"s_and_b32 s{T6}, s{T6}, 0xffff0000")
    a("s_waitcnt vmcnt(0) lgkmcnt(0)")
    a.stamp(6)
    a(f"s_and_b32 s{T0}, s{HW}, 1")
    a(f"s_cmp_eq_u32 s{T0}, 1")
    a("s_cbranch_scc1 k_conv1")
    def conv_body(tiles):
        amax = max(tiles)
        SET = [(40, 72), (104, 136)]
        def rd(c0i):
            Tb, Hb = SET[c0i & 1]
            L = []
            for k in range(amax + 1):
                L.append(f"ds_read_b64 {v(Tb+4*k,2)}, v22 offset:{64*c0i + 512*k}")
                L.append(f"ds_read_b64 {v(Tb+4*k+2,2)}, v22 offset:{64*c0i + 512*k + 8}")
                L.append(f"ds_read_b128 {v(Hb+4*k,4)}, v23 offset:{64*c0i + 512*(7-k)}")
            return L
        for x in rd(0): a(x)
        for c0i in range(int(E('NC0', '8'))):
            Tb, Hb = SET[c0i & 1]
            a("s_waitcnt lgkmcnt(0)")
            nxt = rd(c0i + 1) if c0i < int(E('NC0', '8')) - 1 else []
            mf = []
            lists = [[(bi, aa, b - aa) for aa in range(b + 1)] for bi, b in enumerate(tiles)]
            while any(lists):
                for l_ in lists:
                    if l_: mf.append(l_.pop(0))
            seen = set()
            for n, (bi, aa, m) in enumerate(mf):
                acc = 24 + 4 * bi
                cc = "0" if (c0i == 0 and bi not in seen) else v(acc, 4)
                seen.add(bi)
                a(f"v_mfma_f32_16x16x32_bf16 {v(acc,4)}, {v(Tb+4*aa,4)}, {v(Hb+4*m,4)}, {cc}")
                for _ in range(2):
                    if nxt: a(nxt.pop(0))
            assert not nxt
        for bi, b in enumerate(tiles):
            a(f"ds_read_b64 {v(40+2*bi,2)}, v19 offset:{512*(7-b)}")
        a("s_waitcnt lgkmcnt(0)")
        a("s_nop 4")
        for bi, b in enumerate(tiles):
            acc = 24 + 4 * bi
            K0, K1 = 40 + 2 * bi, 41 + 2 * bi
            T = 48 + 8 * bi
            a(f"v_and_b32 v{T+0}, 0xffff0000, v{K1}")
            a(f"v_lshlrev_b32 v{T+1}, 16, v{K1}")
            a(f"v_and_b32 v{T+2}, 0xffff0000, v{K0}")
            a(f"v_lshlrev_b32 v{T+3}, 16, v{K0}")
            for e in range(4):
                a(f"v_fma_f32 v{T+e}, s{T6}, v{T+e}, v{acc+e}")
            a(f"v_cvt_pk_bf16_f32 v{T+4}, v{T+0}, v{T+1}")
            a(f"v_cvt_pk_bf16_f32 v{T+5}, v{T+2}, v{T+3}")
            a(f"buffer_store_dwordx2 {v(T+4,2)}, v8, s[28:31], s{KROW} offen offset:{512*b} sc1")
    conv_body([0, 3, 4, 7])
    a("s_branch k_conv_done")
    a.lab("k_conv1")
    conv_body([1, 2, 5, 6])
    a.lab("k_conv_done")
    a.stamp(7)
    a(f"s_lshr_b32 s{T0}, s2, 5")
    a(f"s_lshl_b32 s{T0}, s{T0}, 12")
    a(f"s_and_b32 s{T1}, s2, 31")
    a(f"s_lshl_b32 s{T1}, s{T1}, 2")
    a(f"s_add_u32 s{T0}, s{T0}, s{T1}")
    a(f"s_add_u32 s{T0}, s{T0}, {YFLAG}")
    a("v_lshrrev_b32 v5, 3, v1")
    a(f"v_mul_u32_u24 v5, {56*512}, v5")
    a("v_and_b32 v6, 7, v1")
    a("v_lshl_add_u32 v5, v6, 9, v5")
    a("s_waitcnt vmcnt(0)")
    a.stamp(8)
    arrive_publish(a, CNT_Y, 4, T0, 5, 32)
    a("v_lshrrev_b32 v6, 3, v1")
    a("v_and_b32 v7, 7, v1")
    a("v_lshlrev_b32 v5, 4, v7")
    a("v_lshl_add_u32 v5, v6, 12, v5")
    a(f"s_lshl_b32 s{T1}, s{CB}, 18")
    a(f"s_lshl_b32 s{T2}, s{TB}, 7")
    a(f"s_add_u32 s{T1}, s{T1}, s{T2}")
    a(f"s_lshl_b32 s{T2}, s{HW}, 16")
    a(f"s_add_u32 s{T1}, s{T1}, s{T2}")
    a(f"s_add_u32 s{T1}, s{T1}, {Y2_OFF}")
    a(f"s_add_u32 s{T2}, s{T1}, {8*4096}")
    a(f"s_lshl_b32 s{T0}, s{HW}, 1")
    a(f"v_xor_b32 v8, s{T0}, v7")
    a("v_lshlrev_b32 v8, 4, v8")
    a("v_lshl_add_u32 v8, v7, 10, v8")
    a("v_lshl_add_u32 v8, v6, 1, v8")
    a(f"v_add_u32 v8, {Y2S}, v8")
    a("v_xor_b32 v9, 16, v8")
    a(f"s_lshl_b32 s{T0}, s2, 9")
    a(f"s_lshl_b32 s{T4}, s{HW}, 5")
    a(f"s_add_u32 s{T0}, s{T0}, s{T4}")
    a(f"s_add_u32 s{T0}, s{T0}, {YFLAG}")
    poll(a, T0, 8, sleep=8)
    a.stamp(9)
    a(f"buffer_load_dwordx4 v[24:27], v5, s[28:31], s{T1} offen sc1")
    a(f"buffer_load_dwordx4 v[28:31], v5, s[28:31], s{T2} offen sc1")
    for it in range(2):
        a(f"s_waitcnt vmcnt({1-it})")
        for e in range(8):
            op = "ds_write_b16_d16_hi" if e & 1 else "ds_write_b16"
            a(f"{op} v{8+it}, v{24 + 4*it + e//2} offset:{e*128}")
    lb = a.new("k_nost")
    a("s_cmp_lg_u32 s32, 8")
    a(f"s_cbranch_scc1 {lb}")
    a(f"s_lshl_b32 s{T0}, s2, 9")
    a(f"s_and_b32 s{T1}, s{TB}, 3")
    a(f"s_lshl_b32 s{T1}, s{T1}, 4")
    a(f"s_add_u32 s{T0}, s{T0}, s{T1}")
    a(f"s_add_u32 s{T0}, s{T0}, {HFLAG}")
    poll(a, T0, 4, sleep=8)
    a("v_lshlrev_b32 v7, 3, v1")
    a(f"s_lshl_b32 s{T2}, s{TB}, 9")
    a(f"s_add_u32 s{T2}, s{T2}, {STATS_OFF}")
    a(f"buffer_load_dwordx2 v[24:25], v7, s[28:31], s{T2} offen sc1")
    a(f"v_add_u32 v7, {STS}, v7")
    a("s_waitcnt vmcnt(0)")
    a("ds_write_b64 v7, v[24:25]")
    a.lab(lb)
    a.stamp(10)
    a("s_waitcnt lgkmcnt(0)")
    a("s_barrier")
    a.fin()
    a("s_endpgm")

    a.lab("k_final")
    a.role = "f"
    a.stamp(11)
    a("s_waitcnt vmcnt(0) lgkmcnt(0)")
    a("s_barrier")
    a.stamp(12)
    a("v_lshrrev_b32 v2, 3, v0")
    a("v_and_b32 v3, 7, v0")
    a("v_mul_u32_u24 v4, 272, v2")
    a("v_lshl_add_u32 v4, v3, 5, v4")
    a(f"v_add_u32 v5, {3*PART}, v4")
    a(f"v_add_u32 v8, {6*PART}, v4")
    a("v_lshlrev_b32 v7, 3, v2")
    a(f"v_add_u32 v7, {STS}, v7")
    a("ds_read_b64 v[18:19], v7")
    PR = [24, 32, 40, 48, 96, 104, 112, 120]
    for w in range(8):
        ad = (4, 5, 8)[w // 3]
        for hh in range(2):
            a(f"ds_read_b128 {v(PR[w] + 4*hh, 4)}, v{ad} offset:{(w % 3) * PART + 16*hh}")
        if w == 5: a("s_waitcnt lgkmcnt(8)")
    a("v_lshrrev_b32 v6, 3, v2")
    a("v_xor_b32 v6, v6, v3")
    a("v_lshlrev_b32 v6, 4, v6")
    a("v_lshl_add_u32 v6, v2, 7, v6")
    a(f"v_add_u32 v6, {Y2S}, v6")
    a("ds_read_b128 v[56:59], v6")
    srd(a, SB, OUT, 2048 * 896)
    X, XN, Y = 64, 72, 80
    for i in range(4):
        unpack(a, X + 2 * i, 128 + i)
    a("v_rcp_f32 v21, v19")
    for e in range(8):
        a(f"v_sub_f32 v{XN+e}, v{X+e}, v18")
    a("v_mul_f32 v22, v21, v21")
    for e in range(8):
        a(f"v_mul_f32 v{XN+e}, v{XN+e}, v21")
    a("s_waitcnt lgkmcnt(0)")
    for (d, s_) in ((0, 1), (2, 3), (4, 5), (6, 7), (0, 2), (4, 6), (0, 4)):
        for i in range(0, 8, 2):
            a(f"v_pk_add_f32 {v(PR[d]+i,2)}, {v(PR[d]+i,2)}, {v(PR[s_]+i,2)}")
    for e in range(8):
        a(f"v_mul_f32 v{24+e}, v{24+e}, v22")
    for e in range(8):
        a(f"v_mul_f32 v{32+e}, 0xbfb8aa3b, v{24+e}")
    for e in range(8):
        a(f"v_exp_f32 v{32+e}, v{32+e}")
    for i in range(4):
        unpack(a, Y + 2 * i, 56 + i)
    for e in range(8):
        a(f"v_add_f32 v{32+e}, 1.0, v{32+e}")
    for e in range(8):
        a(f"v_rcp_f32 v{32+e}, v{32+e}")
    for e in range(8):
        a(f"v_mul_f32 v{XN+e}, v{XN+e}, v{Y+e}")
    for e in range(8):
        a(f"v_mul_f32 v{24+e}, v{24+e}, v{32+e}")
    for e in range(8):
        a(f"v_fma_f32 v{24+e}, v{XN+e}, v{24+e}, v{X+e}")
    for i in range(4):
        a(f"v_cvt_pk_bf16_f32 v{88+i}, v{24+2*i}, v{24+2*i+1}")
    for _ in range(int(E("ENDSLEEP", "0"))): a("s_sleep 32")
    if E("TGLOB"):
        a("v_mov_b32 v2, 0")
        a(f"global_load_dword v3, v2, s[{DBG}:{DBG+1}] offset:128 sc1")
        a("s_waitcnt vmcnt(0)")
        a("v_readfirstlane_b32 s96, v3")
        a("s_nop 3")
        a("s_not_b32 s96, s96")
    if E("TFIX"):
        lp = a.new("tfix")
        a.lab(lp)
        a("s_memrealtime s[98:99]")
        a("s_waitcnt lgkmcnt(0)")
        a("s_sub_u32 s98, s98, s96")
        a(f"s_cmp_lt_u32 s98, {int(E('TFIX'))}")
        a(f"s_cbranch_scc1 {lp}")
    a(f"buffer_store_dwordx4 v[88:91], v14, s[{SB}:{SB+3}], 0 offen {E('OST', 'sc1')}")
    a.fin()
    a("s_endpgm")

    a.lab("k_prep")
    a.role = "p"
    P = R0
    a(f"s_sub_u32 s{P}, s2, 224")
    a("s_waitcnt lgkmcnt(0)")
    srd(a, 28, WS, WS_REC)
    a("s_cmp_ge_u32 s32, 8")
    a("s_cbranch_scc1 k_end")
    a("s_cmp_eq_u32 s32, 7")
    a("s_cbranch_scc1 k_prep_flags")
    srd(a, SA, K_, 2048 * 896)
    srd(a, SB, V_, 2048 * 896)
    srd(a, SC, SK, 448 * 8)
    a(f"s_movk_i32 s{T0}, 1171")
    a(f"v_mul_lo_u32 v2, v0, s{T0}")
    a("v_lshrrev_b32 v2, 16, v2")
    a("v_mul_u32_u24 v3, 56, v2")
    a("v_sub_u32 v3, v0, v3")
    a(f"s_lshl_b32 s{T0}, s{P}, 6")
    a(f"v_lshl_add_u32 v4, v2, 3, s{T0}")
    a(f"s_movk_i32 s{T1}, 896")
    a(f"v_mul_lo_u32 v4, v4, s{T1}")
    a("v_lshl_add_u32 v11, v3, 4, v4")
    a("v_subrev_u32 v10, 2688, v11")
    a("v_add_u32 v12, 3584, v11")
    a("v_lshlrev_b32 v13, 6, v3")
    KR, VR, SW = 16, 60, 92
    PD = E("PDELAY", "1") == "1"
    for i in range(4):
        a(f"buffer_load_dwordx4 {v(SW+4*i,4)}, v13, s[{SC}:{SC+3}], 0 offen offset:{16*i}")
    if PD: a("s_waitcnt vmcnt(0)")
    for r in range(11):
        if r < 3: ad, off = 10, r * 896
        elif r < 7: ad, off = 11, (r - 3) * 896
        else: ad, off = 12, (r - 7) * 896
        a(f"buffer_load_dwordx4 {v(KR+4*r,4)}, v{ad}, s[{SA}:{SA+3}], 0 offen offset:{off}")
    for r in range(8):
        ad, off = (11, r * 896) if r < 4 else (12, (r - 4) * 896)
        a(f"buffer_load_dwordx4 {v(VR+4*r,4)}, v{ad}, s[{SB}:{SB+3}], 0 offen offset:{off}")
    a("v_sub_u32 v5, 7, v2")
    a("v_and_b32 v6, 7, v3")
    a("v_xor_b32 v5, v5, v6")
    a("v_lshlrev_b32 v5, 4, v5")
    a("v_lshl_add_u32 v14, v3, 10, v5")
    a.stamp(2)
    a("s_waitcnt vmcnt(0)")
    a.stamp(3)
    WF, KF, RES, OUT_ = 108, 116, 138, 154
    for p in range(4):
        for e in range(2):
            ch = 2 * p + e
            for tap in range(4):
                src = SW + 2 * ch + (tap >> 1)
                if tap & 1: a(f"v_and_b32 v{WF + 2*tap + e}, 0xffff0000, v{src}")
                else: a(f"v_lshlrev_b32 v{WF + 2*tap + e}, 16, v{src}")
        for r in range(11):
            unpack(a, KF + 2 * r, KR + 4 * r + p)
        for i in range(8):
            a(f"v_pk_mul_f32 {v(RES+2*i,2)}, {v(KF+2*i,2)}, {v(WF+6,2)}")
        for tap in (2, 1, 0):
            for i in range(8):
                a(f"v_pk_fma_f32 {v(RES+2*i,2)}, {v(KF+2*(i+3-tap),2)}, {v(WF+2*tap,2)}, {v(RES+2*i,2)}")
        for r in range(8):
            unpack(a, KF + 2 * r, VR + 4 * r + p)
        for i in range(8):
            a(f"v_pk_mul_f32 {v(RES+2*i,2)}, {v(RES+2*i,2)}, {v(KF+2*i,2)}")
        for e in range(2):
            for d in range(4):
                a(f"v_cvt_pk_bf16_f32 v{OUT_+4*e+d}, v{RES+2*(7-2*d)+e}, v{RES+2*(6-2*d)+e}")
        for e in range(2):
            a(f"ds_write_b128 v14, {v(OUT_+4*e,4)} offset:{(2*p+e)*128}")
    a("s_branch k_prep_bar")
    a.lab("k_prep_flags")
    a("v_mov_b32 v4, 0")
    a("v_mov_b32 v5, 0")
    a("v_mov_b32 v6, 0")
    a("v_mov_b32 v7, 0")
    a("v_lshlrev_b32 v2, 4, v1")
    a(f"s_mul_i32 s{T0}, s{P}, 3584")
    a(f"s_add_u32 s{T0}, s{T0}, {FLAG_OFF}")
    for q in range(4):
        if q == 3: a("s_mov_b32 exec_hi, 0")
        a(f"buffer_store_dwordx4 v[4:7], v2, s[28:31], s{T0} offen offset:{1024*q} sc1")
    a("s_mov_b64 exec, 1")
    a("v_mov_b32 v3, 1")
    a("s_waitcnt vmcnt(0) lgkmcnt(0)")
    a(f"global_atomic_add v4, v3, s[{DBG}:{DBG+1}] sc1")
    a("s_mov_b64 exec, -1")
    a.lab("k_prep_bar")
    a.stamp(4)
    a("s_waitcnt lgkmcnt(0)")
    a("s_barrier")
    a.stamp(5)
    a("v_lshrrev_b32 v2, 3, v0")
    a("v_and_b32 v3, 7, v0")
    a("v_xor_b32 v4, s32, v3")
    a("v_lshlrev_b32 v4, 4, v4")
    a("v_lshl_add_u32 v4, v2, 7, v4")
    a("v_lshlrev_b32 v5, 4, v3")
    a("v_lshl_add_u32 v5, v2, 12, v5")
    for it in range(7):
        a(f"ds_read_b128 {v(32+4*it,4)}, v4 offset:{it*8192}")
    a(f"s_lshl_b32 s{T0}, s{P}, 7")
    a(f"s_sub_u32 s{T0}, {UREV_OFF + 1984*2}, s{T0}")
    for it in range(7):
        a(f"s_waitcnt lgkmcnt({6-it})")
        a(f"buffer_store_dwordx4 {v(32+4*it,4)}, v5, s[28:31], s{T0} offen sc1")
        a(f"s_add_u32 s{T0}, s{T0}, {64*4096}")
    lb, lp = a.new("k_prep_icd"), a.new("k_prep_icl")
    a("s_cmp_lg_u32 s32, 7")
    a(f"s_cbranch_scc1 {lb}")
    a("v_mov_b32 v22, 0")
    a.lab(lp)
    a(f"global_load_dword v23, v22, s[{DBG}:{DBG+1}] sc1")
    a("s_waitcnt vmcnt(0)")
    a(f"v_readfirstlane_b32 s{T0}, v23")
    a("s_nop 3")
    a(f"s_cmp_ge_u32 s{T0}, 32")
    a(f"s_cbranch_scc1 {lb}")
    a("s_sleep 12")
    a(f"s_branch {lp}")
    a.lab(lb)
    a("s_waitcnt vmcnt(0)")
    a("s_barrier")
    a.stamp(6)
    lb = a.new("k_prep_np")
    a("s_cmp_lg_u32 s32, 7")
    a(f"s_cbranch_scc1 {lb}")
    a("v_lshlrev_b32 v4, 9, v1")
    a(f"s_lshl_b32 s{T0}, s{P}, 2")
    a(f"s_add_u32 s{T0}, s{T0}, {PFLAG}")
    a("v_mov_b32 v3, 1")
    for q in range(4):
        if q == 3: a("s_mov_b32 exec_hi, 0")
        a(f"buffer_store_dword v3, v4, s[28:31], s{T0} offen sc1")
        a(f"s_add_u32 s{T0}, s{T0}, {64*512}")
    a("s_mov_b64 exec, -1")
    a("s_waitcnt vmcnt(0)")
    a.lab(lb)
    if E("PWD", "0") == "1":
        a("s_barrier")
        srd(a, SA, WD, 1792 * 896)
        PW0 = int(E("PW0", "96"))
        rows = 224 - PW0
        a(f"s_mul_i32 s{T0}, s32, {224 * 896}")
        a(f"s_lshr_b32 s{T1}, s{P}, 3")
        a(f"s_mul_i32 s{T1}, s{T1}, {rows * 896 // 4}")
        a(f"s_add_u32 s{T0}, s{T0}, s{T1}")
        a(f"s_add_u32 s{T0}, s{T0}, {PW0 * 896}")
        a("v_lshlrev_b32 v2, 4, v1")
        n = rows * 896 // 4 // 1024
        for i in range(n):
            a(f"buffer_load_dwordx4 {v(16 + 4 * (i % 32), 4)}, v2, s[{SA}:{SA+3}], s{T0} offen offset:{(i % 4) * 1024}")
            if i % 4 == 3: a(f"s_add_u32 s{T0}, s{T0}, 4096")
    a.fin()
    a.lab("k_end")
    a.lab("k_last")
    a("s_endpgm")

HDR = open("cdna_kernels/" + NAME + ".s.ref").read().split("; Override launch")[0]

def main():
    out = sys.argv[1] if len(sys.argv) > 1 else f"cdna_kernels/{NAME}.s"
    a = A()
    kernel(a)
    txt = HDR
    txt += f"; @launch grid=(256,1,1) block=(768,1,1) lds={LDS}\n"
    txt += '.amdgcn_target "amdgcn-amd-amdhsa--gfx950"\n.text\n'
    txt += f".globl {KN}\n.p2align 8\n.type {KN},@function\n" + "\n".join(a.L) + "\n"
    txt += f'''.section .rodata,"a"
.p2align 6
.amdhsa_kernel {KN}
  .amdhsa_next_free_vgpr 168
  .amdhsa_next_free_sgpr 102
  .amdhsa_accum_offset 168
  .amdhsa_group_segment_fixed_size 0
  .amdhsa_kernarg_size 104
  .amdhsa_user_sgpr_count 2
  .amdhsa_user_sgpr_kernarg_segment_ptr 1
  .amdhsa_system_sgpr_workgroup_id_x 1
.end_amdhsa_kernel
'''
    open(out, "w").write(txt)

if __name__ == "__main__":
    main()
```

```python
import sys, os
E = os.environ.get

NAME = "recurrent_scan__ssm_conv_h3__glu_gated_reglu__prompt"
KN = NAME + "_kernel"
H_OFF = 0
UREV_OFF = 0x700000
STATS_OFF = 0x8C0000
FLAG_OFF = 0x8D0000
HFLAG = FLAG_OFF
YFLAG = FLAG_OFF + 128
PFLAG = FLAG_OFF + 256
SFLAG = FLAG_OFF + 384
Y2_OFF = 0x900000
WS_REC = 0x1000000
DIAG = int(E("DIAG", "0"))
DIAG_OFF = 0xC00000

class A:
    def __init__(self):
        self.L = []
        self.n = 0
    def __call__(self, s):
        self.L.append("    " + s)
    def lab(self, s):
        self.L.append(s + ":")
    def new(self, p="L"):
        self.n += 1
        return f"{p}_{self.n}"
    def stamp(self, i, real=False):
        if E("LOOPST") and 5 <= i <= 10 and getattr(self, "post", False): return
        if E("TM"):
            role, idx, mode, wv = E("TM").split(":")
            if getattr(self, "role", "") == role and int(idx) == i:
                lb = self.new("tm")
                self(f"s_cmp_lg_u32 s32, {wv}")
                self(f"s_cbranch_scc1 {lb}")
                self("s_memrealtime s[98:99]")
                self("s_waitcnt lgkmcnt(0)")
                self("s_sub_u32 s98, s98, s96")
                if mode == "min": self("s_sub_u32 s98, 0x10000, s98")
                r = 26 if (role == "g" and i <= 4) else 2
                self(f"v_mov_b32 v{r}, 0")
                self(f"v_mov_b32 v{r+1}, s98")
                self("s_mov_b64 exec, 1")
                self(f"global_atomic_umax v{r}, v{r+1}, s[24:25] offset:128 sc1")
                self("s_mov_b64 exec, -1")
                self.lab(lb)
        if E("TP"):
            role, idx, T = E("TP").split(":")
            if getattr(self, "role", "") == role and int(idx) == i:
                lp = self.new("tprobe")
                self.lab(lp)
                self("s_memrealtime s[98:99]")
                self("s_waitcnt lgkmcnt(0)")
                self("s_sub_u32 s98, s98, s96")
                self(f"s_cmp_lt_u32 s98, {T}")
                self(f"s_cbranch_scc1 {lp}")
        if E("LOOPST") and 5 <= i <= 10 and getattr(self, "post", False): return
        if DIAG:
            self(f"s_memrealtime s[{60+2*i}:{61+2*i}]" if (real or DIAG == 2) else f"s_memtime s[{60+2*i}:{61+2*i}]")
    def fin(self, vt=160):
        if DIAG:
            self.stamp(13)
            self("s_waitcnt vmcnt(0)")
            self.stamp(14)
            self.stamp(15, True)
            self("s_waitcnt lgkmcnt(0)")
            self("s_lshl_b32 s33, s2, 4")
            self("s_add_u32 s33, s33, s32")
            self("s_lshl_b32 s33, s33, 7")
            self(f"s_add_u32 s33, s33, {DIAG_OFF}")
            self(f"v_mov_b32 v{vt}, 0")
            for i in range(16):
                self(f"v_mov_b32 v{vt+1}, s{60+2*i}")
                self(f"buffer_store_dword v{vt+1}, v{vt}, s[28:31], s33 offen offset:{4*i}")

def v(a, n=1):
    return f"v{a}" if n == 1 else f"v[{a}:{a+n-1}]"

def srd(a, dst, lo, nrec):
    a(f"s_mov_b32 s{dst}, s{lo}")
    a(f"s_and_b32 s{dst+1}, s{lo+1}, 0xffff")
    a(f"s_mov_b32 s{dst+2}, {nrec}")
    a(f"s_mov_b32 s{dst+3}, 0x00020000")

def bf16r(a, dst, src):
    a(f"v_cvt_pk_bf16_f32 v{dst}, v{src}, v{src}")
    a(f"v_lshlrev_b32 v{dst}, 16, v{dst}")

def unpack(a, dst, src):
    a(f"v_lshlrev_b32 v{dst}, 16, v{src}")
    a(f"v_and_b32 v{dst+1}, 0xffff0000, v{src}")

STAGE = 24576
NST = 4
SPS = 2
RING_D = 6
RING = RING_D * 2048
PART = 64 * 272
CONV0 = 8 * RING
CPITCH = 4160
CONV_CH = 4 * CPITCH + 5120
A_STATS = CONV0 + 2 * CONV_CH
A_CS = A_STATS + 1024
Y2S = A_CS + 2048
STS = Y2S + 8192
SYNC = STS + 512
CNT_H, CNT_U, CNT_Y, CNT_R = SYNC, SYNC + 4, SYNC + 8, SYNC + 12
LDS = SYNC + 64

Q, K_, V_, SK, SSMK, SSMD, WG, WU, WD, OUT, DBG, WS = 4, 6, 8, 10, 12, 14, 16, 18, 20, 22, 24, 26
SA, SB, SC = 36, 40, 44
RB, FB, XCD, J, TB, CB = 48, 49, 50, 51, 52, 53
R0, R1, R2, R3, R4, R5 = 54, 55, 56, 57, 58, 59
T0, T1, T2 = 33, 34, 35
T3, T4, T5, T6 = 92, 93, 94, 95

def lds_spin(a, word, vt=2, sleep=1, mask=None):
    lp, dn = a.new("spin"), a.new("spun")
    a(f"v_mov_b32 v{vt+1}, {word}")
    a.lab(lp)
    a(f"ds_read_b32 v{vt}, v{vt+1}")
    a("s_waitcnt lgkmcnt(0)")
    a(f"v_readfirstlane_b32 s{T3}, v{vt}")
    a("s_nop 3")
    if mask is None:
        a(f"s_cmp_lg_u32 s{T3}, 0")
    else:
        a(f"s_and_b32 s{T3}, s{T3}, s{mask}")
        a(f"s_cmp_eq_u32 s{T3}, s{mask}")
    a(f"s_cbranch_scc1 {dn}")
    a(f"s_sleep {sleep}")
    a(f"s_branch {lp}")
    a.lab(dn)

def lds_set(a, word, vt=2):
    a(f"v_mov_b32 v{vt}, 1")
    a(f"v_mov_b32 v{vt+1}, {word}")
    a(f"ds_write_b32 v{vt+1}, v{vt}")

def poll(a, soff, nwords, vt=2, sleep=12):
    lp, dn = a.new("poll"), a.new("polled")
    a(f"v_min_u32 v{vt+1}, {nwords-1}, v1")
    a(f"v_lshlrev_b32 v{vt+1}, 2, v{vt+1}")
    a.lab(lp)
    a(f"buffer_load_dword v{vt}, v{vt+1}, s[28:31], s{soff} offen sc1")
    a("s_waitcnt vmcnt(0)")
    a(f"v_cmp_ne_u32 vcc, 1, v{vt}")
    a("s_nop 3")
    a("s_cmp_eq_u64 vcc, 0")
    a(f"s_cbranch_scc1 {dn}")
    a(f"s_sleep {sleep}")
    a(f"s_branch {lp}")
    a.lab(dn)

def arrive_publish(a, cnt, n, soff, voff, lanes, vt=2):
    sk = a.new("nopub")
    a(f"v_mov_b32 v{vt}, 1")
    a(f"v_mov_b32 v{vt+1}, {cnt}")
    a("s_mov_b64 exec, 1")
    a(f"ds_add_rtn_u32 v{vt+2}, v{vt+1}, v{vt}")
    a("s_mov_b64 exec, -1")
    a("s_waitcnt lgkmcnt(0)")
    a(f"v_readfirstlane_b32 s{T3}, v{vt+2}")
    a("s_nop 3")
    a(f"s_cmp_lg_u32 s{T3}, {n-1}")
    a(f"s_cbranch_scc1 {sk}")
    a(f"s_mov_b32 exec_lo, {hex((1 << lanes) - 1)}")
    a("s_mov_b32 exec_hi, 0")
    a(f"buffer_store_dword v{vt}, v{voff}, s[28:31], s{soff} offen sc1")
    a("s_mov_b64 exec, -1")
    a.lab(sk)

def kernel(a):
    a.lab(KN)
    a("s_cmp_ge_u32 s2, 256")
    a("s_cbranch_scc1 k_end")
    a.stamp(0, True)
    a.stamp(1)
    for _ in range(int(E("BEGSLEEP", "0"))): a("s_sleep 32")
    if E("TFIX") or E("TB0") or E("TE1") or E("TP"): a("s_memrealtime s[96:97]")
    a("s_load_dwordx8 s[4:11], s[0:1], 0")
    a("s_load_dwordx4 s[12:15], s[0:1], 32")
    a("s_load_dwordx8 s[16:23], s[0:1], 56")
    a("s_load_dwordx4 s[24:27], s[0:1], 88")
    a("v_and_b32 v1, 63, v0")
    a("v_lshrrev_b32 v2, 6, v0")
    a("s_nop 0")
    a("v_readfirstlane_b32 s32, v2")
    a("s_cmp_ge_u32 s2, 224")
    a("s_cbranch_scc1 k_prep")
    a(f"s_and_b32 s{XCD}, s2, 7")
    a(f"s_lshr_b32 s{J}, s2, 3")
    a(f"s_mul_i32 s{T0}, s{J}, 37")
    a(f"s_lshr_b32 s{T0}, s{T0}, 8")
    a(f"s_mul_i32 s{T1}, s{T0}, 7")
    a(f"s_sub_u32 s{CB}, s{J}, s{T1}")
    a(f"s_and_b32 s{T1}, s{XCD}, 4")
    a(f"s_add_u32 s{RB}, s{T1}, s{T0}")
    a(f"s_and_b32 s{T1}, s{XCD}, 3")
    a(f"s_mul_i32 s{T1}, s{T1}, 7")
    a(f"s_add_u32 s{FB}, s{T1}, s{CB}")
    a(f"s_lshl_b32 s{T1}, s{XCD}, 2")
    a(f"s_add_u32 s{TB}, s{T1}, s{T0}")
    ROWMAP = E("ROWMAP", "0") == "1"
    if ROWMAP:
        a(f"s_mov_b32 s{RB}, s{XCD}")
        a(f"s_mov_b32 s{FB}, s{J}")
    a("s_cmp_ge_u32 s32, 8")
    a("s_cbranch_scc1 k_helper")

    a.role = "g"
    TG, CG = R0, R1
    a(f"s_lshr_b32 s{TG}, s32, 1")
    a(f"s_and_b32 s{CG}, s32, 1")
    AR = 10
    a("v_and_b32 v2, 31, v1")
    a("v_lshrrev_b32 v3, 5, v1")
    a("v_bfe_u32 v4, v1, 2, 2")
    a("v_xor_b32 v4, v3, v4")
    a(f"s_lshl_b32 s{T0}, s32, 5")
    a(f"v_add_u32 v5, s{T0}, v2")
    a("v_lshlrev_b32 v5, 6, v5")
    a(f"v_lshl_add_u32 v{AR+0}, v4, 4, v5")
    a(f"v_xor_b32 v{AR+1}, 0x800, v{AR+0}")
    a(f"v_xor_b32 v{AR+2}, 32, v{AR+0}")
    a(f"v_xor_b32 v{AR+3}, 32, v{AR+1}")
    a("v_bfe_u32 v4, v1, 4, 1")
    a("v_bfe_u32 v5, v1, 2, 2")
    a("v_bfe_u32 v6, v1, 3, 1")
    a("v_lshl_or_b32 v6, v4, 1, v6")
    a(f"s_lshl_b32 s{T0}, s{CG}, 1")
    a(f"v_xor_b32 v6, s{T0}, v6")
    a("v_lshl_add_u32 v7, v3, 3, v5")
    a("v_lshlrev_b32 v7, 7, v7")
    a("v_lshl_add_u32 v7, v4, 12, v7")
    a("v_lshl_add_u32 v7, v6, 5, v7")
    a("v_and_b32 v8, 3, v1")
    a("v_lshl_add_u32 v7, v8, 3, v7")
    a(f"v_add_u32 v{AR+4}, 0x4000, v7")
    a(f"v_xor_b32 v{AR+5}, 32, v{AR+4}")
    for i in range(6):
        a(f"v_add_u32 v{AR+6+i}, {SPS * STAGE}, v{AR+i}")
    a("v_mov_b32 v28, 0")
    a("v_mov_b32 v29, 0")
    a("v_mov_b32 v22, 0")
    a("v_and_b32 v24, 15, v1")
    a("v_lshlrev_b32 v24, 2, v24")
    a(f"s_mov_b32 s{T5}, 0")
    a("s_waitcnt lgkmcnt(0)")
    srd(a, 28, WS, WS_REC)
    HF, YF = R2, R3
    a(f"s_lshl_b32 s{HF}, s{RB}, 9")
    a(f"s_lshl_b32 s{T0}, s{FB}, 2")
    a(f"s_add_u32 s{HF}, s{HF}, s{T0}")
    a(f"s_add_u32 s{HF}, s{HF}, {HFLAG}")
    a(f"s_lshl_b32 s{YF}, s2, 9")
    a(f"s_add_u32 s{YF}, s{YF}, {FLAG_OFF}")
    if E("TGLOB"):
        lb = a.new("tg")
        a("s_cmp_lg_u32 s32, 0")
        a(f"s_cbranch_scc1 {lb}")
        a("s_not_b32 s98, s96")
        a("v_mov_b32 v2, s98")
        a("s_mov_b64 exec, 1")
        a(f"global_atomic_umax v22, v2, s[{DBG}:{DBG+1}] offset:128 sc1")
        a("s_mov_b64 exec, -1")
        a.lab(lb)
    a("s_cmp_eq_u32 s32, 7")
    a("s_cbranch_scc1 k_init")
    if E("GTOUCH", "1") == "1":
        srd(a, SA, Q, 2048 * 896)
        srd(a, SB, WG, 448 * 3584)
        srd(a, SC, WU, 448 * 3584)
        if ROWMAP:
            a(f"s_lshl_b32 s{T0}, s{XCD}, 8")
            a(f"s_mul_i32 s{T1}, s{J}, 10")
            a(f"s_add_u32 s{T0}, s{T0}, s{T1}")
            a(f"s_mul_i32 s{T0}, s{T0}, 896")
            a(f"s_lshl_b32 s{T1}, s32, 7")
            a(f"s_add_u32 s{T0}, s{T0}, s{T1}")
            a("v_mul_u32_u24 v2, 896, v1")
            a("v_mul_u32_u24 v4, 3584, v1")
            a(f"s_lshl_b32 s{T1}, s{J}, 7")
            a(f"s_mul_i32 s{T2}, s32, {64 * 3584}")
            a(f"s_add_u32 s{T1}, s{T1}, s{T2}")
            a(f"buffer_load_dword v7, v4, s[{SB}:{SB+3}], s{T1} offen")
            a(f"buffer_load_dword v8, v4, s[{SC}:{SC+3}], s{T1} offen")
            a("s_mov_b64 exec, 0x3ff")
            a(f"buffer_load_dword v6, v2, s[{SA}:{SA+3}], s{T0} offen")
            a("s_mov_b64 exec, -1")
        else:
            a(f"s_lshr_b32 s{T0}, s{XCD}, 2")
            a(f"s_lshl_b32 s{T0}, s{T0}, 10")
            a(f"s_mul_i32 s{T1}, s{J}, 37")
            a(f"s_add_u32 s{T0}, s{T0}, s{T1}")
            a(f"s_mul_i32 s{T0}, s{T0}, 896")
            a(f"s_lshl_b32 s{T1}, s32, 7")
            a(f"s_add_u32 s{T0}, s{T0}, s{T1}")
            a("v_mul_u32_u24 v2, 896, v1")
            a(f"s_lshl_b32 s{T1}, s{J}, 4")
            a(f"v_add_u32 v3, s{T1}, v1")
            a("v_mul_u32_u24 v4, 0x2493, v3")
            a("v_lshrrev_b32 v4, 16, v4")
            a("v_mul_u32_u24 v5, 7, v4")
            a("v_sub_u32 v5, v3, v5")
            a("v_mul_u32_u24 v4, 3584, v4")
            a("v_lshl_add_u32 v4, v5, 7, v4")
            a(f"s_and_b32 s{T1}, s{XCD}, 3")
            a(f"s_mul_i32 s{T1}, s{T1}, 896")
            a(f"s_mul_i32 s{T2}, s32, {64 * 3584}")
            a(f"s_add_u32 s{T1}, s{T1}, s{T2}")
            TD = int(E("TD", "0"))
            if TD:
                lb = a.new("k_td")
                a(f"s_cmp_lt_u32 s32, {int(E('TS0', '2'))}")
                a(f"s_cbranch_scc1 {lb}")
                a(f"s_sleep {TD}")
                a.lab(lb)
            a("s_mov_b32 exec_hi, 31")
            a(f"buffer_load_dword v6, v2, s[{SA}:{SA+3}], s{T0} offen")
            a("s_mov_b64 exec, 0xffff")
            a(f"buffer_load_dword v7, v4, s[{SB}:{SB+3}], s{T1} offen")
            a(f"buffer_load_dword v8, v4, s[{SC}:{SC+3}], s{T1} offen")
            a("s_mov_b64 exec, -1")
    a("s_branch k_main")
    a.lab("k_init")
    a("v_mov_b32 v2, 0")
    a(f"v_lshl_add_u32 v3, v1, 2, 0")
    a(f"v_add_u32 v3, {SYNC}, v3")
    a("s_mov_b64 exec, 0xff")
    a("ds_write_b32 v3, v2")
    a("s_waitcnt lgkmcnt(0)")
    a("s_mov_b64 exec, -1")
    a(f"global_load_dword v23, v22, s[{DBG}:{DBG+1}] sc1")
    if E("CTOUCH", "0") == "1":
        a("s_getpc_b64 s[98:99]")
        a.lab("k_pc")
        a(f"s_sub_u32 s98, s98, k_pc-{KN}")
        a("s_subb_u32 s99, s99, 0")
        a(f"s_lshl_b32 s{T0}, s{J}, 11")
        a("v_lshlrev_b32 v2, 7, v1")
        a(f"v_add_u32 v2, s{T0}, v2")
        a(f"v_min_u32 v2, k_last-{KN}, v2")
        a("s_mov_b64 exec, 0xffff")
        a("global_load_dword v9, v2, s[98:99]")
        a("s_mov_b64 exec, -1")
    a.lab("k_main")
    a(f"s_cmp_ge_u32 s{FB}, 16")
    a("s_cbranch_scc1 k_nostat")
    srd(a, SA, Q, 2048 * 896)
    a(f"s_lshl_b32 s{T0}, s{RB}, 8")
    a(f"s_lshl_b32 s{T1}, s{FB}, 4")
    a(f"s_add_u32 s{T0}, s{T0}, s{T1}")
    a(f"s_lshl_b32 s{T1}, s32, 1")
    a(f"s_add_u32 s{T0}, s{T0}, s{T1}")
    a("v_lshrrev_b32 v2, 5, v1")
    a(f"v_add_u32 v2, s{T0}, v2")
    a(f"s_movk_i32 s{T1}, 896")
    a(f"v_mul_lo_u32 v3, v2, s{T1}")
    a("v_and_b32 v4, 31, v1")
    a("v_lshl_add_u32 v3, v4, 4, v3")
    for r in range(36, 40): a(f"v_mov_b32 v{r}, 0")
    a(f"buffer_load_dwordx4 v[32:35], v3, s[{SA}:{SA+3}], 0 offen")
    a("s_mov_b32 exec_lo, 0xffffff")
    a("s_mov_b32 exec_hi, 0xffffff")
    a(f"buffer_load_dwordx4 v[36:39], v3, s[{SA}:{SA+3}], 0 offen offset:512")
    a("s_mov_b64 exec, -1")
    for r in range(40, 44): a(f"v_mov_b32 v{r}, 0")
    a("v_lshlrev_b32 v2, 3, v2")
    a("s_waitcnt vmcnt(0)")
    for i in range(8):
        t = 44 + 2 * (i & 1)
        unpack(a, t, 32 + i)
        a(f"v_add_f32 v40, v40, v{t}")
        a(f"v_add_f32 v41, v41, v{t+1}")
        a(f"v_fmac_f32 v42, v{t}, v{t}")
        a(f"v_fmac_f32 v43, v{t+1}, v{t+1}")
    a("v_add_f32 v40, v40, v41")
    a("v_add_f32 v42, v42, v43")
    for dpp in ("quad_perm:[1,0,3,2]", "quad_perm:[2,3,0,1]", "row_ror:4", "row_ror:8"):
        a("s_nop 1")
        a(f"v_add_f32_dpp v40, v40, v40 {dpp} row_mask:0xf bank_mask:0xf")
        a(f"v_add_f32_dpp v42, v42, v42 {dpp} row_mask:0xf bank_mask:0xf")
    a("v_mov_b32 v41, v40")
    a("v_mov_b32 v43, v42")
    a("s_nop 1")
    a("v_permlane16_swap_b32 v40, v41")
    a("v_permlane16_swap_b32 v42, v43")
    a("s_nop 1")
    a("v_add_f32 v40, v40, v41")
    a("v_add_f32 v42, v42, v43")
    a("v_mul_f32 v40, 0x3b124925, v40")
    a("v_mul_f32 v42, 0x3b124925, v42")
    a("v_fma_f32 v42, -v40, v40, v42")
    a("v_max_f32 v42, 0, v42")
    bf16r(a, 44, 40)
    bf16r(a, 42, 42)
    a("v_add_f32 v42, 0x3727c5ac, v42")
    bf16r(a, 42, 42)
    a("v_sqrt_f32 v42, v42")
    a("s_nop 0")
    bf16r(a, 45, 42)
    a(f"s_mov_b32 s{T0}, {STATS_OFF}")
    a("s_mov_b32 exec_lo, 1")
    a("s_mov_b32 exec_hi, 1")
    a(f"buffer_store_dwordx2 v[44:45], v2, s[28:31], s{T0} offen sc1")
    a("s_mov_b64 exec, -1")
    a.lab("k_nostat")

    SETS = {0: 32, 1: 48}
    def reads(c, st_):
        base = SETS[st_]
        stg = c % NST
        R, o = AR + 6 * (stg // SPS), (stg % SPS) * STAGE
        a(f"ds_read_b128 {v(base,4)}, v{R + 2*st_} offset:{o}")
        for ct in range(2):
            for half in range(2):
                a(f"ds_read_b64_tr_b16 {v(base + 8 + 4*ct + 2*half, 2)}, v{R + 4 + ct} offset:{o + st_*2048 + half*512}")
        a(f"ds_read_b128 {v(base+4,4)}, v{R + 2*st_ + 1} offset:{o}")
    def mfmas(c, st_):
        base = SETS[st_]
        first = (2 * c + st_ == 0)
        k = 0
        for tt in range(2):
            for ct in range(2):
                acc = 64 + 16 * (2 * ct + tt)
                cc = "0" if first else v(acc, 16)
                a(f"v_mfma_f32_32x32x16_bf16 {v(acc,16)}, {v(base + 8 + 4*ct, 4)}, {v(base + 4*tt, 4)}, {cc}")
                k += 1
    EARLY = int(E("EARLY", "6"))
    RBASE, WROW = T6, J
    srd(a, SB, WD, 1792 * 896)
    a("v_lshrrev_b32 v2, 3, v1")
    a("v_mul_u32_u24 v2, 896, v2")
    a("v_bfe_u32 v3, v1, 4, 1")
    a("v_lshlrev_b32 v3, 2, v3")
    a("v_and_b32 v4, 7, v1")
    a("v_xor_b32 v3, v3, v4")
    a("v_lshl_add_u32 v2, v3, 4, v2")
    a(f"s_lshl_b32 s{T0}, s{CB}, 7")
    a(f"v_add_u32 v9, s{T0}, v2")
    a(f"s_xor_b32 s{RBASE}, s32, 4")
    a(f"s_mul_i32 s{RBASE}, s{RBASE}, {RING}")
    a(f"s_mul_i32 s{WROW}, s32, {14 * 16 * 896}")
    def early_w(n):
        for i in range(n):
            for hh in range(2):
                a(f"s_add_u32 m0, s{RBASE}, {i * 2048 + hh * 1024}")
                a(f"s_add_u32 s{T0}, s{WROW}, {(16 * i + 8 * hh) * 896}")
                a(f"buffer_load_dwordx4 v9, s[{SB}:{SB+3}], s{T0} offen lds")
    PC = int(E("PC", "11"))
    SC0 = int(E("SC0", "8"))
    SPC = int(E("SPC", "4"))
    SCD = int(E("SCD", "3"))
    def stats_ok(fail):
        a("v_cmp_ne_u32 vcc, 1, v25")
        a("s_nop 3")
        a("s_cmp_lg_u64 vcc, 0")
        a(f"s_cbranch_scc1 {fail}")
    def stats_load():
        a("v_lshlrev_b32 v26, 5, v1")
        a(f"s_lshl_b32 s{T0}, s{RB}, 11")
        a(f"s_add_u32 s{T0}, s{T0}, {STATS_OFF}")
        a(f"buffer_load_dwordx4 v[128:131], v26, s[28:31], s{T0} offen sc1")
        a(f"buffer_load_dwordx4 v[132:135], v26, s[28:31], s{T0} offen offset:16 sc1")
    if E("TB0"):
        lp = a.new("tprobe")
        a.lab(lp)
        a("s_memrealtime s[98:99]")
        a("s_waitcnt lgkmcnt(0)")
        a("s_sub_u32 s98, s98, s96")
        a(f"s_cmp_lt_u32 s98, {int(E('TB0'))}")
        a(f"s_cbranch_scc1 {lp}")
    if E("LP47"):
        lb = a.new("k_lp")
        a("s_cmp_lt_u32 s32, 4")
        a(f"s_cbranch_scc1 {lb}")
        a("s_setprio 1")
        a.lab(lb)
    a("s_barrier")
    a.stamp(2)
    reads(0, 0)
    for c in range(14):
        reads(c, 1)
        a("s_waitcnt lgkmcnt(6)")
        mfmas(c, 0)
        a("s_waitcnt lgkmcnt(0)")
        if c < 13:
            a("s_barrier")
            if E("LOOPST") and c in (1, 3, 5, 7, 9, 11): a.stamp(5 + c // 2)
            reads(c + 1, 0)
        if c == SPC - 1:
            a("s_waitcnt vmcnt(0)")
        if c == SPC:
            lb, lp, ok = a.new("k_sp"), a.new("k_spl"), a.new("k_spk")
            a("s_cmp_lg_u32 s32, 7")
            a(f"s_cbranch_scc1 {lb}")
            a.lab(lp)
            a(f"v_readfirstlane_b32 s{T0}, v23")
            a("s_nop 3")
            a(f"s_cmp_ge_u32 s{T0}, 32")
            a(f"s_cbranch_scc1 {ok}")
            a("s_sleep 8")
            a(f"global_load_dword v23, v22, s[{DBG}:{DBG+1}] sc1")
            a("s_waitcnt vmcnt(0)")
            a(f"s_branch {lp}")
            a.lab(ok)
            a(f"s_cmp_ge_u32 s{FB}, 16")
            a(f"s_cbranch_scc1 {lb}")
            if ROWMAP:
                a(f"s_add_u32 s{T0}, s{HF}, {SFLAG - HFLAG}")
                a("v_lshlrev_b32 v26, 12, v1")
            else:
                a(f"s_and_b32 s{T1}, s{RB}, 3")
                a(f"s_mul_i32 s{T1}, s{T1}, 56")
                a(f"s_and_b32 s{T0}, s{RB}, 4")
                a(f"s_add_u32 s{T0}, s{T0}, s{T1}")
                a(f"s_lshl_b32 s{T0}, s{T0}, 9")
                a(f"s_lshl_b32 s{T1}, s{FB}, 2")
                a(f"s_add_u32 s{T0}, s{T0}, s{T1}")
                a(f"s_add_u32 s{T0}, s{T0}, {SFLAG}")
                a("v_lshrrev_b32 v26, 2, v1")
                a("v_lshlrev_b32 v26, 12, v26")
                a("v_and_b32 v27, 3, v1")
                a("v_lshl_add_u32 v26, v27, 9, v26")
            a("v_mov_b32 v27, 1")
            a("s_mov_b32 exec_lo, 0xfffffff")
            a("s_mov_b32 exec_hi, 0")
            a(f"buffer_store_dword v27, v26, s[28:31], s{T0} offen sc1")
            a("s_mov_b64 exec, -1")
            a.lab(lb)
        if c == SC0:
            lb = a.new("k_s0")
            a("s_cmp_lg_u32 s32, 7")
            a(f"s_cbranch_scc1 {lb}")
            a("s_waitcnt vmcnt(0)")
            a(f"buffer_load_dword v25, v24, s[28:31], s{YF} offen offset:384 sc1")
            a.lab(lb)
        if c in (SC0 + 2, SC0 + 4):
            lb, rt = a.new("k_s1"), a.new("k_s1r")
            a("s_cmp_lg_u32 s32, 7")
            a(f"s_cbranch_scc1 {lb}")
            a(f"s_cmp_eq_u32 s{T5}, 1")
            a(f"s_cbranch_scc1 {lb}")
            a("s_waitcnt vmcnt(0)")
            stats_ok(rt)
            stats_load()
            a(f"s_mov_b32 s{T5}, 1")
            a(f"s_branch {lb}")
            a.lab(rt)
            a(f"buffer_load_dword v25, v24, s[28:31], s{YF} offen offset:384 sc1")
            a.lab(lb)
        if c == int(E('TKC', '-1')):
            lb = a.new("k_notk")
            a("s_cmp_lg_u32 s32, 6")
            a(f"s_cbranch_scc1 {lb}")
            srd(a, SA, SSMK, 448 * 4096)
            a("v_lshlrev_b32 v31, 7, v1")
            a(f"s_lshl_b32 s{T0}, s2, 13")
            a(f"buffer_load_dword v31, v31, s[{SA}:{SA+3}], s{T0} offen")
            a.lab(lb)
        if EARLY and c in (10, 11, 12):
            pair = {10: 0, 11: 1, 12: 2}[c]
            lb = a.new("k_noew")
            a(f"s_cmp_lg_u32 s{TG}, {pair}")
            a(f"s_cbranch_scc1 {lb}")
            early_w(EARLY)
            a.lab(lb)
        WT0 = int(E("WT0", "-99"))
        if WT0 <= c < WT0 + 7:
            lb = a.new("k_nowt")
            a(f"s_cmp_lg_u32 s32, {c - WT0}")
            a(f"s_cbranch_scc1 {lb}")
            srd(a, SA, WD, 1792 * 896)
            a("v_lshlrev_b32 v31, 7, v1")
            a(f"s_mul_i32 s{T0}, s{J}, {448 * 128}")
            a(f"s_add_u32 s{T0}, s{T0}, {(c - WT0) * 8192}")
            a(f"buffer_load_dword v31, v31, s[{SA}:{SA+3}], s{T0} offen")
            a.lab(lb)
        if c == int(E("KVT", "-1")):
            lb = a.new("k_nokv")
            a("s_cmp_lg_u32 s32, 5")
            a(f"s_cbranch_scc1 {lb}")
            srd(a, SA, K_, 2048 * 896)
            srd(a, SB, V_, 2048 * 896)
            a("v_lshlrev_b32 v31, 7, v1")
            a(f"s_lshl_b32 s{T0}, s2, 13")
            a(f"buffer_load_dword v30, v31, s[{SA}:{SA+3}], s{T0} offen")
            a(f"buffer_load_dword v31, v31, s[{SB}:{SB+3}], s{T0} offen")
            a.lab(lb)
        mfmas(c, 1)
    a.stamp(3)
    a.post = True
    if E("EPRIO", "1") == "1": a("s_setprio 2")
    if E("EP47"):
        lb = a.new("k_ep")
        a("s_cmp_lt_u32 s32, 4")
        a(f"s_cbranch_scc1 {lb}")
        a("s_setprio 3")
        a.lab(lb)
    srd(a, SB, WD, 1792 * 896)
    a("v_lshlrev_b32 v10, 4, v1")
    a("v_lshrrev_b32 v2, 3, v1")
    a("v_mul_u32_u24 v2, 896, v2")
    a("v_bfe_u32 v3, v1, 4, 1")
    a("v_lshlrev_b32 v3, 2, v3")
    a("v_and_b32 v4, 7, v1")
    a("v_xor_b32 v3, v3, v4")
    a("v_lshl_add_u32 v2, v3, 4, v2")
    a(f"s_lshl_b32 s{T0}, s{CB}, 7")
    a(f"v_add_u32 v11, s{T0}, v2")
    RBASE, WROW, HB0, HB1 = T6, J, R4, R5
    a(f"s_xor_b32 s{RBASE}, s32, 4")
    a(f"s_mul_i32 s{RBASE}, s{RBASE}, {RING}")
    a(f"s_mul_i32 s{WROW}, s32, {14 * 16 * 896}")
    a(f"s_mul_i32 s{HB0}, s{TB}, 448")
    a(f"s_mul_i32 s{T0}, s32, 28")
    a(f"s_add_u32 s{HB0}, s{HB0}, s{T0}")
    a(f"s_lshl_b32 s{HB0}, s{HB0}, 9")
    a(f"s_add_u32 s{HB1}, s{HB0}, {224 * 512}")
    a("v_bfe_u32 v2, v1, 5, 1")
    a("v_bfe_u32 v3, v1, 2, 2")
    a("v_lshl_add_u32 v2, v2, 2, v3")
    a("v_lshlrev_b32 v2, 7, v2")
    a("v_bfe_u32 v3, v1, 4, 1")
    a("v_and_b32 v4, 3, v1")
    a("v_lshlrev_b32 v4, 3, v4")
    a("v_lshl_or_b32 v4, v3, 5, v4")
    a("v_bfe_u32 v3, v1, 3, 1")
    a("v_lshl_or_b32 v4, v3, 6, v4")
    a(f"v_add3_u32 v12, v2, v4, s{RBASE}")
    a("v_xor_b32 v13, 64, v12")
    a("v_and_b32 v2, 31, v1")
    a(f"s_lshl_b32 s{T0}, s32, 5")
    a(f"v_add_u32 v2, s{T0}, v2")
    a("v_lshlrev_b32 v3, 2, v2")
    a(f"v_add_u32 v4, {A_STATS}, v3")
    a("v_mov_b32 v3, v4")
    a("v_and_b32 v5, 15, v1")
    a("v_bfe_u32 v6, v1, 4, 1")
    a("v_lshlrev_b32 v5, 4, v5")
    a("v_lshl_add_u32 v5, v6, 10, v5")
    a(f"s_lshl_b32 s{T0}, s{CG}, 9")
    a(f"s_add_u32 s{T0}, s{T0}, {A_CS}")
    a(f"v_add_u32 v6, s{T0}, v5")
    a("v_lshlrev_b32 v2, 4, v1")
    a("v_xor_b32 v3, 128, v3")
    lb, lp, rt, ok = a.new("k_icd"), a.new("k_icl"), a.new("k_icr"), a.new("k_ick")
    a("s_cmp_lg_u32 s32, 7")
    a(f"s_cbranch_scc1 {lb}")
    a(f"s_cmp_eq_u32 s{T5}, 1")
    a(f"s_cbranch_scc1 {ok}")
    a.lab(lp)
    a("s_waitcnt vmcnt(0)")
    stats_ok(rt)
    stats_load()
    a(f"s_branch {ok}")
    a.lab(rt)
    a("s_sleep 2")
    a(f"buffer_load_dword v25, v24, s[28:31], s{YF} offen offset:384 sc1")
    a(f"s_branch {lp}")
    a.lab(ok)
    a("s_waitcnt vmcnt(0)")
    for i in range(4):
        a(f"v_xor_b32 v{136+i}, 0x80000000, v{128+2*i}")
    a("v_lshlrev_b32 v26, 4, v1")
    a(f"v_add_u32 v26, {A_STATS}, v26")
    a("ds_write_b128 v26, v[136:139]")
    a.lab(lb)
    if E("TE1"):
        lp = a.new("tprobe")
        a.lab(lp)
        a("s_memrealtime s[98:99]")
        a("s_waitcnt lgkmcnt(0)")
        a("s_sub_u32 s98, s98, s96")
        a(f"s_cmp_lt_u32 s98, {int(E('TE1'))}")
        a(f"s_cbranch_scc1 {lp}")
    a("s_waitcnt lgkmcnt(0)")
    a("s_barrier")
    a.stamp(4)
    a("ds_read_b32 v28, v4")
    a("ds_read_b32 v30, v3")
    a("ds_read_b128 v[32:35], v6")
    a("ds_read_b128 v[36:39], v6 offset:256")
    a("v_cmp_gt_u32 vcc, 32, v1")
    a("v_mov_b32 v43, 0")
    a("v_mov_b32 v47, 0")
    a("s_waitcnt lgkmcnt(2)")
    for tt in range(2):
        mr, b = 28 + 2 * tt, 40 + 4 * tt
        a(f"v_lshrrev_b32 v{b}, 16, v{mr}")
        a(f"v_or_b32 v{b}, v{b}, v{mr}")
        a(f"v_cndmask_b32 v{b}, 0, v{b}, vcc")
        a(f"v_mov_b32 v{b+1}, v{b}")
        a(f"v_mov_b32 v{b+2}, v{b}")
    a("s_waitcnt lgkmcnt(0)")
    a("s_nop 0")
    for tt in range(2):
        for ct in range(2):
            acc = 64 + 16 * (2 * ct + tt)
            a(f"v_mfma_f32_32x32x16_bf16 {v(acc,16)}, {v(32 + 4*ct, 4)}, {v(40 + 4*tt, 4)}, {v(acc,16)}")
    ops = ["start"]
    WR = [128, 136, 144, 152, 160, 48, 56]
    HB = [16, 24, 32, 40]
    def issue_w(i):
        sl = i % RING_D
        for hh in range(2):
            a(f"s_add_u32 m0, s{RBASE}, {sl * 2048 + hh * 1024}")
            a(f"s_add_u32 s{T0}, s{WROW}, {(16 * i + 8 * hh) * 896}")
            a(f"buffer_load_dwordx4 v11, s[{SB}:{SB+3}], s{T0} offen lds")
            ops.append(("w", i))
    def issue_h(i):
        for tt in range(2):
            a(f"s_add_u32 s{T0}, s{HB0 + tt}, {i * 1024}")
            a(f"buffer_load_dwordx4 {v(HB[i % 4] + 4*tt, 4)}, v10, s[28:31], s{T0} offen sc1")
            ops.append(("h", i))
    def wait_for(*keys):
        last = max(max(n for n, o in enumerate(ops) if o == k) for k in keys)
        return len(ops) - 1 - last
    def treads(i, base):
        sl = i % RING_D
        for dt in range(2):
            for half in range(2):
                a(f"ds_read_b64_tr_b16 {v(base + 4*dt + 2*half, 2)}, v{12 + dt} offset:{sl*2048 + half*1024}")
    PRE0 = int(E("PRE0", "4"))
    PREPOS = int(E("PREPOS", "0"))
    if EARLY:
        PRE0 = EARLY
        lb = a.new("k_noew")
        a(f"s_cmp_lg_u32 s{TG}, 3")
        a(f"s_cbranch_scc1 {lb}")
        early_w(EARLY)
        a.lab(lb)
    elif PREPOS == 0:
        for i in range(PRE0):
            issue_w(i)
    for tt in range(2):
        mr = 28 + 2 * tt
        a(f"s_lshl_b32 s{T0}, s{RB}, 3")
        a(f"s_lshl_b32 s{T1}, s{TG}, 1")
        a(f"s_add_u32 s{T0}, s{T0}, s{T1}")
        a(f"s_xor_b32 s{T1}, s{CG}, {tt}")
        a(f"s_add_u32 s{T0}, s{T0}, s{T1}")
        a(f"s_mul_i32 s{T0}, s{T0}, 224")
        a(f"s_lshl_b32 s{T1}, s{FB}, 3")
        a(f"s_add_u32 s{T0}, s{T0}, s{T1}")
        a(f"s_lshl_b32 s{T1}, s{CG}, 2")
        a(f"s_add_u32 s{T0}, s{T0}, s{T1}")
        a(f"s_lshl_b32 s{T0}, s{T0}, 9")
        for ct in range(2):
            acc = 64 + 16 * (2 * ct + tt)
            if tt == 0 and ct == 0: a("s_nop 7")
            for i in range(8):
                a(f"v_max_f32 v{acc+i}, 0, v{acc+i}")
            for i in range(4):
                a(f"v_pk_mul_f32 {v(acc+2*i,2)}, {v(acc+2*i,2)}, {v(acc+8+2*i,2)}")
            O = 48 + 4 * (2 * tt + ct)
            for i in range(4):
                a(f"v_cvt_pk_bf16_f32 v{O+i}, v{acc+2*i}, v{acc+2*i+1}")
            a(f"buffer_store_dwordx4 {v(O,4)}, v2, s[28:31], s{T0} offen offset:{ct*1024} sc1")
            if E("DBLST", "0") == "1":
                a(f"buffer_store_dwordx4 {v(O,4)}, v2, s[28:31], s{T0} offen offset:{ct*1024}")
    if PREPOS == 1:
        for i in range(PRE0):
            issue_w(i)
    a.stamp(5)
    a("v_lshlrev_b32 v5, 12, v1")
    a(f"s_waitcnt vmcnt({2 * PRE0 if PREPOS == 1 else 0})")
    a.stamp(6)
    arrive_publish(a, CNT_H, 8, HF, 5, 28)
    a("s_setprio 0")
    if E("GP47"):
        lb = a.new("k_gp")
        a("s_cmp_lt_u32 s32, 4")
        a(f"s_cbranch_scc1 {lb}")
        a(f"s_setprio {E('GP47')}")
        a.lab(lb)
    if E("GATE", "1") == "1":
        lp, dn = a.new("gate"), a.new("gated")
        a(f"v_mov_b32 v3, {CNT_U}")
        a.lab(lp)
        a("ds_read_b32 v2, v3")
        a("s_waitcnt lgkmcnt(0)")
        a(f"v_readfirstlane_b32 s{T0}, v2")
        a("s_nop 3")
        a(f"s_cmp_eq_u32 s{T0}, 4")
        a(f"s_cbranch_scc1 {dn}")
        a("s_sleep 1")
        a(f"s_branch {lp}")
        a.lab(dn)
    ops.clear(); ops.append("flag")
    PACE = int(E("PACE", "6"))
    nw = PRE0
    while nw < PACE:
        issue_w(nw); nw += 1
    if PREPOS == 1:
        a(f"s_waitcnt vmcnt({2 * (PACE - PRE0)})")
    for i in range(13):
        if i >= PRE0:
            a(f"s_waitcnt vmcnt({wait_for(('w', i))})")
        if i < 7:
            treads(i, WR[i])
        if nw <= 12:
            if nw >= RING_D:
                assert nw - RING_D <= i
                a("s_waitcnt lgkmcnt(0)")
            issue_w(nw); nw += 1
    a.stamp(7)
    lp, dn = a.new("hpoll"), a.new("hpolled")
    a(f"s_mul_i32 s{T4}, s32, 7")
    a(f"s_lshr_b32 s{T4}, s{T4}, 1")
    a(f"s_lshl_b32 s{T4}, s{T4}, 2")
    a(f"s_add_u32 s{T4}, s{T4}, s{YF}")
    a("v_and_b32 v3, 3, v1")
    a("v_lshlrev_b32 v3, 2, v3")
    a.lab(lp)
    a(f"buffer_load_dword v2, v3, s[28:31], s{T4} offen sc1")
    a("s_waitcnt vmcnt(0)")
    a("v_cmp_ne_u32 vcc, 1, v2")
    a("s_nop 3")
    a("s_cmp_eq_u64 vcc, 0")
    a(f"s_cbranch_scc1 {dn}")
    a(f"s_sleep {int(E('HSLEEP', '2'))}")
    a(f"s_branch {lp}")
    a.lab(dn)
    a.stamp(8)
    ops.clear(); ops.append("base")
    for i in range(4):
        issue_h(i)
    for i in range(14):
        a(f"s_waitcnt vmcnt({wait_for(('h', i))})" + (" lgkmcnt(0)" if i in (0, 7, 13) else ""))
        base = WR[i % 7]
        for tt in range(2):
            for dt in range(2):
                acc = 64 + 16 * (2 * dt + tt)
                cc = "0" if i == 0 else v(acc, 16)
                a(f"v_mfma_f32_32x32x16_bf16 {v(acc,16)}, {v(base + 4*dt, 4)}, {v(HB[i % 4] + 4*tt, 4)}, {cc}")
        if i + 4 < 14: issue_h(i + 4)
        if i < 6:
            treads(i + 7, WR[i])
        if i == 0:
            a("s_waitcnt lgkmcnt(0)")
            issue_w(13)
        if i == 8:
            a(f"s_waitcnt vmcnt({min(wait_for(('w', 13)), 63)})")
            treads(13, WR[6])
            a("v_mov_b32 v2, 1")
            a(f"v_mov_b32 v3, {CNT_R}")
            a("s_waitcnt lgkmcnt(0)")
            a("s_mov_b64 exec, 1")
            a("ds_add_u32 v3, v2")
            a("s_mov_b64 exec, -1")
        if i == 9:
            a(f"s_lshl_b32 s{T0}, s{TB}, 6")
            a("v_lshrrev_b32 v2, 3, v0")
            a(f"v_add_u32 v3, s{T0}, v2")
            a(f"s_movk_i32 s{T1}, 896")
            a(f"v_mul_lo_u32 v4, v3, s{T1}")
            a("v_and_b32 v5, 7, v0")
            a("v_lshl_add_u32 v4, v5, 4, v4")
            a(f"s_lshl_b32 s{T0}, s{CB}, 7")
            a(f"v_add_u32 v14, s{T0}, v4")
            srd(a, SA, Q, 2048 * 896)
            a(f"buffer_load_dwordx4 v[128:131], v14, s[{SA}:{SA+3}], 0 offen")
            ops.append("x")
        if i == 6: a.stamp(9)
    a.stamp(10)
    lp, dn = a.new("pwait"), a.new("pwaited")
    a(f"v_mov_b32 v4, {CNT_Y}")
    a.lab(lp)
    a("ds_read_b64 v[2:3], v4")
    a("s_waitcnt lgkmcnt(0)")
    a(f"v_readfirstlane_b32 s{T0}, v2")
    a(f"v_readfirstlane_b32 s{T1}, v3")
    a("s_nop 3")
    a(f"s_lshl_b32 s{T0}, s{T0}, 8")
    a(f"s_add_u32 s{T0}, s{T0}, s{T1}")
    a(f"s_cmp_eq_u32 s{T0}, 0x408")
    a(f"s_cbranch_scc1 {dn}")
    a("s_sleep 1")
    a(f"s_branch {lp}")
    a.lab(dn)
    a("v_and_b32 v2, 31, v1")
    a("v_mul_u32_u24 v2, 272, v2")
    a("v_lshrrev_b32 v3, 5, v1")
    a("v_lshl_add_u32 v2, v3, 4, v2")
    a(f"s_mul_i32 s{T0}, s32, {PART}")
    a(f"v_add_u32 v2, s{T0}, v2")
    for tt in range(2):
        for dt in range(2):
            acc = 64 + 16 * (2 * dt + tt)
            for q in range(4):
                a(f"ds_write_b128 v2, {v(acc + 4*q, 4)} offset:{tt*32*272 + dt*128 + q*32}")
    a("s_branch k_final")

    a.lab("k_helper")
    a.role = "c"
    if E("HPRIO"): a(f"s_setprio {E('HPRIO')}")
    HW, MAT, MX, MW = R0, R1, R2, R3
    a(f"s_sub_u32 s{HW}, s32, 8")
    a(f"s_lshr_b32 s{MAT}, s{HW}, 1")
    a(f"s_lshl_b32 s{MX}, s{HW}, 12")
    a(f"s_lshl_b32 s{MW}, s{HW}, 11")
    a(f"s_add_u32 s{MW}, s{MW}, 16384")
    a(f"s_lshl_b32 s{T0}, s{RB}, 8")
    a(f"s_lshl_b32 s{T1}, s{HW}, 6")
    a(f"s_add_u32 s{T0}, s{T0}, s{T1}")
    a("v_lshrrev_b32 v2, 2, v1")
    a(f"v_add_u32 v2, s{T0}, v2")
    a(f"s_movk_i32 s{T1}, 896")
    a(f"v_mul_lo_u32 v2, v2, s{T1}")
    a("v_and_b32 v3, 3, v1")
    a("v_bfe_u32 v4, v1, 4, 2")
    a("v_xor_b32 v3, v3, v4")
    a("v_lshl_add_u32 v10, v3, 4, v2")
    a(f"s_and_b32 s{T0}, s{HW}, 1")
    a(f"s_lshl_b32 s{T0}, s{T0}, 4")
    a("v_lshrrev_b32 v2, 3, v1")
    a(f"v_add_u32 v2, s{T0}, v2")
    a(f"s_movk_i32 s{T1}, 3584")
    a(f"v_mul_lo_u32 v2, v2, s{T1}")
    a(f"s_lshl_b32 s{T0}, s{FB}, 7")
    a(f"v_add_u32 v2, s{T0}, v2")
    a("v_bfe_u32 v4, v1, 4, 1")
    a("v_lshlrev_b32 v4, 1, v4")
    a(f"s_lshl_b32 s{T0}, s{MAT}, 2")
    a(f"v_or_b32 v4, s{T0}, v4")
    a("v_and_b32 v3, 7, v1")
    a("v_xor_b32 v5, v3, v4")
    a("v_lshl_add_u32 v11, v5, 4, v2")
    a("s_waitcnt lgkmcnt(0)")
    srd(a, SA, Q, 2048 * 896)
    a(f"s_cmp_eq_u32 s{MAT}, 1")
    a(f"s_cselect_b32 s{SB}, s{WU}, s{WG}")
    a(f"s_cselect_b32 s{SB+1}, s{WU+1}, s{WG+1}")
    a(f"s_and_b32 s{SB+1}, s{SB+1}, 0xffff")
    a(f"s_mov_b32 s{SB+2}, {448 * 3584}")
    a(f"s_mov_b32 s{SB+3}, 0x00020000")
    def dma(c):
        st = c % NST
        for i in range(2):
            a(f"s_add_u32 m0, s{MW}, {st * STAGE + 1024 * i}")
            a(f"s_mov_b32 s{T0}, {(c * 32 + 8 * i) * 3584}")
            a(f"buffer_load_dwordx4 v11, s[{SB}:{SB+3}], s{T0} offen lds")
        for i in range(4):
            a(f"s_add_u32 m0, s{MX}, {st * STAGE + 1024 * i}")
            a(f"s_mov_b32 s{T0}, {64 * c + 14336 * i}")
            a(f"buffer_load_dwordx4 v10, s[{SA}:{SA+3}], s{T0} offen lds")
    PRO = int(E("PRO", "3"))
    PRO0 = int(E("PRO0", "2"))
    for c in range(PRO0):
        dma(c)
    srd(a, 28, WS, WS_REC)
    a("v_lshrrev_b32 v2, 3, v1")
    a("v_lshlrev_b32 v2, 7, v2")
    a("v_lshl_add_u32 v2, v5, 4, v2")
    a(f"v_add_u32 v20, s{MW}, v2")
    a(f"v_add_u32 v21, {SPS * STAGE}, v20")
    for r in range(24, 32):
        a(f"v_mov_b32 v{r}, 0")
    a("v_lshlrev_b32 v9, 4, v1")
    CHN, KROW = R4, R5
    a(f"s_lshl_b32 s{CHN}, s2, 1")
    a(f"s_add_u32 s{CHN}, s{CHN}, s{MAT}")
    a(f"s_lshl_b32 s{KROW}, s{CHN}, 12")
    a(f"s_add_u32 s{SC}, s{SSMK}, s{KROW}")
    a(f"s_addc_u32 s{SC+1}, s{SSMK+1}, 0")
    a(f"s_and_b32 s{SC+1}, s{SC+1}, 0xffff")
    a(f"s_movk_i32 s{SC+2}, 4096")
    a(f"s_mov_b32 s{SC+3}, 0x00020000")
    a(f"s_lshl_b32 s{T0}, s2, 2")
    a(f"s_load_dword s{T6}, s[{SSMD}:{SSMD+1}], s{T0}")
    a("v_subrev_u32 v12, 32, v9")
    a("v_subrev_u32 v13, 16, v9")
    a("v_add_u32 v14, 992, v9")
    BUF = [32, 40]
    def hreads(c):
        b = BUF[c & 1]
        stg = c % NST
        o = (stg % SPS) * STAGE
        for i in range(2):
            a(f"ds_read_b128 {v(b + 4*i, 4)}, v{20 + stg//SPS} offset:{o + 1024*i}")
    def hsum(c):
        b = BUF[c & 1]
        for i in range(8):
            t = 48 + 2 * (i & 1)
            unpack(a, t, b + i)
            a(f"v_add_f32 v{24 + 2*(i & 3)}, v{24 + 2*(i & 3)}, v{t}")
            a(f"v_add_f32 v{25 + 2*(i & 3)}, v{25 + 2*(i & 3)}, v{t+1}")
    BD = 104
    roff = [None, 0, 1024, 2048, 2080]
    CBASE, UBASE = T4, T5
    a(f"s_mul_i32 s{CBASE}, s{MAT}, {CONV_CH}")
    a(f"s_add_u32 s{CBASE}, s{CBASE}, {CONV0}")
    a(f"s_add_u32 s{UBASE}, s{CBASE}, {4 * CPITCH}")
    a(f"v_add_u32 v15, s{CBASE}, v9")
    woff = [0, 1024, 2048, 3072, 3104]
    EE = 144
    def build(r):
        D = BD + 8 * r
        E_ = EE + 12 * (r & 1)
        a(f"ds_write_b128 v15, {v(D,4)} offset:{woff[r]}")
        for p in range(4):
            a(f"v_alignbit_b32 v{E_+p}, v{D+p+1}, v{D+p}, 16")
        for p in range(4):
            a(f"v_mov_b32 v{E_+4+p}, v{D+p+1}")
        for p in range(4):
            a(f"v_alignbit_b32 v{E_+8+p}, v{D+p+2}, v{D+p+1}, 16")
        for sidx in range(3):
            a(f"ds_write_b128 v15, {v(E_+4*sidx,4)} offset:{woff[r] + (sidx+1)*CPITCH}")
    hops = []
    for c in range(PRO0): hops += [("d", c)] * 6
    nxt_d = PRO0
    def hwait(key):
        last = max(n for n, o in enumerate(hops) if o == key)
        return len(hops) - 1 - last
    KC = int(E("KC", "11"))
    BC = 99
    a(f"s_waitcnt vmcnt({hwait(('d', 0))})")
    a("s_barrier")
    a.stamp(2)
    for c in range(14):
        hreads(c)
        lim = min(13, c + PRO if c >= int(E("CATCH", "1")) else c + PRO0)
        while nxt_d <= lim:
            dma(nxt_d); hops += [("d", nxt_d)] * 6; nxt_d += 1
        if c == KC:
            a(f"s_lshl_b32 s{T2}, s2, 9")
            a(f"s_add_u32 s{T2}, s{T2}, {PFLAG}")
            a("v_and_b32 v17, 31, v1")
            a("v_lshlrev_b32 v17, 2, v17")
            a(f"buffer_load_dwordx4 {v(BD,4)}, v12, s[{SC}:{SC+3}], 0 offen")
            a(f"buffer_load_dwordx2 {v(BD+4,2)}, v13, s[{SC}:{SC+3}], 0 offen")
            for r in range(1, 5):
                a(f"buffer_load_dwordx4 {v(BD+8*r,4)}, v14, s[{SC}:{SC+3}], 0 offen offset:{roff[r]}")
                a(f"buffer_load_dwordx2 {v(BD+8*r+4,2)}, v14, s[{SC}:{SC+3}], 0 offen offset:{roff[r]+16}")
            hops += ["k"] * 10
            srd(a, SA, WD, 1792 * 896)
            a(f"s_mul_i32 s{T0}, s2, 7168")
            a(f"s_lshl_b32 s{T1}, s{HW}, 11")
            a(f"s_add_u32 s{T0}, s{T0}, s{T1}")
            a(f"buffer_load_dwordx4 v[52:55], v9, s[{SA}:{SA+3}], s{T0} offen")
            a(f"buffer_load_dwordx4 v[52:55], v9, s[{SA}:{SA+3}], s{T0} offen offset:1024")
            hops += ["p"] * 2
        if c == int(E("PMC", "13")):
            a(f"buffer_load_dword v16, v17, s[28:31], s{T2} offen sc1")
            hops += ["pm"]
        if c > 0:
            hsum(c - 1)
        if BC <= c < BC + 5 and not E('NOBUILD'):
            assert BC > KC + PRO
            build(c - BC)
        if c < 13:
            a(f"s_waitcnt vmcnt({hwait(('d', c + 1))}) lgkmcnt(0)")
            a("s_barrier")
        else:
            a("s_waitcnt lgkmcnt(0)")
    def urev_try():
        sk = a.new("k_urs")
        a("v_cmp_ne_u32 vcc, 1, v16")
        a(f"s_mov_b32 s{MX}, 0")
        a("s_nop 2")
        a("s_cmp_lg_u64 vcc, 0")
        a(f"s_cbranch_scc1 {sk}")
        a(f"s_add_u32 s{T0}, s{KROW}, {UREV_OFF}")
        a(f"s_add_u32 s{SC}, s{WS}, s{T0}")
        a(f"s_addc_u32 s{SC+1}, s{WS+1}, 0")
        a(f"s_and_b32 s{SC+1}, s{SC+1}, 0xffff")
        a(f"s_movk_i32 s{SC+2}, 4096")
        a(f"s_mov_b32 s{SC+3}, 0x00020000")
        for r in range(5):
            a(f"s_add_u32 m0, s{UBASE}, {r * 1024}")
            a(f"s_movk_i32 s{T0}, {r * 1024}")
            a(f"buffer_load_dwordx4 v9, s[{SC}:{SC+3}], s{T0} offen sc1 lds")
        a(f"s_mov_b32 s{MX}, 1")
        a("v_mov_b32 v2, 1")
        a(f"v_mov_b32 v3, {CNT_U}")
        a("s_mov_b64 exec, 1")
        a("ds_add_u32 v3, v2")
        a("s_mov_b64 exec, -1")
        a.lab(sk)
    hsum(13)
    a.stamp(3)
    a("v_and_b32 v2, 8, v1")
    a("v_cmp_ne_u32 vcc, 0, v2")
    a("s_nop 1")
    for j in range(4):
        a(f"v_cndmask_b32 v{32+j}, v{24+j}, v{28+j}, vcc")
        a(f"v_cndmask_b32 v{36+j}, v{28+j}, v{24+j}, vcc")
    a("s_nop 1")
    for j in range(4):
        a(f"v_add_f32_dpp v{24+j}, v{36+j}, v{32+j} row_ror:8 row_mask:0xf bank_mask:0xf")
    a("s_nop 1")
    a("v_permlane16_swap_b32 v24, v26")
    a("v_permlane16_swap_b32 v25, v27")
    a("s_nop 1")
    a("v_add_f32 v24, v24, v26")
    a("v_add_f32 v25, v25, v27")
    a("s_nop 1")
    a("v_permlane32_swap_b32 v24, v25")
    a("s_nop 1")
    a("v_add_f32 v24, v24, v25")
    a("v_cvt_pk_bf16_f32 v26, v24, v24")
    a("v_lshlrev_b32 v27, 16, v26")
    a("v_sub_f32 v24, v24, v27")
    a("v_cvt_pk_bf16_f32 v28, v24, v24")
    a("v_lshlrev_b32 v27, 16, v28")
    a("v_sub_f32 v24, v24, v27")
    a("v_cvt_pk_bf16_f32 v29, v24, v24")
    a("v_and_b32 v2, 7, v1")
    a("v_bfe_u32 v3, v1, 3, 1")
    a("v_lshlrev_b32 v2, 3, v2")
    a("v_lshl_add_u32 v2, v3, 2, v2")
    a("v_bfe_u32 v3, v1, 4, 1")
    a("v_lshl_add_u32 v2, v3, 1, v2")
    a("v_lshrrev_b32 v3, 5, v1")
    a("v_add_u32 v2, v2, v3")
    a(f"s_lshl_b32 s{T0}, s{MAT}, 10")
    a(f"s_add_u32 s{T0}, s{T0}, {A_CS}")
    a(f"v_lshl_add_u32 v2, v2, 4, s{T0}")
    lh, lj = a.new("k_csh"), a.new("k_csj")
    a(f"s_and_b32 s{T1}, s{HW}, 1")
    a(f"s_cmp_eq_u32 s{T1}, 1")
    a(f"s_cbranch_scc1 {lh}")
    a("v_and_b32 v26, 0xffff, v26")
    a("v_lshl_or_b32 v26, v28, 16, v26")
    a("ds_write_b32 v2, v26")
    a("ds_write_b16 v2, v29 offset:4")
    a(f"s_branch {lj}")
    a.lab(lh)
    a("v_and_b32 v28, 0xffff, v28")
    a("v_lshl_or_b32 v28, v29, 16, v28")
    a("v_mov_b32 v29, 0")
    a("ds_write_b16 v2, v26 offset:6")
    a("ds_write_b64 v2, v[28:29] offset:8")
    a.lab(lj)
    a("s_waitcnt lgkmcnt(0)")
    a("s_barrier")
    a.stamp(4)

    a(f"s_setprio {int(E('CPRIO', '1'))}")
    lb = a.new("k_kw")
    a(f"s_waitcnt vmcnt({hwait('pm')})")
    urev_try()
    a(f"s_cmp_eq_u32 s{MX}, 1")
    a(f"s_cbranch_scc1 {lb}")
    a(f"buffer_load_dword v16, v17, s[28:31], s{T2} offen sc1")
    a("s_waitcnt vmcnt(1)")
    a.lab(lb)
    a("s_waitcnt vmcnt(5)")
    a.stamp(11)
    for r in range(5):
        build(r)
        if r in (1, 3):
            lb = a.new("k_mid")
            a(f"s_cmp_eq_u32 s{MX}, 1")
            a(f"s_cbranch_scc1 {lb}")
            a("s_waitcnt vmcnt(0)")
            urev_try()
            a(f"s_cmp_eq_u32 s{MX}, 1")
            a(f"s_cbranch_scc1 {lb}")
            a(f"buffer_load_dword v16, v17, s[28:31], s{T2} offen sc1")
            a.lab(lb)
            a("s_waitcnt lgkmcnt(0)")
        elif r < 4: a("s_waitcnt lgkmcnt(4)")
    a.stamp(12)
    lp, ok = a.new("k_ppl"), a.new("k_ppk")
    a.lab(lp)
    a(f"s_cmp_eq_u32 s{MX}, 1")
    a(f"s_cbranch_scc1 {ok}")
    a("s_waitcnt vmcnt(0)")
    urev_try()
    a(f"s_cmp_eq_u32 s{MX}, 1")
    a(f"s_cbranch_scc1 {ok}")
    a("s_sleep 4")
    a(f"buffer_load_dword v16, v17, s[28:31], s{T2} offen sc1")
    a(f"s_branch {lp}")
    a.lab(ok)
    a.stamp(5)
    a("v_and_b32 v2, 15, v1")
    a("v_lshrrev_b32 v3, 4, v1")
    a("v_lshl_add_u32 v4, v3, 3, v2")
    a("v_add_u32 v4, 1, v4")
    a("v_and_b32 v5, 3, v4")
    a(f"v_mul_u32_u24 v5, {CPITCH}, v5")
    a("v_lshrrev_b32 v4, 2, v4")
    a("v_lshl_add_u32 v5, v4, 3, v5")
    a(f"v_add_u32 v22, s{CBASE}, v5")
    a("v_lshlrev_b32 v4, 5, v2")
    a("v_sub_u32 v4, 480, v4")
    a("v_lshl_add_u32 v4, v3, 4, v4")
    a(f"v_add_u32 v23, s{UBASE}, v4")
    a("v_lshlrev_b32 v4, 5, v2")
    a("v_lshl_add_u32 v8, v3, 3, v4")
    a("v_sub_u32 v5, 504, v8")
    a(f"v_add_u32 v19, s{UBASE}, v5")
    a(f"s_add_u32 s{KROW}, s{KROW}, {Y2_OFF}")
    a(f"s_cmp_eq_u32 s{MAT}, 0")
    a(f"s_cselect_b32 s{T0}, 16, 0")
    a(f"s_lshl_b32 s{T6}, s{T6}, s{T0}")
    a(f"s_and_b32 s{T6}, s{T6}, 0xffff0000")
    a("s_waitcnt vmcnt(0) lgkmcnt(0)")
    a.stamp(6)
    a(f"s_and_b32 s{T0}, s{HW}, 1")
    a(f"s_cmp_eq_u32 s{T0}, 1")
    a("s_cbranch_scc1 k_conv1")
    def conv_body(tiles):
        amax = max(tiles)
        SET = [(40, 72), (104, 136)]
        def rd(c0i):
            Tb, Hb = SET[c0i & 1]
            L = []
            for k in range(amax + 1):
                L.append(f"ds_read_b64 {v(Tb+4*k,2)}, v22 offset:{64*c0i + 512*k}")
                L.append(f"ds_read_b64 {v(Tb+4*k+2,2)}, v22 offset:{64*c0i + 512*k + 8}")
                L.append(f"ds_read_b128 {v(Hb+4*k,4)}, v23 offset:{64*c0i + 512*(7-k)}")
            return L
        for x in rd(0): a(x)
        for c0i in range(int(E('NC0', '8'))):
            Tb, Hb = SET[c0i & 1]
            a("s_waitcnt lgkmcnt(0)")
            nxt = rd(c0i + 1) if c0i < int(E('NC0', '8')) - 1 else []
            mf = []
            lists = [[(bi, aa, b - aa) for aa in range(b + 1)] for bi, b in enumerate(tiles)]
            while any(lists):
                for l_ in lists:
                    if l_: mf.append(l_.pop(0))
            seen = set()
            for n, (bi, aa, m) in enumerate(mf):
                acc = 24 + 4 * bi
                cc = "0" if (c0i == 0 and bi not in seen) else v(acc, 4)
                seen.add(bi)
                a(f"v_mfma_f32_16x16x32_bf16 {v(acc,4)}, {v(Tb+4*aa,4)}, {v(Hb+4*m,4)}, {cc}")
                for _ in range(2):
                    if nxt: a(nxt.pop(0))
            assert not nxt
        for bi, b in enumerate(tiles):
            a(f"ds_read_b64 {v(40+2*bi,2)}, v19 offset:{512*(7-b)}")
        a("s_waitcnt lgkmcnt(0)")
        a("s_nop 4")
        for bi, b in enumerate(tiles):
            acc = 24 + 4 * bi
            K0, K1 = 40 + 2 * bi, 41 + 2 * bi
            T = 48 + 8 * bi
            a(f"v_and_b32 v{T+0}, 0xffff0000, v{K1}")
            a(f"v_lshlrev_b32 v{T+1}, 16, v{K1}")
            a(f"v_and_b32 v{T+2}, 0xffff0000, v{K0}")
            a(f"v_lshlrev_b32 v{T+3}, 16, v{K0}")
            for e in range(4):
                a(f"v_fma_f32 v{T+e}, s{T6}, v{T+e}, v{acc+e}")
            a(f"v_cvt_pk_bf16_f32 v{T+4}, v{T+0}, v{T+1}")
            a(f"v_cvt_pk_bf16_f32 v{T+5}, v{T+2}, v{T+3}")
            a(f"buffer_store_dwordx2 {v(T+4,2)}, v8, s[28:31], s{KROW} offen offset:{512*b} sc1")
    conv_body([0, 3, 4, 7])
    a("s_branch k_conv_done")
    a.lab("k_conv1")
    conv_body([1, 2, 5, 6])
    a.lab("k_conv_done")
    a.stamp(7)
    a(f"s_lshr_b32 s{T0}, s2, 5")
    a(f"s_lshl_b32 s{T0}, s{T0}, 12")
    a(f"s_and_b32 s{T1}, s2, 31")
    a(f"s_lshl_b32 s{T1}, s{T1}, 2")
    a(f"s_add_u32 s{T0}, s{T0}, s{T1}")
    a(f"s_add_u32 s{T0}, s{T0}, {YFLAG}")
    a("v_lshrrev_b32 v5, 3, v1")
    a(f"v_mul_u32_u24 v5, {56*512}, v5")
    a("v_and_b32 v6, 7, v1")
    a("v_lshl_add_u32 v5, v6, 9, v5")
    a("s_waitcnt vmcnt(0)")
    a.stamp(8)
    arrive_publish(a, CNT_Y, 4, T0, 5, 32)
    a("v_lshrrev_b32 v6, 3, v1")
    a("v_and_b32 v7, 7, v1")
    a("v_lshlrev_b32 v5, 4, v7")
    a("v_lshl_add_u32 v5, v6, 12, v5")
    a(f"s_lshl_b32 s{T1}, s{CB}, 18")
    a(f"s_lshl_b32 s{T2}, s{TB}, 7")
    a(f"s_add_u32 s{T1}, s{T1}, s{T2}")
    a(f"s_lshl_b32 s{T2}, s{HW}, 16")
    a(f"s_add_u32 s{T1}, s{T1}, s{T2}")
    a(f"s_add_u32 s{T1}, s{T1}, {Y2_OFF}")
    a(f"s_add_u32 s{T2}, s{T1}, {8*4096}")
    a(f"s_lshl_b32 s{T0}, s{HW}, 1")
    a(f"v_xor_b32 v8, s{T0}, v7")
    a("v_lshlrev_b32 v8, 4, v8")
    a("v_lshl_add_u32 v8, v7, 10, v8")
    a("v_lshl_add_u32 v8, v6, 1, v8")
    a(f"v_add_u32 v8, {Y2S}, v8")
    a("v_xor_b32 v9, 16, v8")
    a(f"s_lshl_b32 s{T0}, s2, 9")
    a(f"s_lshl_b32 s{T4}, s{HW}, 5")
    a(f"s_add_u32 s{T0}, s{T0}, s{T4}")
    a(f"s_add_u32 s{T0}, s{T0}, {YFLAG}")
    poll(a, T0, 8, sleep=8)
    a.stamp(9)
    a(f"buffer_load_dwordx4 v[24:27], v5, s[28:31], s{T1} offen sc1")
    a(f"buffer_load_dwordx4 v[28:31], v5, s[28:31], s{T2} offen sc1")
    for it in range(2):
        a(f"s_waitcnt vmcnt({1-it})")
        for e in range(8):
            op = "ds_write_b16_d16_hi" if e & 1 else "ds_write_b16"
            a(f"{op} v{8+it}, v{24 + 4*it + e//2} offset:{e*128}")
    lb = a.new("k_nost")
    a("s_cmp_lg_u32 s32, 8")
    a(f"s_cbranch_scc1 {lb}")
    a(f"s_lshl_b32 s{T0}, s2, 9")
    a(f"s_and_b32 s{T1}, s{TB}, 3")
    a(f"s_lshl_b32 s{T1}, s{T1}, 4")
    a(f"s_add_u32 s{T0}, s{T0}, s{T1}")
    a(f"s_add_u32 s{T0}, s{T0}, {HFLAG}")
    poll(a, T0, 4, sleep=8)
    a("v_lshlrev_b32 v7, 3, v1")
    a(f"s_lshl_b32 s{T2}, s{TB}, 9")
    a(f"s_add_u32 s{T2}, s{T2}, {STATS_OFF}")
    a(f"buffer_load_dwordx2 v[24:25], v7, s[28:31], s{T2} offen sc1")
    a(f"v_add_u32 v7, {STS}, v7")
    a("s_waitcnt vmcnt(0)")
    a("ds_write_b64 v7, v[24:25]")
    a.lab(lb)
    a.stamp(10)
    a("s_waitcnt lgkmcnt(0)")
    a("s_barrier")
    a.fin()
    a("s_endpgm")

    a.lab("k_final")
    a.role = "f"
    a.stamp(11)
    a("s_waitcnt vmcnt(0) lgkmcnt(0)")
    a("s_barrier")
    a.stamp(12)
    a("v_lshrrev_b32 v2, 3, v0")
    a("v_and_b32 v3, 7, v0")
    a("v_mul_u32_u24 v4, 272, v2")
    a("v_lshl_add_u32 v4, v3, 5, v4")
    a(f"v_add_u32 v5, {3*PART}, v4")
    a(f"v_add_u32 v8, {6*PART}, v4")
    a("v_lshlrev_b32 v7, 3, v2")
    a(f"v_add_u32 v7, {STS}, v7")
    a("ds_read_b64 v[18:19], v7")
    PR = [24, 32, 40, 48, 96, 104, 112, 120]
    for w in range(8):
        ad = (4, 5, 8)[w // 3]
        for hh in range(2):
            a(f"ds_read_b128 {v(PR[w] + 4*hh, 4)}, v{ad} offset:{(w % 3) * PART + 16*hh}")
        if w == 5: a("s_waitcnt lgkmcnt(8)")
    a("v_lshrrev_b32 v6, 3, v2")
    a("v_xor_b32 v6, v6, v3")
    a("v_lshlrev_b32 v6, 4, v6")
    a("v_lshl_add_u32 v6, v2, 7, v6")
    a(f"v_add_u32 v6, {Y2S}, v6")
    a("ds_read_b128 v[56:59], v6")
    srd(a, SB, OUT, 2048 * 896)
    X, XN, Y = 64, 72, 80
    for i in range(4):
        unpack(a, X + 2 * i, 128 + i)
    a("v_rcp_f32 v21, v19")
    for e in range(8):
        a(f"v_sub_f32 v{XN+e}, v{X+e}, v18")
    a("v_mul_f32 v22, v21, v21")
    for e in range(8):
        a(f"v_mul_f32 v{XN+e}, v{XN+e}, v21")
    a("s_waitcnt lgkmcnt(0)")
    for (d, s_) in ((0, 1), (2, 3), (4, 5), (6, 7), (0, 2), (4, 6), (0, 4)):
        for i in range(0, 8, 2):
            a(f"v_pk_add_f32 {v(PR[d]+i,2)}, {v(PR[d]+i,2)}, {v(PR[s_]+i,2)}")
    for e in range(8):
        a(f"v_mul_f32 v{24+e}, v{24+e}, v22")
    for e in range(8):
        a(f"v_mul_f32 v{32+e}, 0xbfb8aa3b, v{24+e}")
    for e in range(8):
        a(f"v_exp_f32 v{32+e}, v{32+e}")
    for i in range(4):
        unpack(a, Y + 2 * i, 56 + i)
    for e in range(8):
        a(f"v_add_f32 v{32+e}, 1.0, v{32+e}")
    for e in range(8):
        a(f"v_rcp_f32 v{32+e}, v{32+e}")
    for e in range(8):
        a(f"v_mul_f32 v{XN+e}, v{XN+e}, v{Y+e}")
    for e in range(8):
        a(f"v_mul_f32 v{24+e}, v{24+e}, v{32+e}")
    for e in range(8):
        a(f"v_fma_f32 v{24+e}, v{XN+e}, v{24+e}, v{X+e}")
    for i in range(4):
        a(f"v_cvt_pk_bf16_f32 v{88+i}, v{24+2*i}, v{24+2*i+1}")
    for _ in range(int(E("ENDSLEEP", "0"))): a("s_sleep 32")
    if E("TGLOB"):
        a("v_mov_b32 v2, 0")
        a(f"global_load_dword v3, v2, s[{DBG}:{DBG+1}] offset:128 sc1")
        a("s_waitcnt vmcnt(0)")
        a("v_readfirstlane_b32 s96, v3")
        a("s_nop 3")
        a("s_not_b32 s96, s96")
    if E("TFIX"):
        lp = a.new("tfix")
        a.lab(lp)
        a("s_memrealtime s[98:99]")
        a("s_waitcnt lgkmcnt(0)")
        a("s_sub_u32 s98, s98, s96")
        a(f"s_cmp_lt_u32 s98, {int(E('TFIX'))}")
        a(f"s_cbranch_scc1 {lp}")
    a(f"buffer_store_dwordx4 v[88:91], v14, s[{SB}:{SB+3}], 0 offen {E('OST', 'sc1')}")
    a.fin()
    a("s_endpgm")

    a.lab("k_prep")
    a.role = "p"
    P = R0
    a(f"s_sub_u32 s{P}, s2, 224")
    a("s_waitcnt lgkmcnt(0)")
    srd(a, 28, WS, WS_REC)
    a("s_cmp_ge_u32 s32, 8")
    a("s_cbranch_scc1 k_end")
    a("s_cmp_eq_u32 s32, 7")
    a("s_cbranch_scc1 k_prep_flags")
    srd(a, SA, K_, 2048 * 896)
    srd(a, SB, V_, 2048 * 896)
    srd(a, SC, SK, 448 * 8)
    a(f"s_movk_i32 s{T0}, 1171")
    a(f"v_mul_lo_u32 v2, v0, s{T0}")
    a("v_lshrrev_b32 v2, 16, v2")
    a("v_mul_u32_u24 v3, 56, v2")
    a("v_sub_u32 v3, v0, v3")
    a(f"s_lshl_b32 s{T0}, s{P}, 6")
    a(f"v_lshl_add_u32 v4, v2, 3, s{T0}")
    a(f"s_movk_i32 s{T1}, 896")
    a(f"v_mul_lo_u32 v4, v4, s{T1}")
    a("v_lshl_add_u32 v11, v3, 4, v4")
    a("v_subrev_u32 v10, 2688, v11")
    a("v_add_u32 v12, 3584, v11")
    a("v_lshlrev_b32 v13, 6, v3")
    KR, VR, SW = 16, 60, 92
    PD = E("PDELAY", "1") == "1"
    for i in range(4):
        a(f"buffer_load_dwordx4 {v(SW+4*i,4)}, v13, s[{SC}:{SC+3}], 0 offen offset:{16*i}")
    if PD: a("s_waitcnt vmcnt(0)")
    for r in range(11):
        if r < 3: ad, off = 10, r * 896
        elif r < 7: ad, off = 11, (r - 3) * 896
        else: ad, off = 12, (r - 7) * 896
        a(f"buffer_load_dwordx4 {v(KR+4*r,4)}, v{ad}, s[{SA}:{SA+3}], 0 offen offset:{off}")
    for r in range(8):
        ad, off = (11, r * 896) if r < 4 else (12, (r - 4) * 896)
        a(f"buffer_load_dwordx4 {v(VR+4*r,4)}, v{ad}, s[{SB}:{SB+3}], 0 offen offset:{off}")
    a("v_sub_u32 v5, 7, v2")
    a("v_and_b32 v6, 7, v3")
    a("v_xor_b32 v5, v5, v6")
    a("v_lshlrev_b32 v5, 4, v5")
    a("v_lshl_add_u32 v14, v3, 10, v5")
    a.stamp(2)
    a("s_waitcnt vmcnt(0)")
    a.stamp(3)
    WF, KF, RES, OUT_ = 108, 116, 138, 154
    for p in range(4):
        for e in range(2):
            ch = 2 * p + e
            for tap in range(4):
                src = SW + 2 * ch + (tap >> 1)
                if tap & 1: a(f"v_and_b32 v{WF + 2*tap + e}, 0xffff0000, v{src}")
                else: a(f"v_lshlrev_b32 v{WF + 2*tap + e}, 16, v{src}")
        for r in range(11):
            unpack(a, KF + 2 * r, KR + 4 * r + p)
        for i in range(8):
            a(f"v_pk_mul_f32 {v(RES+2*i,2)}, {v(KF+2*i,2)}, {v(WF+6,2)}")
        for tap in (2, 1, 0):
            for i in range(8):
                a(f"v_pk_fma_f32 {v(RES+2*i,2)}, {v(KF+2*(i+3-tap),2)}, {v(WF+2*tap,2)}, {v(RES+2*i,2)}")
        for r in range(8):
            unpack(a, KF + 2 * r, VR + 4 * r + p)
        for i in range(8):
            a(f"v_pk_mul_f32 {v(RES+2*i,2)}, {v(RES+2*i,2)}, {v(KF+2*i,2)}")
        for e in range(2):
            for d in range(4):
                a(f"v_cvt_pk_bf16_f32 v{OUT_+4*e+d}, v{RES+2*(7-2*d)+e}, v{RES+2*(6-2*d)+e}")
        for e in range(2):
            a(f"ds_write_b128 v14, {v(OUT_+4*e,4)} offset:{(2*p+e)*128}")
    a("s_branch k_prep_bar")
    a.lab("k_prep_flags")
    a("v_mov_b32 v4, 0")
    a("v_mov_b32 v5, 0")
    a("v_mov_b32 v6, 0")
    a("v_mov_b32 v7, 0")
    a("v_lshlrev_b32 v2, 4, v1")
    a(f"s_mul_i32 s{T0}, s{P}, 3584")
    a(f"s_add_u32 s{T0}, s{T0}, {FLAG_OFF}")
    for q in range(4):
        if q == 3: a("s_mov_b32 exec_hi, 0")
        a(f"buffer_store_dwordx4 v[4:7], v2, s[28:31], s{T0} offen offset:{1024*q} sc1")
    a("s_mov_b64 exec, 1")
    a("v_mov_b32 v3, 1")
    a("s_waitcnt vmcnt(0) lgkmcnt(0)")
    a(f"global_atomic_add v4, v3, s[{DBG}:{DBG+1}] sc1")
    a("s_mov_b64 exec, -1")
    a.lab("k_prep_bar")
    a.stamp(4)
    a("s_waitcnt lgkmcnt(0)")
    a("s_barrier")
    a.stamp(5)
    a("v_lshrrev_b32 v2, 3, v0")
    a("v_and_b32 v3, 7, v0")
    a("v_xor_b32 v4, s32, v3")
    a("v_lshlrev_b32 v4, 4, v4")
    a("v_lshl_add_u32 v4, v2, 7, v4")
    a("v_lshlrev_b32 v5, 4, v3")
    a("v_lshl_add_u32 v5, v2, 12, v5")
    for it in range(7):
        a(f"ds_read_b128 {v(32+4*it,4)}, v4 offset:{it*8192}")
    a(f"s_lshl_b32 s{T0}, s{P}, 7")
    a(f"s_sub_u32 s{T0}, {UREV_OFF + 1984*2}, s{T0}")
    for it in range(7):
        a(f"s_waitcnt lgkmcnt({6-it})")
        a(f"buffer_store_dwordx4 {v(32+4*it,4)}, v5, s[28:31], s{T0} offen sc1")
        a(f"s_add_u32 s{T0}, s{T0}, {64*4096}")
    lb, lp = a.new("k_prep_icd"), a.new("k_prep_icl")
    a("s_cmp_lg_u32 s32, 7")
    a(f"s_cbranch_scc1 {lb}")
    a("v_mov_b32 v22, 0")
    a.lab(lp)
    a(f"global_load_dword v23, v22, s[{DBG}:{DBG+1}] sc1")
    a("s_waitcnt vmcnt(0)")
    a(f"v_readfirstlane_b32 s{T0}, v23")
    a("s_nop 3")
    a(f"s_cmp_ge_u32 s{T0}, 32")
    a(f"s_cbranch_scc1 {lb}")
    a("s_sleep 12")
    a(f"s_branch {lp}")
    a.lab(lb)
    a("s_waitcnt vmcnt(0)")
    a("s_barrier")
    a.stamp(6)
    lb = a.new("k_prep_np")
    a("s_cmp_lg_u32 s32, 7")
    a(f"s_cbranch_scc1 {lb}")
    a("v_lshlrev_b32 v4, 9, v1")
    a(f"s_lshl_b32 s{T0}, s{P}, 2")
    a(f"s_add_u32 s{T0}, s{T0}, {PFLAG}")
    a("v_mov_b32 v3, 1")
    for q in range(4):
        if q == 3: a("s_mov_b32 exec_hi, 0")
        a(f"buffer_store_dword v3, v4, s[28:31], s{T0} offen sc1")
        a(f"s_add_u32 s{T0}, s{T0}, {64*512}")
    a("s_mov_b64 exec, -1")
    a("s_waitcnt vmcnt(0)")
    a.lab(lb)
    if E("PWD", "0") == "1":
        a("s_barrier")
        srd(a, SA, WD, 1792 * 896)
        PW0 = int(E("PW0", "96"))
        rows = 224 - PW0
        a(f"s_mul_i32 s{T0}, s32, {224 * 896}")
        a(f"s_lshr_b32 s{T1}, s{P}, 3")
        a(f"s_mul_i32 s{T1}, s{T1}, {rows * 896 // 4}")
        a(f"s_add_u32 s{T0}, s{T0}, s{T1}")
        a(f"s_add_u32 s{T0}, s{T0}, {PW0 * 896}")
        a("v_lshlrev_b32 v2, 4, v1")
        n = rows * 896 // 4 // 1024
        for i in range(n):
            a(f"buffer_load_dwordx4 {v(16 + 4 * (i % 32), 4)}, v2, s[{SA}:{SA+3}], s{T0} offen offset:{(i % 4) * 1024}")
            if i % 4 == 3: a(f"s_add_u32 s{T0}, s{T0}, 4096")
    a.fin()
    a.lab("k_end")
    a.lab("k_last")
    a("s_endpgm")

HDR = open("cdna_kernels/" + NAME + ".s.ref").read().split("; Override launch")[0]

def main():
    out = sys.argv[1] if len(sys.argv) > 1 else f"cdna_kernels/{NAME}.s"
    a = A()
    kernel(a)
    txt = HDR
    txt += f"; @launch grid=(256,1,1) block=(768,1,1) lds={LDS}\n"
    txt += '.amdgcn_target "amdgcn-amd-amdhsa--gfx950"\n.text\n'
    txt += f".globl {KN}\n.p2align 8\n.type {KN},@function\n" + "\n".join(a.L) + "\n"
    txt += f'''.section .rodata,"a"
.p2align 6
.amdhsa_kernel {KN}
  .amdhsa_next_free_vgpr 168
  .amdhsa_next_free_sgpr 102
  .amdhsa_accum_offset 168
  .amdhsa_group_segment_fixed_size 0
  .amdhsa_kernarg_size 104
  .amdhsa_user_sgpr_count 2
  .amdhsa_user_sgpr_kernarg_segment_ptr 1
  .amdhsa_system_sgpr_workgroup_id_x 1
.end_amdhsa_kernel
'''
    open(out, "w").write(txt)

if __name__ == "__main__":
    main()
```

```python
import sys, os
E = os.environ.get

NAME = "recurrent_scan__ssm_conv_h3__glu_gated_reglu__prompt"
KN = NAME + "_kernel"
H_OFF = 0
UREV_OFF = 0x700000
STATS_OFF = 0x8C0000
FLAG_OFF = 0x8D0000
HFLAG = FLAG_OFF
YFLAG = FLAG_OFF + 128
PFLAG = FLAG_OFF + 256
SFLAG = FLAG_OFF + 384
Y2_OFF = 0x900000
WS_REC = 0x1000000
DIAG = int(E("DIAG", "0"))
DIAG_OFF = 0xC00000

class A:
    def __init__(self):
        self.L = []
        self.n = 0
    def __call__(self, s):
        self.L.append("    " + s)
    def lab(self, s):
        self.L.append(s + ":")
    def new(self, p="L"):
        self.n += 1
        return f"{p}_{self.n}"
    def stamp(self, i, real=False):
        if E("LOOPST") and 5 <= i <= 10 and getattr(self, "post", False): return
        if E("TM"):
            role, idx, mode, wv = E("TM").split(":")
            if getattr(self, "role", "") == role and int(idx) == i:
                lb = self.new("tm")
                self(f"s_cmp_lg_u32 s32, {wv}")
                self(f"s_cbranch_scc1 {lb}")
                self("s_memrealtime s[98:99]")
                self("s_waitcnt lgkmcnt(0)")
                self("s_sub_u32 s98, s98, s96")
                if mode == "min": self("s_sub_u32 s98, 0x10000, s98")
                r = 26 if (role == "g" and i <= 4) else 2
                self(f"v_mov_b32 v{r}, 0")
                self(f"v_mov_b32 v{r+1}, s98")
                self("s_mov_b64 exec, 1")
                self(f"global_atomic_umax v{r}, v{r+1}, s[24:25] offset:128 sc1")
                self("s_mov_b64 exec, -1")
                self.lab(lb)
        if E("TP"):
            role, idx, T = E("TP").split(":")
            if getattr(self, "role", "") == role and int(idx) == i:
                lp = self.new("tprobe")
                self.lab(lp)
                self("s_memrealtime s[98:99]")
                self("s_waitcnt lgkmcnt(0)")
                self("s_sub_u32 s98, s98, s96")
                self(f"s_cmp_lt_u32 s98, {T}")
                self(f"s_cbranch_scc1 {lp}")
        if E("LOOPST") and 5 <= i <= 10 and getattr(self, "post", False): return
        if DIAG:
            self(f"s_memrealtime s[{60+2*i}:{61+2*i}]" if (real or DIAG == 2) else f"s_memtime s[{60+2*i}:{61+2*i}]")
    def fin(self, vt=160):
        if DIAG:
            self.stamp(13)
            self("s_waitcnt vmcnt(0)")
            self.stamp(14)
            self.stamp(15, True)
            self("s_waitcnt lgkmcnt(0)")
            self("s_lshl_b32 s33, s2, 4")
            self("s_add_u32 s33, s33, s32")
            self("s_lshl_b32 s33, s33, 7")
            self(f"s_add_u32 s33, s33, {DIAG_OFF}")
            self(f"v_mov_b32 v{vt}, 0")
            for i in range(16):
                self(f"v_mov_b32 v{vt+1}, s{60+2*i}")
                self(f"buffer_store_dword v{vt+1}, v{vt}, s[28:31], s33 offen offset:{4*i}")

def v(a, n=1):
    return f"v{a}" if n == 1 else f"v[{a}:{a+n-1}]"

def srd(a, dst, lo, nrec):
    a(f"s_mov_b32 s{dst}, s{lo}")
    a(f"s_and_b32 s{dst+1}, s{lo+1}, 0xffff")
    a(f"s_mov_b32 s{dst+2}, {nrec}")
    a(f"s_mov_b32 s{dst+3}, 0x00020000")

def bf16r(a, dst, src):
    a(f"v_cvt_pk_bf16_f32 v{dst}, v{src}, v{src}")
    a(f"v_lshlrev_b32 v{dst}, 16, v{dst}")

def unpack(a, dst, src):
    a(f"v_lshlrev_b32 v{dst}, 16, v{src}")
    a(f"v_and_b32 v{dst+1}, 0xffff0000, v{src}")

STAGE = 24576
NST = 4
SPS = 2
RING_D = 6
RING = RING_D * 2048
PART = 64 * 272
CONV0 = 8 * RING
CPITCH = 4160
CONV_CH = 4 * CPITCH + 5120
A_STATS = CONV0 + 2 * CONV_CH
A_CS = A_STATS + 1024
Y2S = A_CS + 2048
STS = Y2S + 8192
SYNC = STS + 512
CNT_H, CNT_U, CNT_Y, CNT_R = SYNC, SYNC + 4, SYNC + 8, SYNC + 12
LDS = SYNC + 64

Q, K_, V_, SK, SSMK, SSMD, WG, WU, WD, OUT, DBG, WS = 4, 6, 8, 10, 12, 14, 16, 18, 20, 22, 24, 26
SA, SB, SC = 36, 40, 44
RB, FB, XCD, J, TB, CB = 48, 49, 50, 51, 52, 53
R0, R1, R2, R3, R4, R5 = 54, 55, 56, 57, 58, 59
T0, T1, T2 = 33, 34, 35
T3, T4, T5, T6 = 92, 93, 94, 95

def lds_spin(a, word, vt=2, sleep=1, mask=None):
    lp, dn = a.new("spin"), a.new("spun")
    a(f"v_mov_b32 v{vt+1}, {word}")
    a.lab(lp)
    a(f"ds_read_b32 v{vt}, v{vt+1}")
    a("s_waitcnt lgkmcnt(0)")
    a(f"v_readfirstlane_b32 s{T3}, v{vt}")
    a("s_nop 3")
    if mask is None:
        a(f"s_cmp_lg_u32 s{T3}, 0")
    else:
        a(f"s_and_b32 s{T3}, s{T3}, s{mask}")
        a(f"s_cmp_eq_u32 s{T3}, s{mask}")
    a(f"s_cbranch_scc1 {dn}")
    a(f"s_sleep {sleep}")
    a(f"s_branch {lp}")
    a.lab(dn)

def lds_set(a, word, vt=2):
    a(f"v_mov_b32 v{vt}, 1")
    a(f"v_mov_b32 v{vt+1}, {word}")
    a(f"ds_write_b32 v{vt+1}, v{vt}")

def poll(a, soff, nwords, vt=2, sleep=12):
    lp, dn = a.new("poll"), a.new("polled")
    a(f"v_min_u32 v{vt+1}, {nwords-1}, v1")
    a(f"v_lshlrev_b32 v{vt+1}, 2, v{vt+1}")
    a.lab(lp)
    a(f"buffer_load_dword v{vt}, v{vt+1}, s[28:31], s{soff} offen sc1")
    a("s_waitcnt vmcnt(0)")
    a(f"v_cmp_ne_u32 vcc, 1, v{vt}")
    a("s_nop 3")
    a("s_cmp_eq_u64 vcc, 0")
    a(f"s_cbranch_scc1 {dn}")
    a(f"s_sleep {sleep}")
    a(f"s_branch {lp}")
    a.lab(dn)

def arrive_publish(a, cnt, n, soff, voff, lanes, vt=2):
    sk = a.new("nopub")
    a(f"v_mov_b32 v{vt}, 1")
    a(f"v_mov_b32 v{vt+1}, {cnt}")
    a("s_mov_b64 exec, 1")
    a(f"ds_add_rtn_u32 v{vt+2}, v{vt+1}, v{vt}")
    a("s_mov_b64 exec, -1")
    a("s_waitcnt lgkmcnt(0)")
    a(f"v_readfirstlane_b32 s{T3}, v{vt+2}")
    a("s_nop 3")
    a(f"s_cmp_lg_u32 s{T3}, {n-1}")
    a(f"s_cbranch_scc1 {sk}")
    a(f"s_mov_b32 exec_lo, {hex((1 << lanes) - 1)}")
    a("s_mov_b32 exec_hi, 0")
    a(f"buffer_store_dword v{vt}, v{voff}, s[28:31], s{soff} offen sc1")
    a("s_mov_b64 exec, -1")
    a.lab(sk)

def kernel(a):
    a.lab(KN)
    a("s_cmp_ge_u32 s2, 256")
    a("s_cbranch_scc1 k_end")
    a.stamp(0, True)
    a.stamp(1)
    for _ in range(int(E("BEGSLEEP", "0"))): a("s_sleep 32")
    if E("TFIX") or E("TB0") or E("TE1") or E("TP") or E("TM"): a("s_memrealtime s[96:97]")
    a("s_load_dwordx8 s[4:11], s[0:1], 0")
    a("s_load_dwordx4 s[12:15], s[0:1], 32")
    a("s_load_dwordx8 s[16:23], s[0:1], 56")
    a("s_load_dwordx4 s[24:27], s[0:1], 88")
    a("v_and_b32 v1, 63, v0")
    a("v_lshrrev_b32 v2, 6, v0")
    a("s_nop 0")
    a("v_readfirstlane_b32 s32, v2")
    a("s_cmp_ge_u32 s2, 224")
    a("s_cbranch_scc1 k_prep")
    a(f"s_and_b32 s{XCD}, s2, 7")
    a(f"s_lshr_b32 s{J}, s2, 3")
    a(f"s_mul_i32 s{T0}, s{J}, 37")
    a(f"s_lshr_b32 s{T0}, s{T0}, 8")
    a(f"s_mul_i32 s{T1}, s{T0}, 7")
    a(f"s_sub_u32 s{CB}, s{J}, s{T1}")
    a(f"s_and_b32 s{T1}, s{XCD}, 4")
    a(f"s_add_u32 s{RB}, s{T1}, s{T0}")
    a(f"s_and_b32 s{T1}, s{XCD}, 3")
    a(f"s_mul_i32 s{T1}, s{T1}, 7")
    a(f"s_add_u32 s{FB}, s{T1}, s{CB}")
    a(f"s_lshl_b32 s{T1}, s{XCD}, 2")
    a(f"s_add_u32 s{TB}, s{T1}, s{T0}")
    ROWMAP = E("ROWMAP", "0") == "1"
    if ROWMAP:
        a(f"s_mov_b32 s{RB}, s{XCD}")
        a(f"s_mov_b32 s{FB}, s{J}")
    a("s_cmp_ge_u32 s32, 8")
    a("s_cbranch_scc1 k_helper")

    a.role = "g"
    TG, CG = R0, R1
    a(f"s_lshr_b32 s{TG}, s32, 1")
    a(f"s_and_b32 s{CG}, s32, 1")
    AR = 10
    a("v_and_b32 v2, 31, v1")
    a("v_lshrrev_b32 v3, 5, v1")
    a("v_bfe_u32 v4, v1, 2, 2")
    a("v_xor_b32 v4, v3, v4")
    a(f"s_lshl_b32 s{T0}, s32, 5")
    a(f"v_add_u32 v5, s{T0}, v2")
    a("v_lshlrev_b32 v5, 6, v5")
    a(f"v_lshl_add_u32 v{AR+0}, v4, 4, v5")
    a(f"v_xor_b32 v{AR+1}, 0x800, v{AR+0}")
    a(f"v_xor_b32 v{AR+2}, 32, v{AR+0}")
    a(f"v_xor_b32 v{AR+3}, 32, v{AR+1}")
    a("v_bfe_u32 v4, v1, 4, 1")
    a("v_bfe_u32 v5, v1, 2, 2")
    a("v_bfe_u32 v6, v1, 3, 1")
    a("v_lshl_or_b32 v6, v4, 1, v6")
    a(f"s_lshl_b32 s{T0}, s{CG}, 1")
    a(f"v_xor_b32 v6, s{T0}, v6")
    a("v_lshl_add_u32 v7, v3, 3, v5")
    a("v_lshlrev_b32 v7, 7, v7")
    a("v_lshl_add_u32 v7, v4, 12, v7")
    a("v_lshl_add_u32 v7, v6, 5, v7")
    a("v_and_b32 v8, 3, v1")
    a("v_lshl_add_u32 v7, v8, 3, v7")
    a(f"v_add_u32 v{AR+4}, 0x4000, v7")
    a(f"v_xor_b32 v{AR+5}, 32, v{AR+4}")
    for i in range(6):
        a(f"v_add_u32 v{AR+6+i}, {SPS * STAGE}, v{AR+i}")
    a("v_mov_b32 v28, 0")
    a("v_mov_b32 v29, 0")
    a("v_mov_b32 v22, 0")
    a("v_and_b32 v24, 15, v1")
    a("v_lshlrev_b32 v24, 2, v24")
    a(f"s_mov_b32 s{T5}, 0")
    a("s_waitcnt lgkmcnt(0)")
    srd(a, 28, WS, WS_REC)
    HF, YF = R2, R3
    a(f"s_lshl_b32 s{HF}, s{RB}, 9")
    a(f"s_lshl_b32 s{T0}, s{FB}, 2")
    a(f"s_add_u32 s{HF}, s{HF}, s{T0}")
    a(f"s_add_u32 s{HF}, s{HF}, {HFLAG}")
    a(f"s_lshl_b32 s{YF}, s2, 9")
    a(f"s_add_u32 s{YF}, s{YF}, {FLAG_OFF}")
    if E("TGLOB"):
        lb = a.new("tg")
        a("s_cmp_lg_u32 s32, 0")
        a(f"s_cbranch_scc1 {lb}")
        a("s_not_b32 s98, s96")
        a("v_mov_b32 v2, s98")
        a("s_mov_b64 exec, 1")
        a(f"global_atomic_umax v22, v2, s[{DBG}:{DBG+1}] offset:128 sc1")
        a("s_mov_b64 exec, -1")
        a.lab(lb)
    a("s_cmp_eq_u32 s32, 7")
    a("s_cbranch_scc1 k_init")
    if E("GTOUCH", "1") == "1":
        srd(a, SA, Q, 2048 * 896)
        srd(a, SB, WG, 448 * 3584)
        srd(a, SC, WU, 448 * 3584)
        if ROWMAP:
            a(f"s_lshl_b32 s{T0}, s{XCD}, 8")
            a(f"s_mul_i32 s{T1}, s{J}, 10")
            a(f"s_add_u32 s{T0}, s{T0}, s{T1}")
            a(f"s_mul_i32 s{T0}, s{T0}, 896")
            a(f"s_lshl_b32 s{T1}, s32, 7")
            a(f"s_add_u32 s{T0}, s{T0}, s{T1}")
            a("v_mul_u32_u24 v2, 896, v1")
            a("v_mul_u32_u24 v4, 3584, v1")
            a(f"s_lshl_b32 s{T1}, s{J}, 7")
            a(f"s_mul_i32 s{T2}, s32, {64 * 3584}")
            a(f"s_add_u32 s{T1}, s{T1}, s{T2}")
            a(f"buffer_load_dword v7, v4, s[{SB}:{SB+3}], s{T1} offen")
            a(f"buffer_load_dword v8, v4, s[{SC}:{SC+3}], s{T1} offen")
            a("s_mov_b64 exec, 0x3ff")
            a(f"buffer_load_dword v6, v2, s[{SA}:{SA+3}], s{T0} offen")
            a("s_mov_b64 exec, -1")
        else:
            a(f"s_lshr_b32 s{T0}, s{XCD}, 2")
            a(f"s_lshl_b32 s{T0}, s{T0}, 10")
            a(f"s_mul_i32 s{T1}, s{J}, 37")
            a(f"s_add_u32 s{T0}, s{T0}, s{T1}")
            a(f"s_mul_i32 s{T0}, s{T0}, 896")
            a(f"s_lshl_b32 s{T1}, s32, 7")
            a(f"s_add_u32 s{T0}, s{T0}, s{T1}")
            a("v_mul_u32_u24 v2, 896, v1")
            a(f"s_lshl_b32 s{T1}, s{J}, 4")
            a(f"v_add_u32 v3, s{T1}, v1")
            a("v_mul_u32_u24 v4, 0x2493, v3")
            a("v_lshrrev_b32 v4, 16, v4")
            a("v_mul_u32_u24 v5, 7, v4")
            a("v_sub_u32 v5, v3, v5")
            a("v_mul_u32_u24 v4, 3584, v4")
            a("v_lshl_add_u32 v4, v5, 7, v4")
            a(f"s_and_b32 s{T1}, s{XCD}, 3")
            a(f"s_mul_i32 s{T1}, s{T1}, 896")
            a(f"s_mul_i32 s{T2}, s32, {64 * 3584}")
            a(f"s_add_u32 s{T1}, s{T1}, s{T2}")
            TD = int(E("TD", "0"))
            if TD:
                lb = a.new("k_td")
                a(f"s_cmp_lt_u32 s32, {int(E('TS0', '2'))}")
                a(f"s_cbranch_scc1 {lb}")
                a(f"s_sleep {TD}")
                a.lab(lb)
            a("s_mov_b32 exec_hi, 31")
            a(f"buffer_load_dword v6, v2, s[{SA}:{SA+3}], s{T0} offen")
            a("s_mov_b64 exec, 0xffff")
            a(f"buffer_load_dword v7, v4, s[{SB}:{SB+3}], s{T1} offen")
            a(f"buffer_load_dword v8, v4, s[{SC}:{SC+3}], s{T1} offen")
            a("s_mov_b64 exec, -1")
    a("s_branch k_main")
    a.lab("k_init")
    a("v_mov_b32 v2, 0")
    a(f"v_lshl_add_u32 v3, v1, 2, 0")
    a(f"v_add_u32 v3, {SYNC}, v3")
    a("s_mov_b64 exec, 0xff")
    a("ds_write_b32 v3, v2")
    a("s_waitcnt lgkmcnt(0)")
    a("s_mov_b64 exec, -1")
    a(f"global_load_dword v23, v22, s[{DBG}:{DBG+1}] sc1")
    if E("CTOUCH", "0") == "1":
        a("s_getpc_b64 s[98:99]")
        a.lab("k_pc")
        a(f"s_sub_u32 s98, s98, k_pc-{KN}")
        a("s_subb_u32 s99, s99, 0")
        a(f"s_lshl_b32 s{T0}, s{J}, 11")
        a("v_lshlrev_b32 v2, 7, v1")
        a(f"v_add_u32 v2, s{T0}, v2")
        a(f"v_min_u32 v2, k_last-{KN}, v2")
        a("s_mov_b64 exec, 0xffff")
        a("global_load_dword v9, v2, s[98:99]")
        a("s_mov_b64 exec, -1")
    a.lab("k_main")
    a(f"s_cmp_ge_u32 s{FB}, 16")
    a("s_cbranch_scc1 k_nostat")
    srd(a, SA, Q, 2048 * 896)
    a(f"s_lshl_b32 s{T0}, s{RB}, 8")
    a(f"s_lshl_b32 s{T1}, s{FB}, 4")
    a(f"s_add_u32 s{T0}, s{T0}, s{T1}")
    a(f"s_lshl_b32 s{T1}, s32, 1")
    a(f"s_add_u32 s{T0}, s{T0}, s{T1}")
    a("v_lshrrev_b32 v2, 5, v1")
    a(f"v_add_u32 v2, s{T0}, v2")
    a(f"s_movk_i32 s{T1}, 896")
    a(f"v_mul_lo_u32 v3, v2, s{T1}")
    a("v_and_b32 v4, 31, v1")
    a("v_lshl_add_u32 v3, v4, 4, v3")
    for r in range(36, 40): a(f"v_mov_b32 v{r}, 0")
    a(f"buffer_load_dwordx4 v[32:35], v3, s[{SA}:{SA+3}], 0 offen")
    a("s_mov_b32 exec_lo, 0xffffff")
    a("s_mov_b32 exec_hi, 0xffffff")
    a(f"buffer_load_dwordx4 v[36:39], v3, s[{SA}:{SA+3}], 0 offen offset:512")
    a("s_mov_b64 exec, -1")
    for r in range(40, 44): a(f"v_mov_b32 v{r}, 0")
    a("v_lshlrev_b32 v2, 3, v2")
    a("s_waitcnt vmcnt(0)")
    for i in range(8):
        t = 44 + 2 * (i & 1)
        unpack(a, t, 32 + i)
        a(f"v_add_f32 v40, v40, v{t}")
        a(f"v_add_f32 v41, v41, v{t+1}")
        a(f"v_fmac_f32 v42, v{t}, v{t}")
        a(f"v_fmac_f32 v43, v{t+1}, v{t+1}")
    a("v_add_f32 v40, v40, v41")
    a("v_add_f32 v42, v42, v43")
    for dpp in ("quad_perm:[1,0,3,2]", "quad_perm:[2,3,0,1]", "row_ror:4", "row_ror:8"):
        a("s_nop 1")
        a(f"v_add_f32_dpp v40, v40, v40 {dpp} row_mask:0xf bank_mask:0xf")
        a(f"v_add_f32_dpp v42, v42, v42 {dpp} row_mask:0xf bank_mask:0xf")
    a("v_mov_b32 v41, v40")
    a("v_mov_b32 v43, v42")
    a("s_nop 1")
    a("v_permlane16_swap_b32 v40, v41")
    a("v_permlane16_swap_b32 v42, v43")
    a("s_nop 1")
    a("v_add_f32 v40, v40, v41")
    a("v_add_f32 v42, v42, v43")
    a("v_mul_f32 v40, 0x3b124925, v40")
    a("v_mul_f32 v42, 0x3b124925, v42")
    a("v_fma_f32 v42, -v40, v40, v42")
    a("v_max_f32 v42, 0, v42")
    bf16r(a, 44, 40)
    bf16r(a, 42, 42)
    a("v_add_f32 v42, 0x3727c5ac, v42")
    bf16r(a, 42, 42)
    a("v_sqrt_f32 v42, v42")
    a("s_nop 0")
    bf16r(a, 45, 42)
    a(f"s_mov_b32 s{T0}, {STATS_OFF}")
    a("s_mov_b32 exec_lo, 1")
    a("s_mov_b32 exec_hi, 1")
    a(f"buffer_store_dwordx2 v[44:45], v2, s[28:31], s{T0} offen sc1")
    a("s_mov_b64 exec, -1")
    a.lab("k_nostat")

    SETS = {0: 32, 1: 48}
    def reads(c, st_):
        base = SETS[st_]
        stg = c % NST
        R, o = AR + 6 * (stg // SPS), (stg % SPS) * STAGE
        a(f"ds_read_b128 {v(base,4)}, v{R + 2*st_} offset:{o}")
        for ct in range(2):
            for half in range(2):
                a(f"ds_read_b64_tr_b16 {v(base + 8 + 4*ct + 2*half, 2)}, v{R + 4 + ct} offset:{o + st_*2048 + half*512}")
        a(f"ds_read_b128 {v(base+4,4)}, v{R + 2*st_ + 1} offset:{o}")
    def mfmas(c, st_):
        base = SETS[st_]
        first = (2 * c + st_ == 0)
        k = 0
        for tt in range(2):
            for ct in range(2):
                acc = 64 + 16 * (2 * ct + tt)
                cc = "0" if first else v(acc, 16)
                a(f"v_mfma_f32_32x32x16_bf16 {v(acc,16)}, {v(base + 8 + 4*ct, 4)}, {v(base + 4*tt, 4)}, {cc}")
                k += 1
    EARLY = int(E("EARLY", "6"))
    RBASE, WROW = T6, J
    srd(a, SB, WD, 1792 * 896)
    a("v_lshrrev_b32 v2, 3, v1")
    a("v_mul_u32_u24 v2, 896, v2")
    a("v_bfe_u32 v3, v1, 4, 1")
    a("v_lshlrev_b32 v3, 2, v3")
    a("v_and_b32 v4, 7, v1")
    a("v_xor_b32 v3, v3, v4")
    a("v_lshl_add_u32 v2, v3, 4, v2")
    a(f"s_lshl_b32 s{T0}, s{CB}, 7")
    a(f"v_add_u32 v9, s{T0}, v2")
    a(f"s_xor_b32 s{RBASE}, s32, 4")
    a(f"s_mul_i32 s{RBASE}, s{RBASE}, {RING}")
    a(f"s_mul_i32 s{WROW}, s32, {14 * 16 * 896}")
    def early_w(n):
        for i in range(n):
            for hh in range(2):
                a(f"s_add_u32 m0, s{RBASE}, {i * 2048 + hh * 1024}")
                a(f"s_add_u32 s{T0}, s{WROW}, {(16 * i + 8 * hh) * 896}")
                a(f"buffer_load_dwordx4 v9, s[{SB}:{SB+3}], s{T0} offen lds")
    PC = int(E("PC", "11"))
    SC0 = int(E("SC0", "8"))
    SPC = int(E("SPC", "4"))
    SCD = int(E("SCD", "3"))
    def stats_ok(fail):
        a("v_cmp_ne_u32 vcc, 1, v25")
        a("s_nop 3")
        a("s_cmp_lg_u64 vcc, 0")
        a(f"s_cbranch_scc1 {fail}")
    def stats_load():
        a("v_lshlrev_b32 v26, 5, v1")
        a(f"s_lshl_b32 s{T0}, s{RB}, 11")
        a(f"s_add_u32 s{T0}, s{T0}, {STATS_OFF}")
        a(f"buffer_load_dwordx4 v[128:131], v26, s[28:31], s{T0} offen sc1")
        a(f"buffer_load_dwordx4 v[132:135], v26, s[28:31], s{T0} offen offset:16 sc1")
    if E("TB0"):
        lp = a.new("tprobe")
        a.lab(lp)
        a("s_memrealtime s[98:99]")
        a("s_waitcnt lgkmcnt(0)")
        a("s_sub_u32 s98, s98, s96")
        a(f"s_cmp_lt_u32 s98, {int(E('TB0'))}")
        a(f"s_cbranch_scc1 {lp}")
    if E("LP47"):
        lb = a.new("k_lp")
        a("s_cmp_lt_u32 s32, 4")
        a(f"s_cbranch_scc1 {lb}")
        a("s_setprio 1")
        a.lab(lb)
    a("s_barrier")
    a.stamp(2)
    reads(0, 0)
    for c in range(14):
        reads(c, 1)
        a("s_waitcnt lgkmcnt(6)")
        mfmas(c, 0)
        a("s_waitcnt lgkmcnt(0)")
        if c < 13:
            a("s_barrier")
            if E("LOOPST") and c in (1, 3, 5, 7, 9, 11): a.stamp(5 + c // 2)
            reads(c + 1, 0)
        if c == SPC - 1:
            a("s_waitcnt vmcnt(0)")
        if c == SPC:
            lb, lp, ok = a.new("k_sp"), a.new("k_spl"), a.new("k_spk")
            a("s_cmp_lg_u32 s32, 7")
            a(f"s_cbranch_scc1 {lb}")
            a.lab(lp)
            a(f"v_readfirstlane_b32 s{T0}, v23")
            a("s_nop 3")
            a(f"s_cmp_ge_u32 s{T0}, 32")
            a(f"s_cbranch_scc1 {ok}")
            a("s_sleep 8")
            a(f"global_load_dword v23, v22, s[{DBG}:{DBG+1}] sc1")
            a("s_waitcnt vmcnt(0)")
            a(f"s_branch {lp}")
            a.lab(ok)
            a(f"s_cmp_ge_u32 s{FB}, 16")
            a(f"s_cbranch_scc1 {lb}")
            if ROWMAP:
                a(f"s_add_u32 s{T0}, s{HF}, {SFLAG - HFLAG}")
                a("v_lshlrev_b32 v26, 12, v1")
            else:
                a(f"s_and_b32 s{T1}, s{RB}, 3")
                a(f"s_mul_i32 s{T1}, s{T1}, 56")
                a(f"s_and_b32 s{T0}, s{RB}, 4")
                a(f"s_add_u32 s{T0}, s{T0}, s{T1}")
                a(f"s_lshl_b32 s{T0}, s{T0}, 9")
                a(f"s_lshl_b32 s{T1}, s{FB}, 2")
                a(f"s_add_u32 s{T0}, s{T0}, s{T1}")
                a(f"s_add_u32 s{T0}, s{T0}, {SFLAG}")
                a("v_lshrrev_b32 v26, 2, v1")
                a("v_lshlrev_b32 v26, 12, v26")
                a("v_and_b32 v27, 3, v1")
                a("v_lshl_add_u32 v26, v27, 9, v26")
            a("v_mov_b32 v27, 1")
            a("s_mov_b32 exec_lo, 0xfffffff")
            a("s_mov_b32 exec_hi, 0")
            a(f"buffer_store_dword v27, v26, s[28:31], s{T0} offen sc1")
            a("s_mov_b64 exec, -1")
            a.lab(lb)
        if c == SC0:
            lb = a.new("k_s0")
            a("s_cmp_lg_u32 s32, 7")
            a(f"s_cbranch_scc1 {lb}")
            a("s_waitcnt vmcnt(0)")
            a(f"buffer_load_dword v25, v24, s[28:31], s{YF} offen offset:384 sc1")
            a.lab(lb)
        if c in (SC0 + 2, SC0 + 4):
            lb, rt = a.new("k_s1"), a.new("k_s1r")
            a("s_cmp_lg_u32 s32, 7")
            a(f"s_cbranch_scc1 {lb}")
            a(f"s_cmp_eq_u32 s{T5}, 1")
            a(f"s_cbranch_scc1 {lb}")
            a("s_waitcnt vmcnt(0)")
            stats_ok(rt)
            stats_load()
            a(f"s_mov_b32 s{T5}, 1")
            a(f"s_branch {lb}")
            a.lab(rt)
            a(f"buffer_load_dword v25, v24, s[28:31], s{YF} offen offset:384 sc1")
            a.lab(lb)
        if c == int(E('TKC', '-1')):
            lb = a.new("k_notk")
            a("s_cmp_lg_u32 s32, 6")
            a(f"s_cbranch_scc1 {lb}")
            srd(a, SA, SSMK, 448 * 4096)
            a("v_lshlrev_b32 v31, 7, v1")
            a(f"s_lshl_b32 s{T0}, s2, 13")
            a(f"buffer_load_dword v31, v31, s[{SA}:{SA+3}], s{T0} offen")
            a.lab(lb)
        if EARLY and c in (10, 11, 12):
            pair = {10: 0, 11: 1, 12: 2}[c]
            lb = a.new("k_noew")
            a(f"s_cmp_lg_u32 s{TG}, {pair}")
            a(f"s_cbranch_scc1 {lb}")
            early_w(EARLY)
            a.lab(lb)
        WT0 = int(E("WT0", "-99"))
        if WT0 <= c < WT0 + 7:
            lb = a.new("k_nowt")
            a(f"s_cmp_lg_u32 s32, {c - WT0}")
            a(f"s_cbranch_scc1 {lb}")
            srd(a, SA, WD, 1792 * 896)
            a("v_lshlrev_b32 v31, 7, v1")
            a(f"s_mul_i32 s{T0}, s{J}, {448 * 128}")
            a(f"s_add_u32 s{T0}, s{T0}, {(c - WT0) * 8192}")
            a(f"buffer_load_dword v31, v31, s[{SA}:{SA+3}], s{T0} offen")
            a.lab(lb)
        if c == int(E("KVT", "-1")):
            lb = a.new("k_nokv")
            a("s_cmp_lg_u32 s32, 5")
            a(f"s_cbranch_scc1 {lb}")
            srd(a, SA, K_, 2048 * 896)
            srd(a, SB, V_, 2048 * 896)
            a("v_lshlrev_b32 v31, 7, v1")
            a(f"s_lshl_b32 s{T0}, s2, 13")
            a(f"buffer_load_dword v30, v31, s[{SA}:{SA+3}], s{T0} offen")
            a(f"buffer_load_dword v31, v31, s[{SB}:{SB+3}], s{T0} offen")
            a.lab(lb)
        mfmas(c, 1)
    a.stamp(3)
    a.post = True
    if E("EPRIO", "1") == "1": a("s_setprio 2")
    if E("EP47"):
        lb = a.new("k_ep")
        a("s_cmp_lt_u32 s32, 4")
        a(f"s_cbranch_scc1 {lb}")
        a("s_setprio 3")
        a.lab(lb)
    srd(a, SB, WD, 1792 * 896)
    a("v_lshlrev_b32 v10, 4, v1")
    a("v_lshrrev_b32 v2, 3, v1")
    a("v_mul_u32_u24 v2, 896, v2")
    a("v_bfe_u32 v3, v1, 4, 1")
    a("v_lshlrev_b32 v3, 2, v3")
    a("v_and_b32 v4, 7, v1")
    a("v_xor_b32 v3, v3, v4")
    a("v_lshl_add_u32 v2, v3, 4, v2")
    a(f"s_lshl_b32 s{T0}, s{CB}, 7")
    a(f"v_add_u32 v11, s{T0}, v2")
    RBASE, WROW, HB0, HB1 = T6, J, R4, R5
    a(f"s_xor_b32 s{RBASE}, s32, 4")
    a(f"s_mul_i32 s{RBASE}, s{RBASE}, {RING}")
    a(f"s_mul_i32 s{WROW}, s32, {14 * 16 * 896}")
    a(f"s_mul_i32 s{HB0}, s{TB}, 448")
    a(f"s_mul_i32 s{T0}, s32, 28")
    a(f"s_add_u32 s{HB0}, s{HB0}, s{T0}")
    a(f"s_lshl_b32 s{HB0}, s{HB0}, 9")
    a(f"s_add_u32 s{HB1}, s{HB0}, {224 * 512}")
    a("v_bfe_u32 v2, v1, 5, 1")
    a("v_bfe_u32 v3, v1, 2, 2")
    a("v_lshl_add_u32 v2, v2, 2, v3")
    a("v_lshlrev_b32 v2, 7, v2")
    a("v_bfe_u32 v3, v1, 4, 1")
    a("v_and_b32 v4, 3, v1")
    a("v_lshlrev_b32 v4, 3, v4")
    a("v_lshl_or_b32 v4, v3, 5, v4")
    a("v_bfe_u32 v3, v1, 3, 1")
    a("v_lshl_or_b32 v4, v3, 6, v4")
    a(f"v_add3_u32 v12, v2, v4, s{RBASE}")
    a("v_xor_b32 v13, 64, v12")
    a("v_and_b32 v2, 31, v1")
    a(f"s_lshl_b32 s{T0}, s32, 5")
    a(f"v_add_u32 v2, s{T0}, v2")
    a("v_lshlrev_b32 v3, 2, v2")
    a(f"v_add_u32 v4, {A_STATS}, v3")
    a("v_mov_b32 v3, v4")
    a("v_and_b32 v5, 15, v1")
    a("v_bfe_u32 v6, v1, 4, 1")
    a("v_lshlrev_b32 v5, 4, v5")
    a("v_lshl_add_u32 v5, v6, 10, v5")
    a(f"s_lshl_b32 s{T0}, s{CG}, 9")
    a(f"s_add_u32 s{T0}, s{T0}, {A_CS}")
    a(f"v_add_u32 v6, s{T0}, v5")
    a("v_lshlrev_b32 v2, 4, v1")
    a("v_xor_b32 v3, 128, v3")
    lb, lp, rt, ok = a.new("k_icd"), a.new("k_icl"), a.new("k_icr"), a.new("k_ick")
    a("s_cmp_lg_u32 s32, 7")
    a(f"s_cbranch_scc1 {lb}")
    a(f"s_cmp_eq_u32 s{T5}, 1")
    a(f"s_cbranch_scc1 {ok}")
    a.lab(lp)
    a("s_waitcnt vmcnt(0)")
    stats_ok(rt)
    stats_load()
    a(f"s_branch {ok}")
    a.lab(rt)
    a("s_sleep 2")
    a(f"buffer_load_dword v25, v24, s[28:31], s{YF} offen offset:384 sc1")
    a(f"s_branch {lp}")
    a.lab(ok)
    a("s_waitcnt vmcnt(0)")
    for i in range(4):
        a(f"v_xor_b32 v{136+i}, 0x80000000, v{128+2*i}")
    a("v_lshlrev_b32 v26, 4, v1")
    a(f"v_add_u32 v26, {A_STATS}, v26")
    a("ds_write_b128 v26, v[136:139]")
    a.lab(lb)
    if E("TE1"):
        lp = a.new("tprobe")
        a.lab(lp)
        a("s_memrealtime s[98:99]")
        a("s_waitcnt lgkmcnt(0)")
        a("s_sub_u32 s98, s98, s96")
        a(f"s_cmp_lt_u32 s98, {int(E('TE1'))}")
        a(f"s_cbranch_scc1 {lp}")
    a("s_waitcnt lgkmcnt(0)")
    a("s_barrier")
    a.stamp(4)
    a("ds_read_b32 v28, v4")
    a("ds_read_b32 v30, v3")
    a("ds_read_b128 v[32:35], v6")
    a("ds_read_b128 v[36:39], v6 offset:256")
    a("v_cmp_gt_u32 vcc, 32, v1")
    a("v_mov_b32 v43, 0")
    a("v_mov_b32 v47, 0")
    a("s_waitcnt lgkmcnt(2)")
    for tt in range(2):
        mr, b = 28 + 2 * tt, 40 + 4 * tt
        a(f"v_lshrrev_b32 v{b}, 16, v{mr}")
        a(f"v_or_b32 v{b}, v{b}, v{mr}")
        a(f"v_cndmask_b32 v{b}, 0, v{b}, vcc")
        a(f"v_mov_b32 v{b+1}, v{b}")
        a(f"v_mov_b32 v{b+2}, v{b}")
    a("s_waitcnt lgkmcnt(0)")
    a("s_nop 0")
    for tt in range(2):
        for ct in range(2):
            acc = 64 + 16 * (2 * ct + tt)
            a(f"v_mfma_f32_32x32x16_bf16 {v(acc,16)}, {v(32 + 4*ct, 4)}, {v(40 + 4*tt, 4)}, {v(acc,16)}")
    ops = ["start"]
    WR = [128, 136, 144, 152, 160, 48, 56]
    HB = [16, 24, 32, 40]
    def issue_w(i):
        sl = i % RING_D
        for hh in range(2):
            a(f"s_add_u32 m0, s{RBASE}, {sl * 2048 + hh * 1024}")
            a(f"s_add_u32 s{T0}, s{WROW}, {(16 * i + 8 * hh) * 896}")
            a(f"buffer_load_dwordx4 v11, s[{SB}:{SB+3}], s{T0} offen lds")
            ops.append(("w", i))
    def issue_h(i):
        for tt in range(2):
            a(f"s_add_u32 s{T0}, s{HB0 + tt}, {i * 1024}")
            a(f"buffer_load_dwordx4 {v(HB[i % 4] + 4*tt, 4)}, v10, s[28:31], s{T0} offen sc1")
            ops.append(("h", i))
    def wait_for(*keys):
        last = max(max(n for n, o in enumerate(ops) if o == k) for k in keys)
        return len(ops) - 1 - last
    def treads(i, base):
        sl = i % RING_D
        for dt in range(2):
            for half in range(2):
                a(f"ds_read_b64_tr_b16 {v(base + 4*dt + 2*half, 2)}, v{12 + dt} offset:{sl*2048 + half*1024}")
    PRE0 = int(E("PRE0", "4"))
    PREPOS = int(E("PREPOS", "0"))
    if EARLY:
        PRE0 = EARLY
        lb = a.new("k_noew")
        a(f"s_cmp_lg_u32 s{TG}, 3")
        a(f"s_cbranch_scc1 {lb}")
        early_w(EARLY)
        a.lab(lb)
    elif PREPOS == 0:
        for i in range(PRE0):
            issue_w(i)
    for tt in range(2):
        mr = 28 + 2 * tt
        a(f"s_lshl_b32 s{T0}, s{RB}, 3")
        a(f"s_lshl_b32 s{T1}, s{TG}, 1")
        a(f"s_add_u32 s{T0}, s{T0}, s{T1}")
        a(f"s_xor_b32 s{T1}, s{CG}, {tt}")
        a(f"s_add_u32 s{T0}, s{T0}, s{T1}")
        a(f"s_mul_i32 s{T0}, s{T0}, 224")
        a(f"s_lshl_b32 s{T1}, s{FB}, 3")
        a(f"s_add_u32 s{T0}, s{T0}, s{T1}")
        a(f"s_lshl_b32 s{T1}, s{CG}, 2")
        a(f"s_add_u32 s{T0}, s{T0}, s{T1}")
        a(f"s_lshl_b32 s{T0}, s{T0}, 9")
        for ct in range(2):
            acc = 64 + 16 * (2 * ct + tt)
            if tt == 0 and ct == 0: a("s_nop 7")
            for i in range(8):
                a(f"v_max_f32 v{acc+i}, 0, v{acc+i}")
            for i in range(4):
                a(f"v_pk_mul_f32 {v(acc+2*i,2)}, {v(acc+2*i,2)}, {v(acc+8+2*i,2)}")
            O = 48 + 4 * (2 * tt + ct)
            for i in range(4):
                a(f"v_cvt_pk_bf16_f32 v{O+i}, v{acc+2*i}, v{acc+2*i+1}")
            a(f"buffer_store_dwordx4 {v(O,4)}, v2, s[28:31], s{T0} offen offset:{ct*1024} sc1")
            if E("DBLST", "0") == "1":
                a(f"buffer_store_dwordx4 {v(O,4)}, v2, s[28:31], s{T0} offen offset:{ct*1024}")
    if PREPOS == 1:
        for i in range(PRE0):
            issue_w(i)
    a.stamp(5)
    a("v_lshlrev_b32 v5, 12, v1")
    a(f"s_waitcnt vmcnt({2 * PRE0 if PREPOS == 1 else 0})")
    a.stamp(6)
    arrive_publish(a, CNT_H, 8, HF, 5, 28)
    a("s_setprio 0")
    if E("GP47"):
        lb = a.new("k_gp")
        a("s_cmp_lt_u32 s32, 4")
        a(f"s_cbranch_scc1 {lb}")
        a(f"s_setprio {E('GP47')}")
        a.lab(lb)
    if E("GATE", "1") == "1":
        lp, dn = a.new("gate"), a.new("gated")
        a(f"v_mov_b32 v3, {CNT_U}")
        a.lab(lp)
        a("ds_read_b32 v2, v3")
        a("s_waitcnt lgkmcnt(0)")
        a(f"v_readfirstlane_b32 s{T0}, v2")
        a("s_nop 3")
        a(f"s_cmp_eq_u32 s{T0}, 4")
        a(f"s_cbranch_scc1 {dn}")
        a("s_sleep 1")
        a(f"s_branch {lp}")
        a.lab(dn)
    ops.clear(); ops.append("flag")
    if E("GSCHED", "0") == "1":
        assert PRE0 == 6
        HBU = HB + [WR[6]]
        a(f"s_mul_i32 s{T4}, s32, 7")
        a(f"s_lshr_b32 s{T4}, s{T4}, 1")
        a(f"s_lshl_b32 s{T4}, s{T4}, 2")
        a(f"s_add_u32 s{T4}, s{T4}, s{YF}")
        a("v_and_b32 v3, 3, v1")
        a("v_lshlrev_b32 v3, 2, v3")
        for i in range(6):
            treads(i, WR[i])
            if i % 2 == 1:
                a("s_waitcnt lgkmcnt(0)")
                issue_w(i + 5); issue_w(i + 6)
        a.stamp(7)
        lp, dn = a.new("hpoll"), a.new("hpolled")
        a.lab(lp)
        a(f"buffer_load_dword v2, v3, s[28:31], s{T4} offen sc1")
        a("s_waitcnt vmcnt(0)")
        a("v_cmp_ne_u32 vcc, 1, v2")
        a("s_nop 3")
        a("s_cmp_eq_u64 vcc, 0")
        a(f"s_cbranch_scc1 {dn}")
        a(f"s_sleep {int(E('HSLEEP', '8'))}")
        a(f"s_branch {lp}")
        a.lab(dn)
        a.stamp(8)
        ops.clear(); ops.append("base")
        NHB = int(E("NHB", "5"))
        def issue_h5(i):
            for tt in range(2):
                a(f"s_add_u32 s{T0}, s{HB0 + tt}, {i * 1024}")
                a(f"buffer_load_dwordx4 {v(HBU[i % NHB] + 4*tt, 4)}, v10, s[28:31], s{T0} offen sc1")
                ops.append(("h", i))
        for i in range(NHB):
            issue_h5(i)
        for i in range(14):
            a(f"s_waitcnt vmcnt({wait_for(('h', i))})" + (" lgkmcnt(0)" if i in (6, 12, 13) else ""))
            base = WR[i % 6]
            for tt in range(2):
                for dt in range(2):
                    acc = 64 + 16 * (2 * dt + tt)
                    cc = "0" if i == 0 else v(acc, 16)
                    a(f"v_mfma_f32_32x32x16_bf16 {v(acc,16)}, {v(base + 4*dt, 4)}, {v(HBU[i % NHB] + 4*tt, 4)}, {cc}")
            if i + NHB < 14: issue_h5(i + NHB)
            if i < 6:
                treads(i + 6, WR[i])
            if i == 1:
                a("s_waitcnt lgkmcnt(0)")
                issue_w(12); issue_w(13)
            if i == 8:
                a(f"s_waitcnt vmcnt({min(wait_for(('w', 13)), 63)})")
                treads(12, WR[0]); treads(13, WR[1])
            if i == 9:
                a(f"s_lshl_b32 s{T0}, s{TB}, 6")
                a("v_lshrrev_b32 v2, 3, v0")
                a(f"v_add_u32 v3, s{T0}, v2")
                a(f"s_movk_i32 s{T1}, 896")
                a(f"v_mul_lo_u32 v4, v3, s{T1}")
                a("v_and_b32 v5, 7, v0")
                a("v_lshl_add_u32 v4, v5, 4, v4")
                a(f"s_lshl_b32 s{T0}, s{CB}, 7")
                a(f"v_add_u32 v14, s{T0}, v4")
                srd(a, SA, Q, 2048 * 896)
                a(f"buffer_load_dwordx4 v[144:147], v14, s[{SA}:{SA+3}], 0 offen")
                ops.append("x")
            if i == 6: a.stamp(9)
        a("s_waitcnt vmcnt(0)")
        for i in range(4): a(f"v_mov_b32 v{128+i}, v{144+i}")
    else:
        PACE = int(E("PACE", "6"))
        nw = PRE0
        while nw < PACE:
            issue_w(nw); nw += 1
        if PREPOS == 1:
            a(f"s_waitcnt vmcnt({2 * (PACE - PRE0)})")
        for i in range(13):
            if i >= PRE0:
                a(f"s_waitcnt vmcnt({wait_for(('w', i))})")
            if i < 7:
                treads(i, WR[i])
            if nw <= 12:
                if nw >= RING_D:
                    assert nw - RING_D <= i
                    a("s_waitcnt lgkmcnt(0)")
                issue_w(nw); nw += 1
        a.stamp(7)
        lp, dn = a.new("hpoll"), a.new("hpolled")
        a(f"s_mul_i32 s{T4}, s32, 7")
        a(f"s_lshr_b32 s{T4}, s{T4}, 1")
        a(f"s_lshl_b32 s{T4}, s{T4}, 2")
        a(f"s_add_u32 s{T4}, s{T4}, s{YF}")
        a("v_and_b32 v3, 3, v1")
        a("v_lshlrev_b32 v3, 2, v3")
        a.lab(lp)
        a(f"buffer_load_dword v2, v3, s[28:31], s{T4} offen sc1")
        a("s_waitcnt vmcnt(0)")
        a("v_cmp_ne_u32 vcc, 1, v2")
        a("s_nop 3")
        a("s_cmp_eq_u64 vcc, 0")
        a(f"s_cbranch_scc1 {dn}")
        a(f"s_sleep {int(E('HSLEEP', '8'))}")
        a(f"s_branch {lp}")
        a.lab(dn)
        a.stamp(8)
        ops.clear(); ops.append("base")
        for i in range(4):
            issue_h(i)
        for i in range(14):
            a(f"s_waitcnt vmcnt({wait_for(('h', i))})" + (" lgkmcnt(0)" if i in (0, 7, 13) else ""))
            base = WR[i % 7]
            for tt in range(2):
                for dt in range(2):
                    acc = 64 + 16 * (2 * dt + tt)
                    cc = "0" if i == 0 else v(acc, 16)
                    a(f"v_mfma_f32_32x32x16_bf16 {v(acc,16)}, {v(base + 4*dt, 4)}, {v(HB[i % 4] + 4*tt, 4)}, {cc}")
            if i + 4 < 14: issue_h(i + 4)
            if i < 6:
                treads(i + 7, WR[i])
            if i == 0:
                a("s_waitcnt lgkmcnt(0)")
                issue_w(13)
            if i == 8:
                a(f"s_waitcnt vmcnt({min(wait_for(('w', 13)), 63)})")
                treads(13, WR[6])
            if i == 9:
                a(f"s_lshl_b32 s{T0}, s{TB}, 6")
                a("v_lshrrev_b32 v2, 3, v0")
                a(f"v_add_u32 v3, s{T0}, v2")
                a(f"s_movk_i32 s{T1}, 896")
                a(f"v_mul_lo_u32 v4, v3, s{T1}")
                a("v_and_b32 v5, 7, v0")
                a("v_lshl_add_u32 v4, v5, 4, v4")
                a(f"s_lshl_b32 s{T0}, s{CB}, 7")
                a(f"v_add_u32 v14, s{T0}, v4")
                srd(a, SA, Q, 2048 * 896)
                a(f"buffer_load_dwordx4 v[128:131], v14, s[{SA}:{SA+3}], 0 offen")
                ops.append("x")
            if i == 6: a.stamp(9)
    a.stamp(10)
    a("v_and_b32 v2, 31, v1")
    a("v_lshrrev_b32 v3, 5, v1")
    a("v_and_b32 v4, 7, v1")
    a("v_xor_b32 v3, v3, v4")
    a("v_lshlrev_b32 v3, 4, v3")
    a("v_lshl_add_u32 v2, v2, 7, v3")
    a(f"v_add_u32 v16, s{RBASE}, v2")
    a(f"s_lshl_b32 s{T0}, s32, 12")
    a(f"s_add_u32 s{T0}, s{T0}, {CONV0}")
    a(f"v_add_u32 v24, s{T0}, v2")
    for k in range(1, 8):
        a(f"v_xor_b32 v{16+k}, {16*k}, v16")
    for k in (1, 3, 5, 7):
        a(f"v_xor_b32 v{24+k}, {16*k}, v24")
    for qd in range(3):
        tt, dt = qd // 2, qd % 2
        acc = 64 + 16 * (2 * dt + tt)
        for q in range(4):
            a(f"ds_write_b128 v{16 + (2*q ^ dt)}, {v(acc + 4*q, 4)} offset:{qd * 4096}")
    lp, dn = a.new("pwait"), a.new("pwaited")
    a(f"v_mov_b32 v4, {CNT_Y}")
    a.lab(lp)
    a("ds_read_b32 v2, v4")
    a("s_waitcnt lgkmcnt(0)")
    a(f"v_readfirstlane_b32 s{T0}, v2")
    a("s_nop 3")
    a(f"s_cmp_eq_u32 s{T0}, 4")
    a(f"s_cbranch_scc1 {dn}")
    a("s_sleep 1")
    a(f"s_branch {lp}")
    a.lab(dn)
    for q in range(4):
        a(f"ds_write_b128 v{24 + (2*q ^ 1)}, {v(112 + 4*q, 4)}")
    a("s_branch k_final")

    a.lab("k_helper")
    a.role = "c"
    if E("HPRIO"): a(f"s_setprio {E('HPRIO')}")
    HW, MAT, MX, MW = R0, R1, R2, R3
    a(f"s_sub_u32 s{HW}, s32, 8")
    a(f"s_lshr_b32 s{MAT}, s{HW}, 1")
    a(f"s_lshl_b32 s{MX}, s{HW}, 12")
    a(f"s_lshl_b32 s{MW}, s{HW}, 11")
    a(f"s_add_u32 s{MW}, s{MW}, 16384")
    a(f"s_lshl_b32 s{T0}, s{RB}, 8")
    a(f"s_lshl_b32 s{T1}, s{HW}, 6")
    a(f"s_add_u32 s{T0}, s{T0}, s{T1}")
    a("v_lshrrev_b32 v2, 2, v1")
    a(f"v_add_u32 v2, s{T0}, v2")
    a(f"s_movk_i32 s{T1}, 896")
    a(f"v_mul_lo_u32 v2, v2, s{T1}")
    a("v_and_b32 v3, 3, v1")
    a("v_bfe_u32 v4, v1, 4, 2")
    a("v_xor_b32 v3, v3, v4")
    a("v_lshl_add_u32 v10, v3, 4, v2")
    a(f"s_and_b32 s{T0}, s{HW}, 1")
    a(f"s_lshl_b32 s{T0}, s{T0}, 4")
    a("v_lshrrev_b32 v2, 3, v1")
    a(f"v_add_u32 v2, s{T0}, v2")
    a(f"s_movk_i32 s{T1}, 3584")
    a(f"v_mul_lo_u32 v2, v2, s{T1}")
    a(f"s_lshl_b32 s{T0}, s{FB}, 7")
    a(f"v_add_u32 v2, s{T0}, v2")
    a("v_bfe_u32 v4, v1, 4, 1")
    a("v_lshlrev_b32 v4, 1, v4")
    a(f"s_lshl_b32 s{T0}, s{MAT}, 2")
    a(f"v_or_b32 v4, s{T0}, v4")
    a("v_and_b32 v3, 7, v1")
    a("v_xor_b32 v5, v3, v4")
    a("v_lshl_add_u32 v11, v5, 4, v2")
    a("s_waitcnt lgkmcnt(0)")
    srd(a, SA, Q, 2048 * 896)
    a(f"s_cmp_eq_u32 s{MAT}, 1")
    a(f"s_cselect_b32 s{SB}, s{WU}, s{WG}")
    a(f"s_cselect_b32 s{SB+1}, s{WU+1}, s{WG+1}")
    a(f"s_and_b32 s{SB+1}, s{SB+1}, 0xffff")
    a(f"s_mov_b32 s{SB+2}, {448 * 3584}")
    a(f"s_mov_b32 s{SB+3}, 0x00020000")
    def dma(c):
        st = c % NST
        for i in range(2):
            a(f"s_add_u32 m0, s{MW}, {st * STAGE + 1024 * i}")
            a(f"s_mov_b32 s{T0}, {(c * 32 + 8 * i) * 3584}")
            a(f"buffer_load_dwordx4 v11, s[{SB}:{SB+3}], s{T0} offen lds")
        for i in range(4):
            a(f"s_add_u32 m0, s{MX}, {st * STAGE + 1024 * i}")
            a(f"s_mov_b32 s{T0}, {64 * c + 14336 * i}")
            a(f"buffer_load_dwordx4 v10, s[{SA}:{SA+3}], s{T0} offen lds")
    PRO = int(E("PRO", "3"))
    PRO0 = int(E("PRO0", "2"))
    for c in range(PRO0):
        dma(c)
    srd(a, 28, WS, WS_REC)
    a("v_lshrrev_b32 v2, 3, v1")
    a("v_lshlrev_b32 v2, 7, v2")
    a("v_lshl_add_u32 v2, v5, 4, v2")
    a(f"v_add_u32 v20, s{MW}, v2")
    a(f"v_add_u32 v21, {SPS * STAGE}, v20")
    for r in range(24, 32):
        a(f"v_mov_b32 v{r}, 0")
    a("v_lshlrev_b32 v9, 4, v1")
    CHN, KROW = R4, R5
    a(f"s_lshl_b32 s{CHN}, s2, 1")
    a(f"s_add_u32 s{CHN}, s{CHN}, s{MAT}")
    a(f"s_lshl_b32 s{KROW}, s{CHN}, 12")
    a(f"s_add_u32 s{SC}, s{SSMK}, s{KROW}")
    a(f"s_addc_u32 s{SC+1}, s{SSMK+1}, 0")
    a(f"s_and_b32 s{SC+1}, s{SC+1}, 0xffff")
    a(f"s_movk_i32 s{SC+2}, 4096")
    a(f"s_mov_b32 s{SC+3}, 0x00020000")
    a(f"s_lshl_b32 s{T0}, s2, 2")
    a(f"s_load_dword s{T6}, s[{SSMD}:{SSMD+1}], s{T0}")
    a("v_subrev_u32 v12, 32, v9")
    a("v_subrev_u32 v13, 16, v9")
    a("v_add_u32 v14, 992, v9")
    BUF = [32, 40]
    def hreads(c):
        b = BUF[c & 1]
        stg = c % NST
        o = (stg % SPS) * STAGE
        for i in range(2):
            a(f"ds_read_b128 {v(b + 4*i, 4)}, v{20 + stg//SPS} offset:{o + 1024*i}")
    def hsum(c):
        b = BUF[c & 1]
        for i in range(8):
            t = 48 + 2 * (i & 1)
            unpack(a, t, b + i)
            a(f"v_add_f32 v{24 + 2*(i & 3)}, v{24 + 2*(i & 3)}, v{t}")
            a(f"v_add_f32 v{25 + 2*(i & 3)}, v{25 + 2*(i & 3)}, v{t+1}")
    BD = 104
    roff = [None, 0, 1024, 2048, 2080]
    CBASE, UBASE = T4, T5
    a(f"s_mul_i32 s{CBASE}, s{MAT}, {CONV_CH}")
    a(f"s_add_u32 s{CBASE}, s{CBASE}, {CONV0}")
    a(f"s_add_u32 s{UBASE}, s{CBASE}, {4 * CPITCH}")
    a(f"v_add_u32 v15, s{CBASE}, v9")
    woff = [0, 1024, 2048, 3072, 3104]
    EE = 144
    def build(r):
        D = BD + 8 * r
        E_ = EE + 12 * (r & 1)
        a(f"ds_write_b128 v15, {v(D,4)} offset:{woff[r]}")
        for p in range(4):
            a(f"v_alignbit_b32 v{E_+p}, v{D+p+1}, v{D+p}, 16")
        for p in range(4):
            a(f"v_mov_b32 v{E_+4+p}, v{D+p+1}")
        for p in range(4):
            a(f"v_alignbit_b32 v{E_+8+p}, v{D+p+2}, v{D+p+1}, 16")
        for sidx in range(3):
            a(f"ds_write_b128 v15, {v(E_+4*sidx,4)} offset:{woff[r] + (sidx+1)*CPITCH}")
    hops = []
    for c in range(PRO0): hops += [("d", c)] * 6
    nxt_d = PRO0
    def hwait(key):
        last = max(n for n, o in enumerate(hops) if o == key)
        return len(hops) - 1 - last
    KC = int(E("KC", "11"))
    BC = 99
    a(f"s_waitcnt vmcnt({hwait(('d', 0))})")
    a("s_barrier")
    a.stamp(2)
    for c in range(14):
        hreads(c)
        lim = min(13, c + PRO if c >= int(E("CATCH", "1")) else c + PRO0)
        while nxt_d <= lim:
            dma(nxt_d); hops += [("d", nxt_d)] * 6; nxt_d += 1
        if c == KC:
            a(f"s_lshl_b32 s{T2}, s2, 9")
            a(f"s_add_u32 s{T2}, s{T2}, {PFLAG}")
            a("v_and_b32 v17, 31, v1")
            a("v_lshlrev_b32 v17, 2, v17")
            a(f"buffer_load_dwordx4 {v(BD,4)}, v12, s[{SC}:{SC+3}], 0 offen")
            a(f"buffer_load_dwordx2 {v(BD+4,2)}, v13, s[{SC}:{SC+3}], 0 offen")
            for r in range(1, 5):
                a(f"buffer_load_dwordx4 {v(BD+8*r,4)}, v14, s[{SC}:{SC+3}], 0 offen offset:{roff[r]}")
                a(f"buffer_load_dwordx2 {v(BD+8*r+4,2)}, v14, s[{SC}:{SC+3}], 0 offen offset:{roff[r]+16}")
            hops += ["k"] * 10
            srd(a, SA, WD, 1792 * 896)
            a(f"s_mul_i32 s{T0}, s2, 7168")
            a(f"s_lshl_b32 s{T1}, s{HW}, 11")
            a(f"s_add_u32 s{T0}, s{T0}, s{T1}")
            a(f"buffer_load_dwordx4 v[52:55], v9, s[{SA}:{SA+3}], s{T0} offen")
            a(f"buffer_load_dwordx4 v[52:55], v9, s[{SA}:{SA+3}], s{T0} offen offset:1024")
            hops += ["p"] * 2
        if c == int(E("PMC", "13")):
            a(f"buffer_load_dword v16, v17, s[28:31], s{T2} offen sc1")
            hops += ["pm"]
        if c > 0:
            hsum(c - 1)
        if BC <= c < BC + 5 and not E('NOBUILD'):
            assert BC > KC + PRO
            build(c - BC)
        if c < 13:
            a(f"s_waitcnt vmcnt({hwait(('d', c + 1))}) lgkmcnt(0)")
            a("s_barrier")
        else:
            a("s_waitcnt lgkmcnt(0)")
    def urev_try():
        sk = a.new("k_urs")
        a("v_cmp_ne_u32 vcc, 1, v16")
        a(f"s_mov_b32 s{MX}, 0")
        a("s_nop 2")
        a("s_cmp_lg_u64 vcc, 0")
        a(f"s_cbranch_scc1 {sk}")
        a(f"s_add_u32 s{T0}, s{KROW}, {UREV_OFF}")
        a(f"s_add_u32 s{SC}, s{WS}, s{T0}")
        a(f"s_addc_u32 s{SC+1}, s{WS+1}, 0")
        a(f"s_and_b32 s{SC+1}, s{SC+1}, 0xffff")
        a(f"s_movk_i32 s{SC+2}, 4096")
        a(f"s_mov_b32 s{SC+3}, 0x00020000")
        for r in range(5):
            a(f"s_add_u32 m0, s{UBASE}, {r * 1024}")
            a(f"s_movk_i32 s{T0}, {r * 1024}")
            a(f"buffer_load_dwordx4 v9, s[{SC}:{SC+3}], s{T0} offen sc1 lds")
        a(f"s_mov_b32 s{MX}, 1")
        a("v_mov_b32 v2, 1")
        a(f"v_mov_b32 v3, {CNT_U}")
        a("s_mov_b64 exec, 1")
        a("ds_add_u32 v3, v2")
        a("s_mov_b64 exec, -1")
        a.lab(sk)
    hsum(13)
    a.stamp(3)
    a("v_and_b32 v2, 8, v1")
    a("v_cmp_ne_u32 vcc, 0, v2")
    a("s_nop 1")
    for j in range(4):
        a(f"v_cndmask_b32 v{32+j}, v{24+j}, v{28+j}, vcc")
        a(f"v_cndmask_b32 v{36+j}, v{28+j}, v{24+j}, vcc")
    a("s_nop 1")
    for j in range(4):
        a(f"v_add_f32_dpp v{24+j}, v{36+j}, v{32+j} row_ror:8 row_mask:0xf bank_mask:0xf")
    a("s_nop 1")
    a("v_permlane16_swap_b32 v24, v26")
    a("v_permlane16_swap_b32 v25, v27")
    a("s_nop 1")
    a("v_add_f32 v24, v24, v26")
    a("v_add_f32 v25, v25, v27")
    a("s_nop 1")
    a("v_permlane32_swap_b32 v24, v25")
    a("s_nop 1")
    a("v_add_f32 v24, v24, v25")
    a("v_cvt_pk_bf16_f32 v26, v24, v24")
    a("v_lshlrev_b32 v27, 16, v26")
    a("v_sub_f32 v24, v24, v27")
    a("v_cvt_pk_bf16_f32 v28, v24, v24")
    a("v_lshlrev_b32 v27, 16, v28")
    a("v_sub_f32 v24, v24, v27")
    a("v_cvt_pk_bf16_f32 v29, v24, v24")
    a("v_and_b32 v2, 7, v1")
    a("v_bfe_u32 v3, v1, 3, 1")
    a("v_lshlrev_b32 v2, 3, v2")
    a("v_lshl_add_u32 v2, v3, 2, v2")
    a("v_bfe_u32 v3, v1, 4, 1")
    a("v_lshl_add_u32 v2, v3, 1, v2")
    a("v_lshrrev_b32 v3, 5, v1")
    a("v_add_u32 v2, v2, v3")
    a(f"s_lshl_b32 s{T0}, s{MAT}, 10")
    a(f"s_add_u32 s{T0}, s{T0}, {A_CS}")
    a(f"v_lshl_add_u32 v2, v2, 4, s{T0}")
    lh, lj = a.new("k_csh"), a.new("k_csj")
    a(f"s_and_b32 s{T1}, s{HW}, 1")
    a(f"s_cmp_eq_u32 s{T1}, 1")
    a(f"s_cbranch_scc1 {lh}")
    a("v_and_b32 v26, 0xffff, v26")
    a("v_lshl_or_b32 v26, v28, 16, v26")
    a("ds_write_b32 v2, v26")
    a("ds_write_b16 v2, v29 offset:4")
    a(f"s_branch {lj}")
    a.lab(lh)
    a("v_and_b32 v28, 0xffff, v28")
    a("v_lshl_or_b32 v28, v29, 16, v28")
    a("v_mov_b32 v29, 0")
    a("ds_write_b16 v2, v26 offset:6")
    a("ds_write_b64 v2, v[28:29] offset:8")
    a.lab(lj)
    a("s_waitcnt lgkmcnt(0)")
    a("s_barrier")
    a.stamp(4)

    a(f"s_setprio {int(E('CPRIO', '1'))}")
    lb = a.new("k_kw")
    a(f"s_waitcnt vmcnt({hwait('pm')})")
    urev_try()
    a(f"s_cmp_eq_u32 s{MX}, 1")
    a(f"s_cbranch_scc1 {lb}")
    a(f"buffer_load_dword v16, v17, s[28:31], s{T2} offen sc1")
    a("s_waitcnt vmcnt(1)")
    a.lab(lb)
    a("s_waitcnt vmcnt(5)")
    a.stamp(11)
    SPLITB = E("SPLITB", "0") == "1"
    a(f"s_and_b32 s{T1}, s{HW}, 1")
    for r in range(5):
        if SPLITB:
            lbb = a.new("k_sb")
            a(f"s_cmp_lg_u32 s{T1}, {r & 1}")
            a(f"s_cbranch_scc1 {lbb}")
            build(r)
            a.lab(lbb)
        else:
            build(r)
        if r in (1, 3):
            lb = a.new("k_mid")
            a(f"s_cmp_eq_u32 s{MX}, 1")
            a(f"s_cbranch_scc1 {lb}")
            a("s_waitcnt vmcnt(0)")
            urev_try()
            a(f"s_cmp_eq_u32 s{MX}, 1")
            a(f"s_cbranch_scc1 {lb}")
            a(f"buffer_load_dword v16, v17, s[28:31], s{T2} offen sc1")
            a.lab(lb)
            a("s_waitcnt lgkmcnt(0)")
        elif r < 4: a("s_waitcnt lgkmcnt(4)")
    a.stamp(12)
    lp, ok = a.new("k_ppl"), a.new("k_ppk")
    a.lab(lp)
    a(f"s_cmp_eq_u32 s{MX}, 1")
    a(f"s_cbranch_scc1 {ok}")
    a("s_waitcnt vmcnt(0)")
    urev_try()
    a(f"s_cmp_eq_u32 s{MX}, 1")
    a(f"s_cbranch_scc1 {ok}")
    a("s_sleep 4")
    a(f"buffer_load_dword v16, v17, s[28:31], s{T2} offen sc1")
    a(f"s_branch {lp}")
    a.lab(ok)
    a.stamp(5)
    a("v_and_b32 v2, 15, v1")
    a("v_lshrrev_b32 v3, 4, v1")
    a("v_lshl_add_u32 v4, v3, 3, v2")
    a("v_add_u32 v4, 1, v4")
    a("v_and_b32 v5, 3, v4")
    a(f"v_mul_u32_u24 v5, {CPITCH}, v5")
    a("v_lshrrev_b32 v4, 2, v4")
    a("v_lshl_add_u32 v5, v4, 3, v5")
    a(f"v_add_u32 v22, s{CBASE}, v5")
    a("v_lshlrev_b32 v4, 5, v2")
    a("v_sub_u32 v4, 480, v4")
    a("v_lshl_add_u32 v4, v3, 4, v4")
    a(f"v_add_u32 v23, s{UBASE}, v4")
    a("v_lshlrev_b32 v4, 5, v2")
    a("v_lshl_add_u32 v8, v3, 3, v4")
    a("v_sub_u32 v5, 504, v8")
    a(f"v_add_u32 v19, s{UBASE}, v5")
    a(f"s_add_u32 s{KROW}, s{KROW}, {Y2_OFF}")
    a(f"s_cmp_eq_u32 s{MAT}, 0")
    a(f"s_cselect_b32 s{T0}, 16, 0")
    a(f"s_lshl_b32 s{T6}, s{T6}, s{T0}")
    a(f"s_and_b32 s{T6}, s{T6}, 0xffff0000")
    a("s_waitcnt vmcnt(0) lgkmcnt(0)")
    if SPLITB:
        lp, dn = a.new("bsync"), a.new("bsynced")
        a(f"s_lshl_b32 s{T0}, s{MAT}, 2")
        a(f"s_add_u32 s{T0}, s{T0}, {SYNC + 16}")
        a(f"v_mov_b32 v3, s{T0}")
        a("v_mov_b32 v2, 1")
        a("s_mov_b64 exec, 1")
        a("ds_add_u32 v3, v2")
        a("s_mov_b64 exec, -1")
        a.lab(lp)
        a("ds_read_b32 v2, v3")
        a("s_waitcnt lgkmcnt(0)")
        a(f"v_readfirstlane_b32 s{T0}, v2")
        a("s_nop 3")
        a(f"s_cmp_eq_u32 s{T0}, 2")
        a(f"s_cbranch_scc1 {dn}")
        a(f"s_branch {lp}")
        a.lab(dn)
    a.stamp(6)
    a(f"s_and_b32 s{T0}, s{HW}, 1")
    a(f"s_cmp_eq_u32 s{T0}, 1")
    a("s_cbranch_scc1 k_conv1")
    def conv_body(tiles):
        amax = max(tiles)
        SET = [(40, 72), (104, 136)]
        def rd(c0i):
            Tb, Hb = SET[c0i & 1]
            L = []
            for k in range(amax + 1):
                L.append(f"ds_read_b64 {v(Tb+4*k,2)}, v22 offset:{64*c0i + 512*k}")
                L.append(f"ds_read_b64 {v(Tb+4*k+2,2)}, v22 offset:{64*c0i + 512*k + 8}")
                L.append(f"ds_read_b128 {v(Hb+4*k,4)}, v23 offset:{64*c0i + 512*(7-k)}")
            return L
        for x in rd(0): a(x)
        for c0i in range(int(E('NC0', '8'))):
            Tb, Hb = SET[c0i & 1]
            a("s_waitcnt lgkmcnt(0)")
            nxt = rd(c0i + 1) if c0i < int(E('NC0', '8')) - 1 else []
            mf = []
            lists = [[(bi, aa, b - aa) for aa in range(b + 1)] for bi, b in enumerate(tiles)]
            while any(lists):
                for l_ in lists:
                    if l_: mf.append(l_.pop(0))
            seen = set()
            for n, (bi, aa, m) in enumerate(mf):
                acc = 24 + 4 * bi
                cc = "0" if (c0i == 0 and bi not in seen) else v(acc, 4)
                seen.add(bi)
                a(f"v_mfma_f32_16x16x32_bf16 {v(acc,4)}, {v(Tb+4*aa,4)}, {v(Hb+4*m,4)}, {cc}")
                for _ in range(2):
                    if nxt: a(nxt.pop(0))
            assert not nxt
        for bi, b in enumerate(tiles):
            a(f"ds_read_b64 {v(40+2*bi,2)}, v19 offset:{512*(7-b)}")
        a("s_waitcnt lgkmcnt(0)")
        a("s_nop 4")
        for bi, b in enumerate(tiles):
            acc = 24 + 4 * bi
            K0, K1 = 40 + 2 * bi, 41 + 2 * bi
            T = 48 + 8 * bi
            a(f"v_and_b32 v{T+0}, 0xffff0000, v{K1}")
            a(f"v_lshlrev_b32 v{T+1}, 16, v{K1}")
            a(f"v_and_b32 v{T+2}, 0xffff0000, v{K0}")
            a(f"v_lshlrev_b32 v{T+3}, 16, v{K0}")
            for e in range(4):
                a(f"v_fma_f32 v{T+e}, s{T6}, v{T+e}, v{acc+e}")
            a(f"v_cvt_pk_bf16_f32 v{T+4}, v{T+0}, v{T+1}")
            a(f"v_cvt_pk_bf16_f32 v{T+5}, v{T+2}, v{T+3}")
            a(f"buffer_store_dwordx2 {v(T+4,2)}, v8, s[28:31], s{KROW} offen offset:{512*b} sc1")
    conv_body([0, 3, 4, 7])
    a("s_branch k_conv_done")
    a.lab("k_conv1")
    conv_body([1, 2, 5, 6])
    a.lab("k_conv_done")
    a.stamp(7)
    a(f"s_lshr_b32 s{T0}, s2, 5")
    a(f"s_lshl_b32 s{T0}, s{T0}, 12")
    a(f"s_and_b32 s{T1}, s2, 31")
    a(f"s_lshl_b32 s{T1}, s{T1}, 2")
    a(f"s_add_u32 s{T0}, s{T0}, s{T1}")
    a(f"s_add_u32 s{T0}, s{T0}, {YFLAG}")
    a("v_lshrrev_b32 v5, 3, v1")
    a(f"v_mul_u32_u24 v5, {56*512}, v5")
    a("v_and_b32 v6, 7, v1")
    a("v_lshl_add_u32 v5, v6, 9, v5")
    a("s_waitcnt vmcnt(0)")
    a.stamp(8)
    arrive_publish(a, CNT_Y, 4, T0, 5, 32)
    if E('STFIRST', '1') == '1':
        lb = a.new("k_nost")
        a("s_cmp_lg_u32 s32, 8")
        a(f"s_cbranch_scc1 {lb}")
        a(f"s_lshl_b32 s{T0}, s2, 9")
        a(f"s_and_b32 s{T1}, s{TB}, 3")
        a(f"s_lshl_b32 s{T1}, s{T1}, 4")
        a(f"s_add_u32 s{T0}, s{T0}, s{T1}")
        a(f"s_add_u32 s{T0}, s{T0}, {HFLAG}")
        poll(a, T0, 4, sleep=int(E('YSLEEP', '8')))
        a("v_lshlrev_b32 v7, 3, v1")
        a(f"s_lshl_b32 s{T2}, s{TB}, 9")
        a(f"s_add_u32 s{T2}, s{T2}, {STATS_OFF}")
        a(f"buffer_load_dwordx2 v[24:25], v7, s[28:31], s{T2} offen sc1")
        a(f"v_add_u32 v7, {STS}, v7")
        a("s_waitcnt vmcnt(0)")
        a("ds_write_b64 v7, v[24:25]")
        a.lab(lb)
    a("v_lshrrev_b32 v6, 3, v1")
    a("v_and_b32 v7, 7, v1")
    a("v_lshlrev_b32 v5, 4, v7")
    a("v_lshl_add_u32 v5, v6, 12, v5")
    a(f"s_lshl_b32 s{T1}, s{CB}, 18")
    a(f"s_lshl_b32 s{T2}, s{TB}, 7")
    a(f"s_add_u32 s{T1}, s{T1}, s{T2}")
    a(f"s_lshl_b32 s{T2}, s{HW}, 16")
    a(f"s_add_u32 s{T1}, s{T1}, s{T2}")
    a(f"s_add_u32 s{T1}, s{T1}, {Y2_OFF}")
    a(f"s_add_u32 s{T2}, s{T1}, {8*4096}")
    a(f"s_lshl_b32 s{T0}, s{HW}, 1")
    a(f"v_xor_b32 v8, s{T0}, v7")
    a("v_lshlrev_b32 v8, 4, v8")
    a("v_lshl_add_u32 v8, v7, 10, v8")
    a("v_lshl_add_u32 v8, v6, 1, v8")
    a(f"v_add_u32 v8, {Y2S}, v8")
    a("v_xor_b32 v9, 16, v8")
    a(f"s_lshl_b32 s{T0}, s2, 9")
    a(f"s_lshl_b32 s{T4}, s{HW}, 5")
    a(f"s_add_u32 s{T0}, s{T0}, s{T4}")
    a(f"s_add_u32 s{T0}, s{T0}, {YFLAG}")
    poll(a, T0, 8, sleep=int(E('YSLEEP', '8')))
    a.stamp(9)
    a(f"buffer_load_dwordx4 v[24:27], v5, s[28:31], s{T1} offen sc1")
    a(f"buffer_load_dwordx4 v[28:31], v5, s[28:31], s{T2} offen sc1")
    for it in range(2):
        a(f"s_waitcnt vmcnt({1-it})")
        for e in range(8):
            op = "ds_write_b16_d16_hi" if e & 1 else "ds_write_b16"
            a(f"{op} v{8+it}, v{24 + 4*it + e//2} offset:{e*128}")
    if E('STFIRST', '1') != '1':
        lb = a.new("k_nost")
        a("s_cmp_lg_u32 s32, 8")
        a(f"s_cbranch_scc1 {lb}")
        a(f"s_lshl_b32 s{T0}, s2, 9")
        a(f"s_and_b32 s{T1}, s{TB}, 3")
        a(f"s_lshl_b32 s{T1}, s{T1}, 4")
        a(f"s_add_u32 s{T0}, s{T0}, s{T1}")
        a(f"s_add_u32 s{T0}, s{T0}, {HFLAG}")
        poll(a, T0, 4, sleep=int(E('YSLEEP', '8')))
        a("v_lshlrev_b32 v7, 3, v1")
        a(f"s_lshl_b32 s{T2}, s{TB}, 9")
        a(f"s_add_u32 s{T2}, s{T2}, {STATS_OFF}")
        a(f"buffer_load_dwordx2 v[24:25], v7, s[28:31], s{T2} offen sc1")
        a(f"v_add_u32 v7, {STS}, v7")
        a("s_waitcnt vmcnt(0)")
        a("ds_write_b64 v7, v[24:25]")
        a.lab(lb)
    a.stamp(10)
    a("s_waitcnt lgkmcnt(0)")
    a("s_barrier")
    a.fin()
    a("s_endpgm")

    a.lab("k_final")
    a.role = "f"
    a.stamp(11)
    a("v_lshrrev_b32 v2, 3, v0")
    a("v_and_b32 v3, 7, v0")
    a("v_lshlrev_b32 v7, 3, v2")
    a(f"v_add_u32 v148, {STS}, v7")
    a("v_lshrrev_b32 v4, 2, v3")
    a("v_lshrrev_b32 v5, 5, v2")
    a("v_lshl_add_u32 v5, v5, 1, v4")
    a("v_and_b32 v6, 3, v3")
    a("v_lshlrev_b32 v6, 1, v6")
    a("v_xor_b32 v6, v6, v4")
    a("v_and_b32 v7, 7, v2")
    a("v_xor_b32 v6, v6, v7")
    a("v_lshlrev_b32 v6, 4, v6")
    a("v_and_b32 v7, 31, v2")
    a("v_lshl_add_u32 v6, v7, 7, v6")
    a("v_cmp_eq_u32 vcc, 3, v5")
    a("v_lshl_add_u32 v7, v5, 12, v6")
    a(f"v_add_u32 v6, {CONV0}, v6")
    a(f"v_mov_b32 v8, {RING}")
    a("v_cndmask_b32 v132, v7, v6, vcc")
    a("v_mov_b32 v9, 0x1000")
    a("v_cndmask_b32 v8, v8, v9, vcc")
    for w in range(1, 8):
        a(f"v_add_u32 v{132+w}, v{131+w}, v8")
    for w in range(8):
        a(f"v_xor_b32 v{140+w}, 16, v{132+w}")
    a("v_lshrrev_b32 v6, 3, v2")
    a("v_xor_b32 v6, v6, v3")
    a("v_lshlrev_b32 v6, 4, v6")
    a("v_lshl_add_u32 v6, v2, 7, v6")
    a(f"v_add_u32 v149, {Y2S}, v6")
    srd(a, SB, OUT, 2048 * 896)
    X, XN, Y = 152, 72, 80
    a("s_waitcnt vmcnt(0)")
    for i in range(4):
        unpack(a, X + 2 * i, 128 + i)
    a("s_waitcnt lgkmcnt(0)")
    a("s_barrier")
    a.stamp(12)
    a("ds_read_b64 v[18:19], v148")
    PR = [24, 32, 40, 48, 96, 104, 112, 120]
    for w in range(8):
        a(f"ds_read_b128 {v(PR[w], 4)}, v{132+w}")
        a(f"ds_read_b128 {v(PR[w] + 4, 4)}, v{140+w}")
        if w == 5: a("s_waitcnt lgkmcnt(8)")
    a("ds_read_b128 v[56:59], v149")
    a("v_rcp_f32 v21, v19")
    for e in range(8):
        a(f"v_sub_f32 v{XN+e}, v{X+e}, v18")
    a("v_mul_f32 v22, v21, v21")
    for e in range(8):
        a(f"v_mul_f32 v{XN+e}, v{XN+e}, v21")
    a("s_waitcnt lgkmcnt(0)")
    for (d, s_) in ((0, 1), (2, 3), (4, 5), (6, 7), (0, 2), (4, 6), (0, 4)):
        for i in range(0, 8, 2):
            a(f"v_pk_add_f32 {v(PR[d]+i,2)}, {v(PR[d]+i,2)}, {v(PR[s_]+i,2)}")
    for e in range(8):
        a(f"v_mul_f32 v{24+e}, v{24+e}, v22")
    for e in range(8):
        a(f"v_mul_f32 v{32+e}, 0xbfb8aa3b, v{24+e}")
    for e in range(8):
        a(f"v_exp_f32 v{32+e}, v{32+e}")
    for i in range(4):
        unpack(a, Y + 2 * i, 56 + i)
    for e in range(8):
        a(f"v_add_f32 v{32+e}, 1.0, v{32+e}")
    for e in range(8):
        a(f"v_rcp_f32 v{32+e}, v{32+e}")
    for e in range(8):
        a(f"v_mul_f32 v{XN+e}, v{XN+e}, v{Y+e}")
    for e in range(8):
        a(f"v_mul_f32 v{24+e}, v{24+e}, v{32+e}")
    for e in range(8):
        a(f"v_fma_f32 v{24+e}, v{XN+e}, v{24+e}, v{X+e}")
    for i in range(4):
        a(f"v_cvt_pk_bf16_f32 v{88+i}, v{24+2*i}, v{24+2*i+1}")
    for _ in range(int(E("ENDSLEEP", "0"))): a("s_sleep 32")
    if E("TGLOB"):
        a("v_mov_b32 v2, 0")
        a(f"global_load_dword v3, v2, s[{DBG}:{DBG+1}] offset:128 sc1")
        a("s_waitcnt vmcnt(0)")
        a("v_readfirstlane_b32 s96, v3")
        a("s_nop 3")
        a("s_not_b32 s96, s96")
    if E("TM"):
        lp = a.new("tm1")
        a.lab(lp)
        a("s_memrealtime s[98:99]")
        a("s_waitcnt lgkmcnt(0)")
        a("s_sub_u32 s98, s98, s96")
        a("s_cmp_lt_u32 s98, 3000")
        a(f"s_cbranch_scc1 {lp}")
        lb = a.new("tm2")
        a("s_cmp_lg_u32 s32, 0")
        a(f"s_cbranch_scc1 {lb}")
        a("s_cmp_ge_u32 s2, 8")
        a(f"s_cbranch_scc1 {lb}")
        a("v_mov_b32 v2, 0")
        a(f"global_load_dword v3, v2, s[{DBG}:{DBG+1}] offset:128 sc1")
        a("s_waitcnt vmcnt(0)")
        a("v_readfirstlane_b32 s100, v3")
        a("s_nop 3")
        if E("TM").split(":")[2] == "min": a("s_sub_u32 s100, 0x10000, s100")
        a("s_add_u32 s100, s100, 4000")
        lp = a.new("tm3")
        a.lab(lp)
        a("s_memrealtime s[98:99]")
        a("s_waitcnt lgkmcnt(0)")
        a("s_sub_u32 s98, s98, s96")
        a("s_cmp_lt_u32 s98, s100")
        a(f"s_cbranch_scc1 {lp}")
        a.lab(lb)
    if E("TFIX"):
        lp = a.new("tfix")
        a.lab(lp)
        a("s_memrealtime s[98:99]")
        a("s_waitcnt lgkmcnt(0)")
        a("s_sub_u32 s98, s98, s96")
        a(f"s_cmp_lt_u32 s98, {int(E('TFIX'))}")
        a(f"s_cbranch_scc1 {lp}")
    a(f"buffer_store_dwordx4 v[88:91], v14, s[{SB}:{SB+3}], 0 offen {E('OST', 'sc1')}")
    a.fin()
    a("s_endpgm")

    a.lab("k_prep")
    a.role = "p"
    P = R0
    a(f"s_sub_u32 s{P}, s2, 224")
    a("s_waitcnt lgkmcnt(0)")
    srd(a, 28, WS, WS_REC)
    a("s_cmp_ge_u32 s32, 8")
    a("s_cbranch_scc1 k_end")
    a("s_cmp_eq_u32 s32, 7")
    a("s_cbranch_scc1 k_prep_flags")
    srd(a, SA, K_, 2048 * 896)
    srd(a, SB, V_, 2048 * 896)
    srd(a, SC, SK, 448 * 8)
    a(f"s_movk_i32 s{T0}, 1171")
    a(f"v_mul_lo_u32 v2, v0, s{T0}")
    a("v_lshrrev_b32 v2, 16, v2")
    a("v_mul_u32_u24 v3, 56, v2")
    a("v_sub_u32 v3, v0, v3")
    a(f"s_lshl_b32 s{T0}, s{P}, 6")
    a(f"v_lshl_add_u32 v4, v2, 3, s{T0}")
    a(f"s_movk_i32 s{T1}, 896")
    a(f"v_mul_lo_u32 v4, v4, s{T1}")
    a("v_lshl_add_u32 v11, v3, 4, v4")
    a("v_subrev_u32 v10, 2688, v11")
    a("v_add_u32 v12, 3584, v11")
    a("v_lshlrev_b32 v13, 6, v3")
    KR, VR, SW = 16, 60, 92
    PD = E("PDELAY", "1") == "1"
    for i in range(4):
        a(f"buffer_load_dwordx4 {v(SW+4*i,4)}, v13, s[{SC}:{SC+3}], 0 offen offset:{16*i}")
    if PD: a("s_waitcnt vmcnt(0)")
    for r in range(11):
        if r < 3: ad, off = 10, r * 896
        elif r < 7: ad, off = 11, (r - 3) * 896
        else: ad, off = 12, (r - 7) * 896
        a(f"buffer_load_dwordx4 {v(KR+4*r,4)}, v{ad}, s[{SA}:{SA+3}], 0 offen offset:{off}")
    for r in range(8):
        ad, off = (11, r * 896) if r < 4 else (12, (r - 4) * 896)
        a(f"buffer_load_dwordx4 {v(VR+4*r,4)}, v{ad}, s[{SB}:{SB+3}], 0 offen offset:{off}")
    a("v_sub_u32 v5, 7, v2")
    a("v_and_b32 v6, 7, v3")
    a("v_xor_b32 v5, v5, v6")
    a("v_lshlrev_b32 v5, 4, v5")
    a("v_lshl_add_u32 v14, v3, 10, v5")
    a.stamp(2)
    a("s_waitcnt vmcnt(0)")
    a.stamp(3)
    WF, KF, RES, OUT_ = 108, 116, 138, 154
    for p in range(4):
        for e in range(2):
            ch = 2 * p + e
            for tap in range(4):
                src = SW + 2 * ch + (tap >> 1)
                if tap & 1: a(f"v_and_b32 v{WF + 2*tap + e}, 0xffff0000, v{src}")
                else: a(f"v_lshlrev_b32 v{WF + 2*tap + e}, 16, v{src}")
        for r in range(11):
            unpack(a, KF + 2 * r, KR + 4 * r + p)
        for i in range(8):
            a(f"v_pk_mul_f32 {v(RES+2*i,2)}, {v(KF+2*i,2)}, {v(WF+6,2)}")
        for tap in (2, 1, 0):
            for i in range(8):
                a(f"v_pk_fma_f32 {v(RES+2*i,2)}, {v(KF+2*(i+3-tap),2)}, {v(WF+2*tap,2)}, {v(RES+2*i,2)}")
        for r in range(8):
            unpack(a, KF + 2 * r, VR + 4 * r + p)
        for i in range(8):
            a(f"v_pk_mul_f32 {v(RES+2*i,2)}, {v(RES+2*i,2)}, {v(KF+2*i,2)}")
        for e in range(2):
            for d in range(4):
                a(f"v_cvt_pk_bf16_f32 v{OUT_+4*e+d}, v{RES+2*(7-2*d)+e}, v{RES+2*(6-2*d)+e}")
        for e in range(2):
            a(f"ds_write_b128 v14, {v(OUT_+4*e,4)} offset:{(2*p+e)*128}")
    a("s_branch k_prep_bar")
    a.lab("k_prep_flags")
    a("v_mov_b32 v4, 0")
    a("v_mov_b32 v5, 0")
    a("v_mov_b32 v6, 0")
    a("v_mov_b32 v7, 0")
    a("v_lshlrev_b32 v2, 4, v1")
    a(f"s_mul_i32 s{T0}, s{P}, 3584")
    a(f"s_add_u32 s{T0}, s{T0}, {FLAG_OFF}")
    for q in range(4):
        if q == 3: a("s_mov_b32 exec_hi, 0")
        a(f"buffer_store_dwordx4 v[4:7], v2, s[28:31], s{T0} offen offset:{1024*q} sc1")
    a("s_mov_b64 exec, 1")
    a("v_mov_b32 v3, 1")
    a("s_waitcnt vmcnt(0) lgkmcnt(0)")
    a(f"global_atomic_add v4, v3, s[{DBG}:{DBG+1}] sc1")
    a("s_mov_b64 exec, -1")
    a.lab("k_prep_bar")
    a.stamp(4)
    a("s_waitcnt lgkmcnt(0)")
    a("s_barrier")
    a.stamp(5)
    a("v_lshrrev_b32 v2, 3, v0")
    a("v_and_b32 v3, 7, v0")
    a("v_xor_b32 v4, s32, v3")
    a("v_lshlrev_b32 v4, 4, v4")
    a("v_lshl_add_u32 v4, v2, 7, v4")
    a("v_lshlrev_b32 v5, 4, v3")
    a("v_lshl_add_u32 v5, v2, 12, v5")
    for it in range(7):
        a(f"ds_read_b128 {v(32+4*it,4)}, v4 offset:{it*8192}")
    a(f"s_lshl_b32 s{T0}, s{P}, 7")
    a(f"s_sub_u32 s{T0}, {UREV_OFF + 1984*2}, s{T0}")
    for it in range(7):
        a(f"s_waitcnt lgkmcnt({6-it})")
        a(f"buffer_store_dwordx4 {v(32+4*it,4)}, v5, s[28:31], s{T0} offen sc1")
        a(f"s_add_u32 s{T0}, s{T0}, {64*4096}")
    lb, lp = a.new("k_prep_icd"), a.new("k_prep_icl")
    a("s_cmp_lg_u32 s32, 7")
    a(f"s_cbranch_scc1 {lb}")
    a("v_mov_b32 v22, 0")
    a.lab(lp)
    a(f"global_load_dword v23, v22, s[{DBG}:{DBG+1}] sc1")
    a("s_waitcnt vmcnt(0)")
    a(f"v_readfirstlane_b32 s{T0}, v23")
    a("s_nop 3")
    a(f"s_cmp_ge_u32 s{T0}, 32")
    a(f"s_cbranch_scc1 {lb}")
    a("s_sleep 12")
    a(f"s_branch {lp}")
    a.lab(lb)
    a("s_waitcnt vmcnt(0)")
    a("s_barrier")
    a.stamp(6)
    lb = a.new("k_prep_np")
    a("s_cmp_lg_u32 s32, 7")
    a(f"s_cbranch_scc1 {lb}")
    a("v_lshlrev_b32 v4, 9, v1")
    a(f"s_lshl_b32 s{T0}, s{P}, 2")
    a(f"s_add_u32 s{T0}, s{T0}, {PFLAG}")
    a("v_mov_b32 v3, 1")
    for q in range(4):
        if q == 3: a("s_mov_b32 exec_hi, 0")
        a(f"buffer_store_dword v3, v4, s[28:31], s{T0} offen sc1")
        a(f"s_add_u32 s{T0}, s{T0}, {64*512}")
    a("s_mov_b64 exec, -1")
    a("s_waitcnt vmcnt(0)")
    a.lab(lb)
    if E("PWD", "0") == "1":
        a("s_barrier")
        srd(a, SA, WD, 1792 * 896)
        PW0 = int(E("PW0", "96"))
        rows = 224 - PW0
        a(f"s_mul_i32 s{T0}, s32, {224 * 896}")
        a(f"s_lshr_b32 s{T1}, s{P}, 3")
        a(f"s_mul_i32 s{T1}, s{T1}, {rows * 896 // 4}")
        a(f"s_add_u32 s{T0}, s{T0}, s{T1}")
        a(f"s_add_u32 s{T0}, s{T0}, {PW0 * 896}")
        a("v_lshlrev_b32 v2, 4, v1")
        n = rows * 896 // 4 // 1024
        for i in range(n):
            a(f"buffer_load_dwordx4 {v(16 + 4 * (i % 32), 4)}, v2, s[{SA}:{SA+3}], s{T0} offen offset:{(i % 4) * 1024}")
            if i % 4 == 3: a(f"s_add_u32 s{T0}, s{T0}, 4096")
    a.fin()
    a.lab("k_end")
    a.lab("k_last")
    a("s_endpgm")

HDR = open("cdna_kernels/" + NAME + ".s.ref").read().split("; Override launch")[0]

def main():
    out = sys.argv[1] if len(sys.argv) > 1 else f"cdna_kernels/{NAME}.s"
    a = A()
    kernel(a)
    txt = HDR
    txt += f"; @launch grid=(256,1,1) block=(768,1,1) lds={LDS}\n"
    txt += '.amdgcn_target "amdgcn-amd-amdhsa--gfx950"\n.text\n'
    txt += f".globl {KN}\n.p2align 8\n.type {KN},@function\n" + "\n".join(a.L) + "\n"
    txt += f'''.section .rodata,"a"
.p2align 6
.amdhsa_kernel {KN}
  .amdhsa_next_free_vgpr 168
  .amdhsa_next_free_sgpr 102
  .amdhsa_accum_offset 168
  .amdhsa_group_segment_fixed_size 0
  .amdhsa_kernarg_size 104
  .amdhsa_user_sgpr_count 2
  .amdhsa_user_sgpr_kernarg_segment_ptr 1
  .amdhsa_system_sgpr_workgroup_id_x 1
.end_amdhsa_kernel
'''
    open(out, "w").write(txt)

if __name__ == "__main__":
    main()
```
